```python
import torch

def _softmax(x, axis=-1):
    return torch.softmax(x, dim=axis)

def _gelu(x):
    return torch.nn.functional.gelu(x, approximate='tanh')

def _silu(x):
    return torch.nn.functional.silu(x)

def _sigmoid(x):
    return torch.sigmoid(x)

def _layernorm(x, axis=-1, eps=1e-05):
    m = x.mean(dim=axis, keepdim=True)
    v = x.var(dim=axis, keepdim=True, unbiased=False)
    return (x - m) / torch.sqrt(v + eps)

def _scatter_add(tgt, idx, src, axis=0):
    return tgt.clone().index_add_(axis, idx, src)

def _segment_sum(src, seg, n):
    out = torch.zeros((n,) + src.shape[1:], dtype=src.dtype)
    return out.index_add_(0, seg, src)

def _pad(x, pw):
    flat = tuple((v for pair in reversed(pw) for v in pair))
    return torch.nn.functional.pad(x, flat)
kernel_name = 'gated_mix__memory_aug_recurrent_mem_tr__ssm_conv_s4__prompt'

def setup_inputs():

    _w = lambda a: (lambda t: t.to(torch.bfloat16) if t.is_floating_point() else t)(torch.as_tensor(a))

    def _A_setup():
        B, S, Dm = (1, 2048, 512)
        H, Dh = (32, 128)
        M, seg = (8, 32)
        seg = min(seg, S)
        S = S // seg * seg
        return {'x': _w((lambda *s: torch.randn(*s, dtype=torch.bfloat16) * 0.05)(B, S, Dm)), 'mem0': _w((lambda *s: torch.randn(*s, dtype=torch.bfloat16) * 0.4)(B, M, Dm)), 'Wq': _w((lambda *s: torch.randn(*s, dtype=torch.bfloat16) * 6.4)(Dm, H, Dh) * Dm ** (-0.5)), 'Wk': _w((lambda *s: torch.randn(*s, dtype=torch.bfloat16) * 6.4)(Dm, H, Dh) * Dm ** (-0.5)), 'Wv': _w((lambda *s: torch.randn(*s, dtype=torch.bfloat16) * 0.4)(Dm, H, Dh) * Dm ** (-0.5)), 'Wo': _w((lambda *s: torch.randn(*s, dtype=torch.bfloat16) * 0.4)(H, Dh, Dm) * (H * Dh) ** (-0.5)), 'seg_len': seg}
    _A_in = _A_setup()

    def _B_setup():
        B, L, D, N = (1, 2048, 512, 128)
        A_re = -(lambda _x: torch.exp(torch.as_tensor(_x)))((lambda *s: torch.randn(*s, dtype=torch.bfloat16) * 6.4)(D, N))
        A_im = torch.pi * (lambda *s: torch.randn(*s, dtype=torch.bfloat16) * 0.05)(D, N)
        B_re = (lambda *s: torch.randn(*s, dtype=torch.bfloat16) * 0.1)(D, N)
        B_im = (lambda *s: torch.randn(*s, dtype=torch.bfloat16) * 0.1)(D, N)
        C_re = (lambda *s: torch.randn(*s, dtype=torch.bfloat16) * 0.1)(D, N)
        C_im = (lambda *s: torch.randn(*s, dtype=torch.bfloat16) * 0.1)(D, N)
        log_dt = (lambda *s: torch.randn(*s, dtype=torch.bfloat16) * 0.05)(D) * 0.5 - 4.0
        Dskip = (lambda *s: torch.randn(*s, dtype=torch.bfloat16) * 0.05)(D)
        return {'u': _w((lambda *s: torch.randn(*s, dtype=torch.bfloat16) * 0.05)(B, L, D)), 'A_re': _w(A_re), 'A_im': _w(A_im), 'B_re': _w(B_re), 'B_im': _w(B_im), 'C_re': _w(C_re), 'C_im': _w(C_im), 'log_dt': _w(log_dt), 'Dskip': _w(Dskip)}
    _B_in = _B_setup()
    return {'A_x': _A_in['x'], 'A_mem0': _A_in['mem0'], 'A_Wq': _A_in['Wq'], 'A_Wk': _A_in['Wk'], 'A_Wv': _A_in['Wv'], 'A_Wo': _A_in['Wo'], 'A_seg_len': _A_in['seg_len'], 'B_u': _B_in['u'], 'B_A_re': _B_in['A_re'], 'B_A_im': _B_in['A_im'], 'B_B_re': _B_in['B_re'], 'B_B_im': _B_in['B_im'], 'B_C_re': _B_in['C_re'], 'B_C_im': _B_in['C_im'], 'B_log_dt': _B_in['log_dt'], 'B_Dskip': _B_in['Dskip'], 'gate_w': _w((lambda *s: torch.randn(*s, dtype=torch.bfloat16) * 0.05)(512) * 16.0)}

def reference(A_x, A_mem0, A_Wq, A_Wk, A_Wv, A_Wo, A_seg_len, B_u, B_A_re, B_A_im, B_B_re, B_B_im, B_C_re, B_C_im, B_log_dt, B_Dskip, gate_w):

    def _A_ref(x, mem0, Wq, Wk, Wv, Wo, seg_len):
        B, S, Dm = x.shape
        H, Dh = (Wq.shape[1], Wq.shape[2])
        M = mem0.shape[1]
        scale = Dh ** (-0.5)
        n_seg = S // seg_len
        L = M + seg_len
        idx = torch.arange(L)
        mask = (idx[:, None] < M) | (idx[:, None] >= idx[None, :])
        mem = mem0
        outs = []
        for s in range(n_seg):
            xs = x[:, s * seg_len:(s + 1) * seg_len, :].clone()
            h = torch.concatenate([mem, xs], axis=1)
            q = torch.einsum('btd,dhe->bhte', h, Wq)
            k = torch.einsum('btd,dhe->bhte', h, Wk)
            v = torch.einsum('btd,dhe->bhte', h, Wv)
            scores = torch.einsum('bhqe,bhke->bhqk', q, k) * scale
            scores = torch.where(mask[None, None], scores, -1000000000.0)
            p = _softmax(scores, axis=-1)
            o = torch.einsum('bhqk,bhke->bhqe', p, v)
            o = torch.einsum('bhte,hed->btd', o, Wo)
            mem = o[:, :M, :].clone()
            outs.append(o[:, M:, :])
        return torch.concatenate(outs, axis=1)

    def _B_ref(u, A_re, A_im, B_re, B_im, C_re, C_im, log_dt, Dskip):
        Bsz, L, D = u.shape
        dt = torch.exp(log_dt)[:, None]
        A = A_re + 1j * A_im
        Bc = B_re + 1j * B_im
        Cc = C_re + 1j * C_im
        logdA = dt * A
        dB = dt * Bc
        l = (lambda x, dt: x.to(dt))(torch.arange(L), A_re.dtype)
        P = torch.exp(logdA[:, :, None] * l[None, None, :])
        K = torch.einsum('dn,dnl,dn->dl', Cc, P, dB).real
        L2 = 2 * L
        Kp = _pad(K, ((0, 0), (0, L)))
        up = (lambda x, *d: x.permute(*d))(u, 0, 2, 1)
        up = _pad(up, ((0, 0), (0, 0), (0, L)))
        Kf = (lambda x, axes=(-2, -1): torch.fft.rfft2(x.float(), dim=axes))(Kp[:, None, :], axes=(-2, -1))
        Uf = (lambda x, axes=(-2, -1): torch.fft.rfft2(x.float(), dim=axes))(up[:, :, None, :], axes=(-2, -1))
        Yf = Uf * Kf[None, :, :, :]
        y = (lambda x, s, axes=(-2, -1): torch.fft.irfft2(x, s=s, dim=axes).to(torch.bfloat16))(Yf, (1, L2), axes=(-2, -1))[:, :, 0, :L]
        y = (lambda x, *d: x.permute(*d))(y, 0, 2, 1) + u * Dskip[None, None, :]
        return y
    x = A_x
    g = _sigmoid((x * gate_w).sum(-1, keepdims=True))
    a = _A_ref(x, A_mem0, A_Wq, A_Wk, A_Wv, A_Wo, A_seg_len)
    b = _B_ref(x, B_A_re, B_A_im, B_B_re, B_B_im, B_C_re, B_C_im, B_log_dt, B_Dskip)
    return g * a + (1 - g) * b
```

```python
import re

_REG_RE = re.compile(r'^(-?)(abs\()?([vas])(\d+|\[(\d+):(\d+)\])\)?$')

def parse_reg(tok):
    tok = tok.strip()
    if tok in ('vcc',):
        return [('s', 'vcc')]
    if tok in ('exec',):
        return [('s', 'exec')]
    if tok == 'm0':
        return [('s', 'm0')]
    m = _REG_RE.match(tok)
    if not m:
        return []
    kind = m.group(3)
    if m.group(5) is not None:
        lo, hi = int(m.group(5)), int(m.group(6))
    else:
        lo = hi = int(m.group(4))
    return [(kind, i) for i in range(lo, hi + 1)]

TRANS = ('v_exp_f32', 'v_log_f32', 'v_rcp_f32', 'v_rsq_f32', 'v_sqrt_f32', 'v_sin_f32', 'v_cos_f32')

def mfma_passes(op):
    if '32x32' in op:
        return 8
    return 4

class Ins:
    __slots__ = ('text', 'op', 'cls', 'reads', 'writes', 'srcc', 'srcab', 'passes', 'states', 'dpp', 'wide_store')

class Asm:
    def __init__(self):
        self.out = []
        self.hist = []
        self.nops_inserted = 0

    def _classify(self, text):
        ins = Ins()
        ins.text = text
        body = text.split(';')[0].strip()
        parts = body.split(None, 1)
        op = parts[0]
        rest = parts[1] if len(parts) > 1 else ''
        ops = [o.strip() for o in rest.split(',')] if rest else []
        mods = ''
        if ops:
            last = ops[-1].split()
            ops[-1] = last[0] if last else ''
            mods = ' '.join(last[1:])
        ins.op = op
        ins.reads = []; ins.writes = []; ins.srcc = []; ins.srcab = []
        ins.passes = 0; ins.states = 1; ins.dpp = ('row_' in mods or 'quad_perm' in mods or op.endswith('_dpp')); ins.wide_store = False
        R = [parse_reg(o) for o in ops]
        if op == 's_nop':
            ins.cls = 'nop'; ins.states = int(ops[0], 0) + 1
        elif op.startswith('v_mfma'):
            ins.cls = 'mfma'; ins.passes = mfma_passes(op)
            ins.writes = R[0]; ins.srcab = R[1] + R[2]; ins.srcc = R[3]; ins.reads = ins.srcab + ins.srcc
        elif op.startswith('v_smfmac'):
            ins.cls = 'mfma'; ins.passes = mfma_passes(op)
            ins.writes = R[0]; ins.srcab = R[1] + R[2] + R[3]; ins.srcc = R[0]; ins.reads = ins.srcab + ins.srcc
        elif op.startswith('v_permlane') and 'swap' in op:
            ins.cls = 'permlane'; ins.writes = R[0] + R[1]; ins.reads = R[0] + R[1]
        elif op.startswith('v_cmp'):
            ins.cls = 'valu'; ins.writes = R[0]; ins.reads = sum(R[1:], [])
        elif op.startswith('v_writelane'):
            ins.cls = 'valu'; ins.writes = R[0]; ins.reads = sum(R, [])
        elif op.startswith('v_readfirstlane') or op.startswith('v_readlane'):
            ins.cls = 'readlane'; ins.writes = R[0]; ins.reads = sum(R[1:], [])
        elif op.startswith('v_'):
            ins.cls = 'trans' if any(op.startswith(t) for t in TRANS) else 'valu'
            ins.writes = list(R[0]); ins.reads = sum(R[1:], [])
            if op.startswith('v_fmac') or op.startswith('v_dot2c') or op.startswith('v_pk_fmac') or ins.dpp:
                ins.reads = ins.reads + R[0]
            if '_co_' in op:
                ins.writes = R[0] + R[1]; ins.reads = sum(R[2:], [])
            if op.startswith('v_cndmask') and len(ops) == 3:
                ins.reads = ins.reads + [('s', 'vcc')]
        elif op.startswith('ds_read') or op.startswith('ds_bpermute') or op.startswith('ds_swizzle'):
            ins.cls = 'ds'; ins.writes = R[0]; ins.reads = sum(R[1:], [])
        elif op.startswith('ds_'):
            ins.cls = 'ds'; ins.reads = sum(R, [])
        elif op.startswith('buffer_load') or op.startswith('global_load'):
            ins.cls = 'vmem'
            if 'lds' in mods.split() or '_lds_' in op:
                ins.reads = sum(R, []) + [('s', 'm0')]; ins.cls = 'vmem_lds'
            else:
                ins.writes = R[0]; ins.reads = sum(R[1:], [])
        elif op.startswith('buffer_store') or op.startswith('global_store'):
            ins.cls = 'vmem'; ins.reads = sum(R, [])
            if 'x4' in op or 'x3' in op:
                ins.wide_store = True
                ins.srcc = R[0] if op.startswith('buffer') else R[1]
        elif op.startswith('buffer_atomic') or op.startswith('global_atomic'):
            ins.cls = 'vmem'; ins.reads = sum(R, [])
            if 'sc0' in mods.split():
                ins.writes = R[0]
        elif op.startswith('buffer_') or op.startswith('s_waitcnt') or op.startswith('s_barrier') or op.startswith('s_sleep') or op.startswith('s_setprio'):
            ins.cls = 'other'
        elif op.startswith('s_cbranch') or op.startswith('s_branch') or op == 's_endpgm':
            ins.cls = 'branch'
        elif op.startswith('s_'):
            ins.cls = 'salu'
            if op.startswith('s_cmp') or op.startswith('s_bitcmp'):
                ins.reads = sum(R, [])
            elif op.startswith('s_load') or op.startswith('s_buffer_load') or op.startswith('s_mem'):
                ins.cls = 'smem'; ins.writes = R[0]; ins.reads = sum(R[1:], [])
            else:
                ins.writes = R[0] if R else []; ins.reads = sum(R[1:], [])
                if 'saveexec' in op:
                    ins.writes = ins.writes + [('s', 'exec')]
        else:
            raise ValueError('unknown instruction ' + text)
        return ins

    def _need(self, p, c):
        need = 0
        pw = set(p.writes)
        VALUISH = ('valu', 'trans', 'permlane', 'readlane')
        cvr = set(r for r in c.reads if r[0] in 'va')
        cw = set(c.writes)
        if p.cls in VALUISH:
            pv = set(r for r in pw if r[0] in 'va')
            ps = set(r for r in pw if r[0] == 's')
            if pv:
                if c.cls == 'mfma' and pv & cvr: need = max(need, 2)
                if c.cls == 'permlane' and pv & cvr: need = max(need, 2)
                if c.dpp and pv & cvr: need = max(need, 2)
                if c.cls == 'readlane' and pv & cvr: need = max(need, 1)
                if p.cls == 'trans' and c.cls in VALUISH and c.cls != 'trans' and pv & (cvr | cw): need = max(need, 1)
                if p.cls == 'trans' and c.cls in ('vmem', 'ds', 'vmem_lds') and pv & cvr: need = max(need, 1)
            if ps:
                csr = set(r for r in c.reads if r[0] == 's')
                if ps & csr:
                    if c.cls in ('vmem', 'vmem_lds'): need = max(need, 5)
                    elif c.cls in VALUISH: need = max(need, 4 if c.cls == 'readlane' else 2)
                    elif c.cls in ('salu', 'smem'): need = max(need, 1)
                if ('s', 'exec') in ps and (c.cls in VALUISH or c.cls == 'mfma'): need = max(need, 5)
        if p.cls == 'mfma':
            big = {4: 8, 8: 12}[p.passes]
            if c.cls == 'mfma':
                if pw & set(c.srcab): need = max(need, big)
                if pw & set(c.srcc):
                    if not (set(c.srcc) == pw and c.op == p.op): need = max(need, p.passes + 2)
                elif pw & cw:
                    need = max(need, big)
            else:
                if pw & (cvr | cw): need = max(need, big)
            if c.cls in VALUISH and set(p.srcc) & cw: need = max(need, p.passes - 1)
        if p.wide_store:
            if set(p.srcc) & cw: need = max(need, 2)
        if p.cls == 'salu' and ('s', 'm0') in pw and c.cls == 'vmem_lds':
            need = max(need, 1)
        return need

    def emit(self, text):
        for line in text.split('\n'):
            line = line.strip()
            if not line:
                continue
            if line.startswith(';') or line.startswith('.') :
                self.out.append('    ' + line); continue
            if line.endswith(':'):
                self.out.append(line); continue
            ins = self._classify(line)
            dist = 0; need = 0
            for p in reversed(self.hist):
                n = self._need(p, ins) - dist
                if n > need: need = n
                dist += p.states
                if dist > 24: break
            if ins.cls == 'branch' and ins.op != 's_endpgm':
                dist = 0
                for p in reversed(self.hist):
                    if p.cls == 'mfma':
                        n = {4: 8, 8: 12}[p.passes] - dist - 1
                        if n > need: need = n
                    elif p.cls in ('valu', 'trans', 'permlane', 'readlane') and any(r[0] in 'va' for r in p.writes):
                        n = 2 - dist - 1
                        if n > need: need = n
                    dist += p.states
                    if dist > 24: break
            while need > 0:
                k = min(need, 16)
                nop = self._classify('s_nop %d' % (k - 1))
                self.out.append('    s_nop %d' % (k - 1)); self.hist.append(nop); self.nops_inserted += k
                need -= k
            self.out.append('    ' + line)
            self.hist.append(ins)
            if len(self.hist) > 64:
                self.hist = self.hist[-40:]

    def __call__(self, text):
        self.emit(text)

    def text(self):
        return '\n'.join(self.out) + '\n'

def vr(base, n=1, k='v'):
    return '%s%d' % (k, base) if n == 1 else '%s[%d:%d]' % (k, base, base + n - 1)
def ar(base, n=1):
    return vr(base, n, 'a')
def sr(base, n=1):
    return vr(base, n, 's')
```

```python
from asmgen import Asm, vr, ar, sr
from layout import *
from gen_chain import build_srd, kernel_header, kernel_desc, f32bits, SCALE_LOG2E
from gen_gemm import load_ptrs

def gen_wof_task(a, name, s_task, uid=''):
    RS = 1056
    build_srd(a, 8, 52 + 2 * 5, 4194304)
    a('v_and_b32 v2, 63, v0')
    a('v_lshrrev_b32 v1, 6, v0')
    a('v_readfirstlane_b32 s15, v1')
    a('v_lshlrev_b32 v3, 4, v2')
    a('v_lshl_add_u32 v4, v1, 10, v3')
    a('v_mul_u32_u24 v5, %d, v1' % RS)
    a('v_add_u32 v5, v5, v3')
    a('s_lshl_b32 s16, s%d, 15' % s_task)
    a('s_barrier')
    for i in range(8):
        a('s_add_u32 s17, s16, %d' % (i * 4096))
        a('buffer_load_dwordx4 %s, v4, s[8:11], s17 offen' % vr(8 + 4 * i, 4))
    for i in range(8):
        a('s_waitcnt vmcnt(%d)' % (7 - i))
        a('ds_write_b128 v5, %s offset:%d' % (vr(8 + 4 * i, 4), i * 4 * RS))
    a('v_lshrrev_b32 v6, 2, v2')
    a('v_mul_u32_u24 v6, %d, v6' % RS)
    a('v_and_b32 v7, 3, v2')
    a('v_lshl_add_u32 v6, v7, 3, v6')
    a('s_lshl_b32 s17, s15, 8')
    a('v_add_u32 v6, s17, v6')
    a('s_waitcnt lgkmcnt(0)')
    a('s_barrier')
    for k in range(8):
        a('ds_read_b64_tr_b16 %s, v6 offset:%d' % (vr(8 + 4 * k, 2), k * 32))
        a('ds_read_b64_tr_b16 %s, v6 offset:%d' % (vr(8 + 4 * k + 2, 2), k * 32 + 16 * RS))
    a('s_lshl_b32 s17, s15, 13')
    a('s_add_u32 s16, s16, s17')
    a('s_add_u32 s16, s16, 0x%x' % WOF_OFF)
    for k in range(8):
        a('s_waitcnt lgkmcnt(%d)' % (14 - 2 * k))
        if k == 4:
            a('s_add_u32 s16, s16, 4096')
        a('buffer_store_dwordx4 %s, v3, s[4:7], s16 offen offset:%d' % (vr(8 + 4 * k, 4), (k % 4) * 1024))

A_LDS = 65536 + 256

def gen_attn_task(a, name, s_task, uid='', sc1=False):
    N = name + uid
    SC = ' sc1' if sc1 else ''
    S_S, S_CQ, S_W, S_T = 12, 13, 15, 16
    YA = 0; SA = 64; PXr = 76; PMr = 80; OAc = 84; OF = 116
    MB_ = 148; VL16 = 152; T = 153; T1 = 154; LSUM = 155; VX_ = 156
    AW = 0; AQ = 128; AK = 160; AKM = 192; AV = 208; AVM = 240
    a('s_lshr_b32 s%d, s%d, 2' % (S_S, s_task))
    a('s_and_b32 s%d, s%d, 3' % (S_CQ, s_task))
    a('v_lshrrev_b32 v1, 6, v0')
    a('v_readfirstlane_b32 s%d, v1' % S_W)
    a('v_and_b32 v2, 63, v0')
    a('v_lshlrev_b32 %s, 4, v2' % vr(VL16))
    a('s_load_dwordx2 s[28:29], s[0:1], 128')
    a('s_load_dwordx2 s[30:31], s[0:1], 136')
    build_srd(a, 8, 52, 2097152)
    a('s_mov_b32 s27, 0x%x' % f32bits(SCALE_LOG2E))
    a('s_waitcnt lgkmcnt(0)')
    build_srd(a, 20, 28, 1024)
    build_srd(a, 32, 30, 2097152)
    vm_n = [0]; vm_done = [-1]
    def V(text):
        a(text); vm_n[0] += 1; return vm_n[0] - 1
    def VW(idx):
        if idx <= vm_done[0]: return
        n = vm_n[0] - idx - 1
        assert n <= 62, n
        a('s_waitcnt vmcnt(%d)' % n); vm_done[0] = idx
    a('s_lshl_b32 s%d, s%d, 5' % (S_T, S_S))
    a('s_add_u32 s%d, s%d, s%d' % (S_T, S_T, S_W))
    a('s_lshl_b32 s36, s%d, 13' % S_T)
    a('s_add_u32 s37, s36, 0x%x' % VX_OFF)
    a('s_add_u32 s38, s36, 0x%x' % QX_OFF)
    a('s_lshl_b32 s39, s%d, 12' % S_T)
    a('s_add_u32 s40, s39, 0x%x' % VM_OFF)
    a('s_add_u32 s39, s39, 0x%x' % KM_OFF)
    a('s_lshl_b32 s41, s%d, 17' % S_W)
    a('s_lshl_b32 s%d, s%d, 13' % (S_T, S_CQ))
    a('s_add_u32 s41, s41, s%d' % S_T)
    a('s_add_u32 s41, s41, 0x%x' % WOF_OFF)
    ids = {}
    def ld(dst, soff, off, sc=''):
        if off >= 4096:
            a('s_add_u32 s%d, s%d, %d' % (S_T, soff, off & ~4095)); so = S_T
        else:
            so = soff
        return V('buffer_load_dwordx4 %s, %s, s[4:7], s%d offen offset:%d%s' % (dst, vr(VL16), so, off & 4095, sc))
    def ld_qk(i):
        for j in range(8): ld(ar(AQ + 4 * j, 4), 38, j * 1024, SC)
        for j in range(8): ld(ar(AK + 4 * j, 4), 36, j * 1024, SC)
        for j in range(4): ids[('qk', i)] = ld(ar(AKM + 4 * j, 4), 39, j * 1024, SC)
        a('s_add_u32 s38, s38, 0x8000'); a('s_add_u32 s36, s36, 0x8000'); a('s_add_u32 s39, s39, 0x4000')
    def ld_v(i):
        for j in range(8): ld(ar(AV + 4 * j, 4), 37, j * 1024, SC)
        for j in range(4): ids[('v', i)] = ld(ar(AVM + 4 * j, 4), 40, j * 1024, SC)
        a('s_add_u32 s37, s37, 0x8000'); a('s_add_u32 s40, s40, 0x4000')
    def ld_w(i, es):
        for nt in range(8): ids[('w', i, es)] = ld(ar(AW + (es * 8 + nt) * 4, 4), 41, es * 32768 + nt * 1024, SC)
        if es == 3: a('s_add_u32 s41, s41, 0x80000')
    ld_qk(0); ld_v(0)
    for es in range(4): ld_w(0, es)
    a('s_barrier')
    gw = V('buffer_load_dwordx4 v[8:11], %s, s[20:23], 0 offen' % vr(VL16))
    a('s_lshl_b32 s%d, s%d, 5' % (S_T, S_S))
    a('s_lshl_b32 s%d, s%d, 3' % (S_T + 1, S_W))
    a('s_add_u32 s%d, s%d, s%d' % (S_T, S_T, S_T + 1))
    a('s_lshl_b32 s%d, s%d, 10' % (S_T + 1, S_T))
    a('s_add_u32 s%d, s%d, 4096' % (S_T + 2, S_T + 1))
    xid = []
    for k in range(8):
        xid.append(V('buffer_load_dwordx4 %s, %s, s[8:11], s%d offen offset:%d' % (vr(24 + 4 * k, 4), vr(VL16), S_T + 1 + k // 4, (k % 4) * 1024)))
    VW(gw)
    for j in range(4):
        a('v_lshlrev_b32 %s, 16, %s' % (vr(12 + 2 * j), vr(8 + j)))
        a('v_and_b32 %s, 0xffff0000, %s' % (vr(13 + 2 * j), vr(8 + j)))
    a('s_mov_b32 s26, 0x3f803f80')
    for k in range(8):
        VW(xid[k])
        b = 24 + 4 * k
        for j in range(4):
            a('v_lshlrev_b32 v20, 16, %s' % vr(b + j))
            a('v_and_b32 v21, 0xffff0000, %s' % vr(b + j))
            a('v_mul_f32 v20, v20, %s' % vr(12 + 2 * j))
            a('v_mul_f32 v21, v21, %s' % vr(13 + 2 * j))
            a('v_cvt_pk_bf16_f32 v20, v20, v21')
            a('v_dot2_f32_bf16 %s, v20, s26, %s' % (vr(56 + k), '0' if j == 0 else vr(56 + k)))
    for k in range(8):
        for sh in (1, 2, 4, 8):
            a('v_add_f32_dpp %s, %s, %s row_ror:%d row_mask:0xf bank_mask:0xf' % (vr(56 + k), vr(56 + k), vr(56 + k), sh) if False else
              'v_mov_b32_dpp v20, %s row_ror:%d row_mask:0xf bank_mask:0xf' % (vr(56 + k), sh))
            a('v_add_f32 %s, %s, v20' % (vr(56 + k), vr(56 + k)))
        a('v_mov_b32 v20, %s' % vr(56 + k))
        a('v_permlane32_swap_b32 %s, v20' % vr(56 + k))
        a('v_add_f32 %s, %s, v20' % (vr(56 + k), vr(56 + k)))
        a('v_mov_b32 v20, %s' % vr(56 + k))
        a('v_permlane16_swap_b32 %s, v20' % vr(56 + k))
        a('v_add_f32 %s, %s, v20' % (vr(56 + k), vr(56 + k)))
    a('v_mov_b32 v22, v56')
    for k in range(1, 8):
        a('v_cmp_eq_u32 vcc, %d, v2' % k)
        a('v_cndmask_b32 v22, v22, %s, vcc' % vr(56 + k))
    a('v_cvt_pk_bf16_f32 v22, v22, v22')
    a('v_and_b32 v22, 0xffff0000, v22')
    a('v_mul_f32 v22, 0xbfb8aa3b, v22')
    a('v_exp_f32 v22, v22')
    a('v_add_f32 v22, 1.0, v22')
    a('v_rcp_f32 v22, v22')
    a('v_cvt_pk_bf16_f32 v22, v22, v22')
    a('v_and_b32 v22, 0xffff0000, v22')
    a('s_lshl_b32 s%d, s%d, 5' % (S_T, S_W))
    a('s_add_u32 s%d, s%d, 65536' % (S_T, S_T))
    a('v_lshlrev_b32 v23, 2, v2')
    a('v_add_u32 v23, s%d, v23' % S_T)
    a('s_mov_b64 exec, 0xff')
    a('ds_write_b32 v23, v22')
    a('s_mov_b64 exec, -1')
    a('v_and_b32 v3, 15, v2')
    a('v_lshrrev_b32 v4, 4, v2')
    a('v_lshlrev_b32 v4, 2, v4')
    a('v_mov_b32 v5, 0xff800000')
    a('v_mov_b32 v6, 0')
    for i in range(4):
        a('v_add_u32 v7, %d, v4' % i)
        a('v_cmp_le_u32 vcc, v7, v3')
        a('v_cndmask_b32 %s, v5, v6, vcc' % vr(MB_ + i))
    a('v_mov_b32 %s, v2' % vr(VX_))
    for i in range(32):
        a('v_mov_b64 %s, 0' % vr(YA + 2 * i, 2))
    SM, SX0, SX1 = SA, SA + 4, SA + 8
    def mm(acc, A_, B_, first):
        a('v_mfma_f32_16x16x32_bf16 %s, %s, %s, %s' % (vr(acc, 4), A_, B_, '0' if first else vr(acc, 4)))
    for i in range(8):
        VW(ids[('qk', i)])
        for tt in range(2):
            for es in range(4):
                q = ar(AQ + (tt * 4 + es) * 4, 4)
                mm(SM, ar(AKM + 4 * es, 4), q, es == 0)
                mm(SX0, ar(AK + 4 * es, 4), q, es == 0)
                if tt == 1:
                    mm(SX1, ar(AK + 16 + 4 * es, 4), q, es == 0)
            if tt == 1 and i < 7:
                ld_qk(i + 1)
            DG = SX0 if tt == 0 else SX1
            for j in range(4):
                a('v_add_f32 %s, %s, %s' % (vr(DG + j), vr(DG + j), vr(MB_ + j)))
            a('v_max3_f32 %s, %s, %s, %s' % (vr(T), vr(SX0), vr(SX0 + 1), vr(SX0 + 2)))
            a('v_max3_f32 %s, %s, %s, %s' % (vr(T1), vr(SX0 + 3), vr(SM), vr(SM + 1)))
            if tt == 1:
                a('v_max3_f32 %s, %s, %s, %s' % (vr(T1), vr(SX1), vr(SX1 + 1), vr(T1)))
                a('v_max3_f32 %s, %s, %s, %s' % (vr(T), vr(SX1 + 2), vr(SX1 + 3), vr(T)))
            a('v_max_f32 %s, %s, %s' % (vr(T), vr(T), vr(T1)))
            a('v_mov_b32 %s, %s' % (vr(T1), vr(T)))
            a('v_permlane32_swap_b32 %s, %s' % (vr(T), vr(T1)))
            a('v_max_f32 %s, %s, %s' % (vr(T), vr(T), vr(T1)))
            a('v_mov_b32 %s, %s' % (vr(T1), vr(T)))
            a('v_permlane16_swap_b32 %s, %s' % (vr(T), vr(T1)))
            a('v_max_f32 %s, %s, %s' % (vr(T), vr(T), vr(T1)))
            a('v_mul_f32 %s, s27, %s' % (vr(T), vr(T)))
            regs = [SM, SM + 1] + [SX0 + j for j in range(4)] + ([SX1 + j for j in range(4)] if tt == 1 else [])
            for r in regs:
                a('v_fma_f32 %s, %s, s27, -%s' % (vr(r), vr(r), vr(T)))
            for r in regs:
                a('v_exp_f32 %s, %s' % (vr(r), vr(r)))
            a('v_add_f32 %s, %s, %s' % (vr(LSUM), vr(regs[0]), vr(regs[1])))
            for r in regs[2:]:
                a('v_add_f32 %s, %s, %s' % (vr(LSUM), vr(LSUM), vr(r)))
            a('v_cvt_pk_bf16_f32 %s, %s, %s' % (vr(PMr), vr(SM), vr(SM + 1)))
            a('v_cvt_pk_bf16_f32 %s, %s, %s' % (vr(PMr + 1), vr(SM), vr(SM + 1)))
            a('v_cvt_pk_bf16_f32 %s, %s, %s' % (vr(PXr), vr(SX0), vr(SX0 + 1)))
            a('v_cvt_pk_bf16_f32 %s, %s, %s' % (vr(PXr + 1), vr(SX0 + 2), vr(SX0 + 3)))
            if tt == 1:
                a('v_cvt_pk_bf16_f32 %s, %s, %s' % (vr(PXr + 2), vr(SX1), vr(SX1 + 1)))
                a('v_cvt_pk_bf16_f32 %s, %s, %s' % (vr(PXr + 3), vr(SX1 + 2), vr(SX1 + 3)))
            else:
                a('v_mov_b64 %s, 0' % vr(PXr + 2, 2))
            a('v_mov_b32 %s, %s' % (vr(T1), vr(LSUM)))
            VW(ids[('v', i)])
            for et in range(8):
                a('v_mfma_f32_16x16x16_bf16 %s, %s, %s, 0' % (vr(OAc + 4 * et, 4), ar(AVM + 2 * et, 2), vr(PMr, 2)))
                if et == 0:
                    a('v_permlane32_swap_b32 %s, %s' % (vr(LSUM), vr(T1)))
                    a('v_add_f32 %s, %s, %s' % (vr(LSUM), vr(LSUM), vr(T1)))
                    a('v_mov_b32 %s, %s' % (vr(T1), vr(LSUM)))
                if et == 2:
                    a('v_permlane16_swap_b32 %s, %s' % (vr(LSUM), vr(T1)))
                    a('v_add_f32 %s, %s, %s' % (vr(LSUM), vr(LSUM), vr(T1)))
                    a('v_rcp_f32 %s, %s' % (vr(LSUM), vr(LSUM)))
            for et in range(8):
                a('v_mfma_f32_16x16x32_bf16 %s, %s, %s, %s' % (vr(OAc + 4 * et, 4), ar(AV + 4 * et, 4), vr(PXr, 4), vr(OAc + 4 * et, 4)))
            if tt == 1 and i < 7:
                ld_v(i + 1)
            for et in range(8):
                o = OAc + 4 * et
                for j in range(4):
                    a('v_mul_f32 %s, %s, %s' % (vr(o + j), vr(o + j), vr(LSUM)))
                a('v_cvt_pk_bf16_f32 %s, %s, %s' % (vr(OF + tt * 16 + 2 * et), vr(o), vr(o + 1)))
                a('v_cvt_pk_bf16_f32 %s, %s, %s' % (vr(OF + tt * 16 + 2 * et + 1), vr(o + 2), vr(o + 3)))
        for es in range(4):
            VW(ids[('w', i, es)])
            for nt in range(8):
                for tt in range(2):
                    y = YA + (nt * 2 + tt) * 4
                    a('v_mfma_f32_16x16x32_bf16 %s, %s, %s, %s' % (vr(y, 4), ar(AW + (es * 8 + nt) * 4, 4), vr(OF + tt * 16 + 4 * es, 4), vr(y, 4)))
            if i < 7:
                ld_w(i + 1, es)
    a('s_lshl_b32 s%d, s%d, 14' % (S_T, S_W))
    a('v_add_u32 %s, s%d, %s' % (vr(T), S_T, vr(VL16)))
    for k in range(16):
        a('ds_write_b128 %s, %s offset:%d' % (vr(T), vr(YA + 4 * k, 4), k * 1024))
    lane = vr(VX_)
    a('v_and_b32 v64, 15, %s' % lane)
    a('v_lshrrev_b32 v65, 4, %s' % lane)
    a('v_lshlrev_b32 v66, 10, v64')
    a('v_lshl_add_u32 v66, v65, 3, v66')
    a('s_lshl_b32 s%d, s%d, 15' % (S_T, S_S))
    a('s_lshl_b32 s%d, s%d, 8' % (S_T + 1, S_CQ))
    a('s_add_u32 s%d, s%d, s%d' % (S_T, S_T, S_T + 1))
    a('s_lshl_b32 s%d, s%d, 6' % (S_T + 1, S_W))
    a('s_add_u32 s24, s%d, s%d' % (S_T, S_T + 1))
    a('s_add_u32 s25, s24, 16384')
    a('s_add_u32 s42, s24, 0x%x' % BOUT_OFF)
    a('s_add_u32 s43, s25, 0x%x' % BOUT_OFF)
    bid = {}
    for u in range(2):
        for tt in range(2):
            bid[(u, tt)] = V('buffer_load_dwordx2 %s, v66, s[4:7], s%d offen offset:%d%s' % (vr(68 + (u * 2 + tt) * 2, 2), 42 + tt, u * 32, SC))
    a('s_lshl_b32 s%d, s%d, 12' % (S_T, S_W))
    a('v_add_u32 %s, s%d, %s' % (vr(T), S_T, vr(VL16)))
    a('v_lshlrev_b32 v67, 2, v64')
    a('s_waitcnt lgkmcnt(0)')
    a('s_barrier')
    for p in range(4):
        for k in range(4):
            a('ds_read_b128 %s, %s offset:%d' % (vr(YA + (p * 4 + k) * 4, 4), vr(T), p * 16384 + k * 1024))
    a('ds_read_b32 v76, v67 offset:%d' % 65535 if False else 'v_add_u32 v67, 65536, v67')
    a('ds_read_b32 v76, v67')
    a('ds_read_b32 v77, v67 offset:64')
    a('s_waitcnt lgkmcnt(0)')
    for tt in range(2):
        a('v_sub_f32 %s, 1.0, %s' % (vr(78 + tt), vr(76 + tt)))
        a('v_cvt_pk_bf16_f32 %s, %s, %s' % (vr(78 + tt), vr(78 + tt), vr(78 + tt)))
        a('v_and_b32 %s, 0xffff0000, %s' % (vr(78 + tt), vr(78 + tt)))
    for u in range(2):
        for tt in range(2):
            k = u * 2 + tt
            y = YA + k * 4
            for j in range(4):
                a('v_add_f32 %s, %s, %s' % (vr(y + j), vr(y + j), vr(y + 16 + j)))
                a('v_add_f32 %s, %s, %s' % (vr(y + 32 + j), vr(y + 32 + j), vr(y + 48 + j)))
            for j in range(4):
                a('v_add_f32 %s, %s, %s' % (vr(y + j), vr(y + j), vr(y + 32 + j)))
            a('v_cvt_pk_bf16_f32 v80, %s, %s' % (vr(y), vr(y + 1)))
            a('v_cvt_pk_bf16_f32 v81, %s, %s' % (vr(y + 2), vr(y + 3)))
            VW(bid[(u, tt)])
            bb = 68 + k * 2
            for h2 in range(2):
                a('v_lshlrev_b32 v82, 16, %s' % vr(80 + h2))
                a('v_and_b32 v83, 0xffff0000, %s' % vr(80 + h2))
                a('v_mul_f32 v82, v82, %s' % vr(76 + tt))
                a('v_mul_f32 v83, v83, %s' % vr(76 + tt))
                a('v_cvt_pk_bf16_f32 v82, v82, v83')
                a('v_lshlrev_b32 v84, 16, %s' % vr(bb + h2))
                a('v_and_b32 v85, 0xffff0000, %s' % vr(bb + h2))
                a('v_mul_f32 v84, v84, %s' % vr(78 + tt))
                a('v_mul_f32 v85, v85, %s' % vr(78 + tt))
                a('v_cvt_pk_bf16_f32 v84, v84, v85')
                a('v_lshlrev_b32 v83, 16, v82')
                a('v_and_b32 v82, 0xffff0000, v82')
                a('v_lshlrev_b32 v85, 16, v84')
                a('v_and_b32 v84, 0xffff0000, v84')
                a('v_add_f32 v83, v83, v85')
                a('v_add_f32 v82, v82, v84')
                a('v_cvt_pk_bf16_f32 %s, v83, v82' % vr(86 + 2 * k + h2))
            V('buffer_store_dwordx2 %s, v66, s[32:35], s%d offen offset:%d' % (vr(86 + 2 * k, 2), 24 + tt, u * 32))

def gen_simple_kernel(a, name, ntasks, body):
    kernel_header(a, name)
    a('s_cmp_ge_u32 s2, %d' % ntasks)
    a('s_cbranch_scc1 %s_exit' % name)
    load_ptrs(a)
    a('s_mov_b32 s49, s2')
    body(a, name, 49)
    a('%s_exit:' % name)
    a('s_endpgm')

if __name__ == '__main__':
    import sys
    a = Asm()
    hdr = '''; @launch kernel=wof_kernel grid=(128,1,1) block=(256,1,1) lds=34816
; @launch kernel=attn_kernel grid=(256,1,1) block=(256,1,1) lds=%d
.amdgcn_target "amdgcn-amd-amdhsa--gfx950"
.text
''' % A_LDS
    gen_simple_kernel(a, 'wof_kernel', 128, gen_wof_task)
    gen_simple_kernel(a, 'attn_kernel', 256, gen_attn_task)
    txt = hdr + a.text() + '.section .rodata,"a"\n.p2align 6\n' + kernel_desc('wof_kernel', 64, 102, 64) + '.p2align 6\n' + kernel_desc('attn_kernel', 416, 102, 160)
    open(sys.argv[1], 'w').write(txt)
    print('nops inserted', a.nops_inserted, 'lines', len(a.out))
```

```python
from asmgen import Asm, vr, ar, sr
from layout import *

L_WV = 32768
L_KX = 0
L_EX = L_KX + 16384
L_QK = L_EX + 8192
L_O = L_QK + 4096
L_MISC = L_O + 2048
LDS_BYTES = 163840
L_STG = 0

AF = 0
ACC = 32
WVS = 56
VX = 88
V_IDX = 104
V_T0 = 105
V_ONES = 106
V_HONES = 110
V_SEL = 112
V_L16 = 116
V_WVA = 117
V_QKW = 118
V_FTR = 119
V_OW = 120
V_OTR = 121
V_H1ST = 122
V_H1LD = 123
V_H2LD = 124
V_H2ST = 125
V_BIAS = 126
V_T1 = 127
V_LANE = 7
WO = 128

S_WS = 4
S_W = 8
S_H = 12
S_WV = 13
S_STEP = 14
S_T = 15
S_H1ST = 20
S_H1LD = 28
S_H2 = 32
S_KXP = 34
S_VXP = 35
S_KM = 36
S_VM = 37
S_ONELO = 38
S_ONEHI = 39
S_STMASK = 40
S_C = 42
S_CNT = 43
S_DBG = 44
S_HI32 = 48
S_PTR = 50
S_DUMP = 66
S_M0A = 67
S_M0B = 68
S_TS = 70
S_KMX = 72

import os
PK = int(os.environ.get('PK', '1')); PGAP = int(os.environ.get('PGAP', '1')); PMASK = int(os.environ.get('PMASK', '1'))
SCALE_LOG2E = 0.08838834764831845 * 1.4426950408889634

def f32bits(x):
    import struct
    return struct.unpack('<I', struct.pack('<f', x))[0]

def build_srd(a, d, ptr_lo, nbytes):
    a('s_mov_b32 s%d, s%d' % (d, ptr_lo))
    a('s_and_b32 s%d, s%d, 0xffff' % (d + 1, ptr_lo + 1))
    a('s_mov_b32 s%d, 0x%x' % (d + 2, nbytes))
    a('s_mov_b32 s%d, 0x00020000' % (d + 3))

def gen_role(a, name):
    a('s_load_dwordx2 s[%d:%d], s[0:1], 144' % (S_T + 1, S_T + 2))
    a('s_getreg_b32 s%d, hwreg(HW_REG_XCC_ID)' % S_T)
    a('s_and_b32 s%d, s%d, 15' % (S_T, S_T))
    a('s_waitcnt lgkmcnt(0)')
    build_srd(a, S_DBG, S_T + 1, 256)
    a('v_lshrrev_b32 v1, 6, v0')
    a('v_readfirstlane_b32 s%d, v1' % S_WV)
    a('v_and_b32 %s, 63, v0' % vr(V_LANE))
    a('s_cmp_lg_u32 s%d, 0' % S_WV)
    a('s_cbranch_scc1 %s_role_wait' % name)
    a('s_mov_b64 exec, 1')
    a('s_lshl_b32 s%d, s%d, 2' % (S_T + 3, S_T))
    a('v_mov_b32 v2, s%d' % (S_T + 3))
    a('v_mov_b32 v3, 1')
    a('buffer_atomic_add v3, v2, s[%d:%d], 0 offen sc0' % (S_DBG, S_DBG + 3))
    a('s_waitcnt vmcnt(0)')
    a('v_readfirstlane_b32 s%d, v3' % (S_T + 3))
    a('s_mov_b32 s%d, 99' % S_H)
    a('s_cmp_gt_u32 s%d, 31' % (S_T + 3))
    a('s_cbranch_scc1 %s_role_pub' % name)
    a('s_cmp_lg_u32 s%d, 31' % (S_T + 3))
    a('s_cbranch_scc1 %s_role_poll' % name)
    a('s_add_u32 s%d, s%d, 1' % (S_T + 4, S_T))
    a('v_mov_b32 v4, s%d' % (S_T + 4))
    a('v_mov_b32 v5, 0')
    a('v_mov_b32 v2, 64')
    a('buffer_atomic_cmpswap v[4:5], v2, s[%d:%d], 0 offen' % (S_DBG, S_DBG + 3))
    a('s_waitcnt vmcnt(0)')
    a('%s_role_poll:' % name)
    a('s_mov_b32 s%d, 0x400000' % S_CNT)
    a('v_mov_b32 v2, 64')
    a('%s_role_poll_loop:' % name)
    a('buffer_load_dword v4, v2, s[%d:%d], 0 offen sc1' % (S_DBG, S_DBG + 3))
    a('s_waitcnt vmcnt(0)')
    a('v_readfirstlane_b32 s%d, v4' % (S_T + 4))
    a('s_sub_u32 s%d, s%d, 1' % (S_CNT, S_CNT))
    a('s_cmp_eq_u32 s%d, 0' % S_CNT)
    a('s_cbranch_scc1 %s_role_pub' % name)
    a('s_cmp_eq_u32 s%d, 0' % (S_T + 4))
    a('s_cbranch_scc1 %s_role_poll_loop' % name)
    a('s_sub_u32 s%d, s%d, 1' % (S_T + 4, S_T + 4))
    a('s_cmp_lg_u32 s%d, s%d' % (S_T + 4, S_T))
    a('s_cbranch_scc1 %s_role_pub' % name)
    a('s_mov_b32 s%d, s%d' % (S_H, S_T + 3))
    a('%s_role_pub:' % name)
    a('v_mov_b32 v2, %d' % L_MISC)
    a('v_mov_b32 v3, s%d' % S_H)
    a('ds_write_b32 v2, v3')
    a('s_waitcnt lgkmcnt(0)')
    a('s_mov_b64 exec, -1')
    a('%s_role_wait:' % name)
    a('s_barrier')
    a('v_mov_b32 v2, %d' % L_MISC)
    a('ds_read_b32 v3, v2')
    a('s_waitcnt lgkmcnt(0)')
    a('v_readfirstlane_b32 s%d, v3' % S_H)
    a('s_barrier')

def gen_chain_body(a, name, nsteps=64, dump=False, stamps=False):
    lane = vr(V_LANE)
    a('s_load_dwordx16 s[%d:%d], s[0:1], 0' % (S_PTR + 2, S_PTR + 17))
    a('s_load_dwordx2 s[%d:%d], s[0:1], 152' % (S_PTR, S_PTR + 1))
    a('s_waitcnt lgkmcnt(0)')
    P = lambda i: S_PTR + 2 + 2 * i
    build_srd(a, S_WS, S_PTR, WS_BYTES)
    a('v_and_b32 v1, 15, %s' % lane)
    a('v_lshrrev_b32 v2, 4, %s' % lane)
    a('v_lshlrev_b32 %s, 4, %s' % (vr(V_L16), lane))
    a('v_and_b32 v3, 2, v1')
    a('v_cmp_eq_u32 vcc, 0, v3')
    a('v_mov_b32 v3, 0xeeee')
    a('v_mov_b32 v4, 0x4444')
    a('v_cndmask_b32 %s, v3, v4, vcc' % vr(V_IDX))
    for i in range(4):
        a('v_mov_b32 %s, 0x3f803f80' % vr(V_ONES + i))
    a('v_cmp_gt_u32 vcc, 32, %s' % lane)
    a('v_mov_b32 v3, 0xff800000')
    a('v_mov_b32 v4, 0')
    a('v_cndmask_b32 %s, v3, v4, vcc' % vr(V_BIAS))
    a('s_lshl_b32 s%d, s%d, 15' % (S_T, S_WV))
    a('s_add_u32 s%d, s%d, %d' % (S_T, S_T, L_WV))
    a('v_add_u32 %s, s%d, %s' % (vr(V_WVA), S_T, vr(V_L16)))
    a('s_lshl_b32 s%d, s%d, 10' % (S_T, S_WV))
    a('s_add_u32 s%d, s%d, %d' % (S_T, S_T, L_QK))
    a('v_lshlrev_b32 v3, 5, v1')
    a('v_lshl_add_u32 v3, v2, 3, v3')
    a('v_add_u32 %s, s%d, v3' % (vr(V_QKW), S_T))
    a('v_lshrrev_b32 v5, 2, v1')
    a('v_and_b32 v6, 3, v1')
    a('v_lshl_add_u32 v3, v2, 2, v5')
    a('v_lshlrev_b32 v3, 5, v3')
    a('v_lshl_add_u32 v3, v6, 3, v3')
    a('v_add_u32 %s, %d, v3' % (vr(V_FTR), L_QK))
    a('v_lshl_add_u32 v3, v2, 3, v5')
    a('v_lshlrev_b32 v3, 5, v3')
    a('v_lshl_add_u32 v3, v6, 3, v3')
    a('v_add_u32 %s, %d, v3' % (vr(V_OTR), L_O))
    a('v_and_b32 v3, 1, v1')
    a('v_lshl_add_u32 v3, v5, 1, v3')
    a('v_lshlrev_b32 v3, 5, v3')
    a('v_bfe_u32 v4, v1, 1, 1')
    a('v_lshl_add_u32 v3, v4, 2, v3')
    a('v_lshl_add_u32 v3, v2, 3, v3')
    a('s_lshl_b32 s%d, s%d, 9' % (S_T, S_WV))
    a('s_add_u32 s%d, s%d, %d' % (S_T, S_T, L_O))
    a('v_add_u32 %s, s%d, v3' % (vr(V_OW), S_T))
    a('v_lshrrev_b32 v3, 5, %s' % lane)
    a('v_lshlrev_b32 v3, 13, v3')
    a('v_and_b32 v4, 1, v2')
    a('v_lshl_add_u32 v3, v4, 7, v3')
    a('v_lshl_add_u32 v3, v1, 3, v3')
    a('s_lshl_b32 s%d, s%d, 14' % (S_T, S_WV))
    a('s_lshl_b32 s%d, s%d, 8' % (S_T + 1, S_H))
    a('s_add_u32 s%d, s%d, s%d' % (S_T, S_T, S_T + 1))
    a('v_add_u32 %s, s%d, v3' % (vr(V_H1ST), S_T))
    a('v_lshrrev_b32 v3, 2, %s' % lane)
    a('v_lshlrev_b32 v3, 8, v3')
    a('v_lshl_add_u32 v3, v6, 4, v3')
    a('s_lshl_b32 s%d, s%d, 13' % (S_T, S_H))
    a('s_lshl_b32 s%d, s%d, 6' % (S_T + 1, S_WV))
    a('s_add_u32 s%d, s%d, s%d' % (S_T, S_T, S_T + 1))
    a('v_add_u32 %s, s%d, v3' % (vr(V_H1LD), S_T))
    a('s_lshl_b32 s%d, s%d, 11' % (S_T, S_WV))
    a('v_add_u32 %s, s%d, %s' % (vr(V_H2LD), S_T, vr(V_L16)))
    a('v_lshlrev_b32 v3, 8, v2')
    a('v_and_b32 v4, 1, %s' % lane)
    a('v_lshl_add_u32 v3, v4, 5, v3')
    a('v_bfe_u32 v4, %s, 1, 1' % lane)
    a('v_lshl_add_u32 v3, v4, 2, v3')
    a('s_lshr_b32 s%d, s%d, 1' % (S_T, S_H))
    a('s_lshl_b32 s%d, s%d, 9' % (S_T, S_T))
    a('s_and_b32 s%d, s%d, 1' % (S_T + 1, S_H))
    a('s_lshl_b32 s%d, s%d, 7' % (S_T + 1, S_T + 1))
    a('s_add_u32 s%d, s%d, s%d' % (S_T, S_T, S_T + 1))
    a('s_lshr_b32 s%d, s%d, 1' % (S_T + 1, S_WV))
    a('s_lshl_b32 s%d, s%d, 6' % (S_T + 1, S_T + 1))
    a('s_add_u32 s%d, s%d, s%d' % (S_T, S_T, S_T + 1))
    a('s_and_b32 s%d, s%d, 1' % (S_T + 1, S_WV))
    a('s_lshl_b32 s%d, s%d, 3' % (S_T + 1, S_T + 1))
    a('s_add_u32 s%d, s%d, s%d' % (S_T, S_T, S_T + 1))
    a('v_add_u32 %s, s%d, v3' % (vr(V_H2ST), S_T))
    a('v_mov_b32 %s, 0x3f803f80' % vr(V_HONES))
    a('v_mov_b32 %s, 0' % vr(V_HONES + 1))
    a('v_and_b32 v3, 1, v1')
    a('v_lshlrev_b32 v3, 2, v3')
    a('v_lshl_add_u32 v3, v5, 1, v3')
    a('v_bfe_u32 v4, v1, 1, 1')
    a('v_add_u32 v3, v3, v4')
    a('v_cmp_gt_u32 vcc, 8, v1')
    a('v_mov_b32 v4, 99')
    a('v_cndmask_b32 v3, v4, v3, vcc')
    a('v_mov_b32 v8, 0x3f80')
    a('v_mov_b32 v9, 0x3f800000')
    a('v_mov_b32 v10, 0')
    for k in range(4):
        a('v_cmp_eq_u32 vcc, %d, v3' % (2 * k))
        a('v_cndmask_b32 v4, v10, v8, vcc')
        a('v_cmp_eq_u32 vcc, %d, v3' % (2 * k + 1))
        a('v_cndmask_b32 %s, v4, v9, vcc' % vr(V_SEL + k))
    a('s_lshl_b32 s%d, s%d, 4' % (S_T, S_WV))
    a('s_mov_b64 s[%d:%d], 0xffff' % (S_KMX, S_KMX + 1))
    a('s_lshl_b64 s[%d:%d], s[%d:%d], s%d' % (S_KMX, S_KMX + 1, S_KMX, S_KMX + 1, S_T))
    for par in range(2):
        for u in range(4):
            a('s_mov_b32 s%d, 0x%x' % (S_H1ST + par * 4 + u, H1_OFF + par * 262144 + u * 65536))
        for it in range(2):
            a('s_mov_b32 s%d, 0x%x' % (S_H1LD + par * 2 + it, H1_OFF + par * 262144 + it * 4096))
        a('s_mov_b32 s%d, 0x%x' % (S_H2 + par, H2_OFF + par * 8192))
    a('s_mov_b32 s%d, 0x00003f80' % S_ONELO)
    a('s_mov_b32 s%d, 0x3f800000' % S_ONEHI)
    a('s_mov_b32 s%d, 0x000f000f' % S_STMASK)
    a('s_mov_b32 s%d, 0' % (S_STMASK + 1))
    a('s_mov_b32 s%d, 0x%x' % (S_C, f32bits(SCALE_LOG2E)))
    a('s_mov_b32 s%d, 0' % S_HI32)
    a('s_mov_b32 s%d, -1' % (S_HI32 + 1))
    a('v_and_b32 v60, 15, v0')
    a('v_lshrrev_b32 v61, 4, v0')
    a('v_lshlrev_b32 v62, 4, v60')
    a('v_lshl_add_u32 v63, v61, 13, v62')
    a('s_lshl_b32 s%d, s%d, 8' % (S_T, S_H))
    a('v_add_u32 v63, s%d, v63' % S_T)
    a('v_lshl_add_u32 v64, v61, 10, v62')
    a('s_lshl_b32 s%d, s%d, 17' % (S_T, S_H))
    a('v_add_u32 v64, s%d, v64' % S_T)
    a('v_lshl_add_u32 v65, v61, 8, v62')
    a('v_add_u32 v65, %d, v65' % L_STG)
    a('v_lshl_add_u32 v3, v2, 3, v5')
    a('v_lshlrev_b32 v3, 8, v3')
    a('v_lshl_add_u32 v3, v6, 3, v3')
    a('s_lshl_b32 s%d, s%d, 6' % (S_T, S_WV))
    a('s_add_u32 s%d, s%d, %d' % (S_T, S_T, L_STG))
    a('v_add_u32 v66, s%d, v3' % S_T)
    a('s_lshl_b32 s%d, s%d, 5' % (S_T, S_WV))
    a('s_add_u32 s%d, s%d, %d' % (S_T, S_T, L_STG))
    a('v_add_u32 v67, s%d, v3' % S_T)
    for i, m in enumerate((2, 3, 4, 5)):
        build_srd(a, 76 + 4 * i, P(m), 4194304)
    build_srd(a, S_W, P(1), 8192)
    chunks = []
    for m in range(3):
        for t in range(8):
            chunks.append((m, t, 0))
    for t2 in range(2):
        for cb in range(4):
            chunks.append((3, t2, cb))
    def issue_loads(ci):
        m, t, cb = chunks[ci]
        base = 8 + (ci % 3) * 16
        for i in range(4):
            if m < 3:
                off = (64 * t + 16 * i) * 8192
                a('s_mov_b32 s%d, 0x%x' % (S_T, off))
                a('buffer_load_dwordx4 %s, v63, s[%d:%d], s%d offen' % (vr(base + 4 * i, 4), 76 + 4 * m, 79 + 4 * m, S_T))
            else:
                off = (64 * t + 16 * i) * 1024 + cb * 256
                a('s_mov_b32 s%d, 0x%x' % (S_T, off))
                a('buffer_load_dwordx4 %s, v64, s[88:91], s%d offen' % (vr(base + 4 * i, 4), S_T))
    issue_loads(0); issue_loads(1)
    for ci, (m, t, cb) in enumerate(chunks):
        if ci + 2 < len(chunks):
            issue_loads(ci + 2)
            a('s_waitcnt vmcnt(8)')
        elif ci + 1 < len(chunks):
            a('s_waitcnt vmcnt(4)')
        else:
            a('s_waitcnt vmcnt(0)')
        base = 8 + (ci % 3) * 16
        sb = (ci % 2) * 16384
        for i in range(4):
            a('ds_write_b128 v65, %s offset:%d' % (vr(base + 4 * i, 4), sb + i * 4096))
        a('s_waitcnt lgkmcnt(0)')
        a('s_barrier')
        for u in range(2):
            if m == 0:
                dst = lambda k: ar((u * 8 + t) * 8 + k, 2)
                colo = 32 * u; addr = 'v66'
            elif m < 3:
                if u == 0:
                    dst = lambda k: ar(64 + 64 * m + t * 8 + k, 2)
                else:
                    dst = lambda k: vr(68 + k, 2)
                colo = 32 * u; addr = 'v66'
            else:
                dst = lambda k: vr(WO + ((2 * cb + u) * 2 + t) * 8 + k, 2)
                colo = 32 * u; addr = 'v66'
            for k, ro in enumerate((0, 4, 32, 36)):
                a('ds_read_b64_tr_b16 %s, %s offset:%d' % (dst(2 * k), addr, sb + ro * 256 + colo))
        if m in (1, 2):
            a('s_waitcnt lgkmcnt(0)')
            for hh in range(2):
                a('ds_write_b128 %s, %s offset:%d' % (vr(V_WVA), vr(68 + 4 * hh, 4), ((m - 1) * 8 + t) * 2048 + hh * 1024))
    a('s_waitcnt lgkmcnt(0)')
    a('s_barrier')
    a('s_lshl_b32 s%d, s%d, 13' % (S_KXP, S_H))
    a('s_add_u32 s%d, s%d, 0x%x' % (S_VXP, S_KXP, VX_OFF))
    a('s_lshl_b32 s%d, s%d, 12' % (S_KM, S_H))
    a('s_lshl_b32 s%d, s%d, 10' % (S_T, S_WV))
    a('s_add_u32 s%d, s%d, s%d' % (S_VM, S_KM, S_T))
    a('s_add_u32 s%d, s%d, 0x%x' % (S_VM, S_VM, VM_OFF))
    a('s_add_u32 s%d, s%d, 0x%x' % (S_KM, S_KM, KM_OFF))
    a('s_lshl_b32 s%d, s%d, 11' % (S_T, S_WV))
    a('s_add_u32 s%d, s%d, %d' % (S_M0A, S_T, L_KX))
    a('s_add_u32 s%d, s%d, %d' % (S_M0B, S_T, L_KX + 8192))
    a('s_mov_b32 s%d, 0x%x' % (S_DUMP, DBG_OFF))
    a('s_mov_b32 s%d, 0' % S_STEP)
    def prefetch_ops(par):
        return [
        's_mov_b32 m0, s%d' % (S_M0A if par == 0 else S_M0B),
        's_add_u32 s%d, s%d, 0x40000' % (S_T + 2, S_KXP),
        'buffer_load_dwordx4 %s, s[%d:%d], s%d offen lds' % (vr(V_H2LD), S_WS, S_WS + 3, S_KXP),
        'buffer_load_dwordx4 %s, s[%d:%d], s%d offen offset:1024 lds' % (vr(V_H2LD), S_WS, S_WS + 3, S_KXP),
        'buffer_load_dwordx4 %s, %s, s[%d:%d], s%d offen' % (vr(VX + par * 8, 4), vr(V_H2LD), S_WS, S_WS + 3, S_VXP),
        'buffer_load_dwordx4 %s, %s, s[%d:%d], s%d offen offset:1024' % (vr(VX + par * 8 + 4, 4), vr(V_H2LD), S_WS, S_WS + 3, S_VXP),
        's_mov_b32 s%d, s%d' % (S_KXP, S_T + 2),
        's_add_u32 s%d, s%d, 0x40000' % (S_VXP, S_VXP)]
    def prefetch(par):
        for o in prefetch_ops(par): a(o)
    prefetch(0)
    R2 = VX + 8
    a('v_and_b32 v3, 1, v1')
    a('v_lshl_add_u32 v3, v5, 1, v3')
    a('v_lshlrev_b32 v3, 10, v3')
    a('v_lshl_add_u32 v3, v2, 5, v3')
    a('v_bfe_u32 v4, v1, 1, 1')
    a('v_lshl_add_u32 v3, v4, 2, v3')
    a('s_lshl_b32 s%d, s%d, 8' % (S_T, S_WV))
    a('v_add_u32 v3, s%d, v3' % S_T)
    for tt in range(2):
        for ip in range(4):
            a('buffer_load_dword %s, v3, s[%d:%d], 0 offen offset:%d' % (vr(R2 + tt * 4 + ip), S_W, S_W + 3, tt * 128 + ip * 8))
    for i in range(24):
        a('v_mov_b32 %s, 0' % vr(ACC + i))
    a('s_waitcnt vmcnt(0)')

    def stamp(k):
        if not stamps: return
        a('s_memtime s[%d:%d]' % (76 + 2 * k, 77 + 2 * k))
        if k != 8: return
        a('s_waitcnt lgkmcnt(0)')
        for kk in range(9):
            a('v_writelane_b32 %s, s%d, %d' % (vr(V_T0), 76 + 2 * kk, kk))
        a('s_lshl_b32 s%d, s%d, 2' % (S_T, S_H))
        a('s_add_u32 s%d, s%d, s%d' % (S_T, S_T, S_WV))
        a('s_lshl_b32 s%d, s%d, 6' % (S_T, S_T))
        a('s_add_u32 s%d, s%d, s%d' % (S_T, S_T, S_STEP))
        a('s_lshl_b32 s%d, s%d, 6' % (S_T, S_T))
        a('s_add_u32 s%d, s%d, 0x%x' % (S_T, S_T, STAMP_OFF))
        a('v_lshrrev_b32 %s, 2, %s' % (vr(V_T1), vr(V_L16)))
        a('s_mov_b64 exec, 0x1ff')
        a('buffer_store_dword %s, %s, s[%d:%d], s%d offen' % (vr(V_T0), vr(V_T1), S_WS, S_WS + 3, S_T))
        a('s_mov_b64 exec, -1')

    Q0, Q1, K0, K1, V0, V1 = [ACC + 4 * i for i in range(6)]
    T, T1 = V_T0, V_T1
    lds_n = [0]
    last_blocks = []
    def L(text):
        a(text); lds_n[0] += 1
        return lds_n[0] - 1
    lds_done = [-1]
    def LW(idx):
        if idx <= lds_done[0]:
            return
        n = lds_n[0] - idx - 1
        n = min(n, 14)
        idx = lds_n[0] - n - 1
        a('s_waitcnt lgkmcnt(%d)' % n)
        lds_done[0] = idx
    def poll(tag, R, loads, k=PK):
        a('s_mov_b32 s%d, 0x100000' % S_CNT)
        for i in range(k):
            for o in loads: a(o)
            if i < k - 1:
                a('s_nop 15')
                if PGAP > 1: a('s_nop 15')
        a('%s_%s:' % (name, tag))
        a('s_waitcnt vmcnt(%d)' % (2 * (k - 1)))
        a('v_max3_u32 %s, %s, %s, %s' % (vr(T), vr(R), vr(R + 1), vr(R + 2)))
        a('v_max3_u32 %s, %s, %s, %s' % (vr(T1), vr(R + 3), vr(R + 4), vr(R + 5)))
        a('v_max3_u32 %s, %s, %s, %s' % (vr(T), vr(R + 6), vr(R + 7), vr(T)))
        a('v_max_u32 %s, %s, %s' % (vr(T), vr(T), vr(T1)))
        a('v_cmp_eq_u32 vcc, -1, %s' % vr(T))
        a('s_cbranch_vccz %s_%sdone' % (name, tag))
        if PMASK: a('s_mov_b64 exec, vcc')
        for o in loads: a(o)
        a('s_sub_u32 s%d, s%d, 1' % (S_CNT, S_CNT))
        a('s_cbranch_scc0 %s_%s' % (name, tag))
        a('%s_%sdone:' % (name, tag))
        if PMASK: a('s_mov_b64 exec, -1')
    def step(par):
        fill = []
        def pop(n):
            for _ in range(n):
                if fill:
                    f = fill.pop(0)
                    if callable(f): f()
                    else: a(f)
        def smf(acc, t, breg):
            a('v_smfmac_f32_16x16x64_bf16 %s, %s, %s, %s' % (vr(acc, 4), vr(AF + 4 * t, 4), breg, vr(V_IDX)))
        frag_id = {}
        order = [0]
        def frag_ops(p):
            slot = WVS + (p % 4) * 8
            n = order[p] if p < 8 else p
            def r0(): L('ds_read_b128 %s, %s offset:%d' % (vr(slot, 4), vr(V_WVA), n * 2048))
            def r1(): frag_id[p] = L('ds_read_b128 %s, %s offset:%d' % (vr(slot + 4, 4), vr(V_WVA), n * 2048 + 1024))
            return [r0, r1]
        def slot_reg(p): return vr(WVS + (p % 4) * 8, 8)
        qkw_id = [None]
        def post_qk(Qr, Kr, tt):
            ops = []
            ops.append('v_add_f32 %s, %s, %s' % (vr(Kr), vr(Kr), vr(Kr + 2)))
            ops.append('v_add_f32 %s, %s, %s' % (vr(Kr + 1), vr(Kr + 1), vr(Kr + 3)))
            ops.append('v_add_f32 %s, %s, %s' % (vr(Qr), vr(Qr), vr(Qr + 2)))
            ops.append('v_add_f32 %s, %s, %s' % (vr(Qr + 1), vr(Qr + 1), vr(Qr + 3)))
            ops.append('v_cvt_pk_bf16_f32 %s, %s, %s' % (vr(Kr), vr(Kr), vr(Kr + 1)))
            ops.append('v_cvt_pk_bf16_f32 %s, %s, %s' % (vr(Kr + 1), vr(Qr), vr(Qr + 1)))
            def wr(): qkw_id[0] = L('ds_write_b64 %s, %s offset:%d' % (vr(V_QKW), vr(Kr, 2), tt * 512))
            ops.append(wr)
            return ops
        a('%s_top%d:' % (name, par))
        for w in range(1, 4):
            a('s_cmp_eq_u32 s%d, %d' % (S_WV, w))
            a('s_cbranch_scc1 %s_var%d_%d' % (name, w, par))
        base_n, base_done = lds_n[0], lds_done[0]
        for w in range(4):
            lds_n[0], lds_done[0] = base_n, base_done
            a('%s_var%d_%d:' % (name, w, par))
            own = [2 * w, 2 * w + 1]
            oth = [t for t in range(8) if t not in own]
            order[:] = own + oth
            RR = AF + 8 * w
            for p in range(4):
                for f in frag_ops(p): f()
            if par == 0:
                a('s_cmp_eq_u32 s%d, 0' % S_STEP)
                a('s_cbranch_scc1 %s_m0_%d' % (name, w))
            poll('p2_%d_%d' % (par, w), RR, [
                'buffer_load_dwordx4 %s, %s, s[%d:%d], s%d offen sc1' % (vr(RR, 4), vr(V_H2LD), S_WS, S_WS + 3, S_H2 + par),
                'buffer_load_dwordx4 %s, %s, s[%d:%d], s%d offen offset:1024 sc1' % (vr(RR + 4, 4), vr(V_H2LD), S_WS, S_WS + 3, S_H2 + par)])
            if par == 0:
                a('s_branch %s_m0done_%d' % (name, w))
                a('%s_m0_%d:' % (name, w))
                for i in range(4):
                    a('v_mov_b64 %s, %s' % (vr(RR + 2 * i, 2), vr(VX + 8 + 2 * i, 2)))
                a('%s_m0done_%d:' % (name, w))
            stamp(0)
            L('ds_write_b128 %s, %s offset:%d' % (vr(V_H2LD), vr(RR, 4), L_EX))
            wid = L('ds_write_b128 %s, %s offset:%d' % (vr(V_H2LD), vr(RR + 4, 4), L_EX + 1024))
            if dump:
                a('s_cmp_lg_u32 s%d, 0' % S_H)
                a('s_cbranch_scc1 %s_nodump_%d_%d' % (name, par, w))
                a('buffer_store_dwordx4 %s, %s, s[%d:%d], s%d offen' % (vr(RR, 4), vr(V_H2LD), S_WS, S_WS + 3, S_DUMP))
                a('buffer_store_dwordx4 %s, %s, s[%d:%d], s%d offen offset:1024' % (vr(RR + 4, 4), vr(V_H2LD), S_WS, S_WS + 3, S_DUMP))
                a('s_waitcnt vmcnt(0)')
                a('%s_nodump_%d_%d:' % (name, par, w))
                a('s_add_u32 s%d, s%d, 8192' % (S_DUMP, S_DUMP))
            def quad(t, p):
                smf(Q0, t, ar(t * 8, 8))
                smf(K0, t, ar(128 + t * 8, 8))
                smf(Q1, t, ar(64 + t * 8, 8))
                LW(frag_id[p])
                smf(K1, t, slot_reg(p))
            quad(own[0], 0)
            LW(wid)
            a('s_barrier')
            af_id = {}
            for t in oth:
                af_id[t] = L('ds_read_b128 %s, %s offset:%d' % (vr(AF + 4 * t, 4), vr(V_L16), L_EX + 1024 * t))
            quad(own[1], 1)
            for p in (4, 5):
                fill.extend(frag_ops(p))
            fill.extend(prefetch_ops(par ^ 1))
            for t in oth:
                LW(af_id[t])
                smf(Q0, t, ar(t * 8, 8))
                pop(2)
                smf(K0, t, ar(128 + t * 8, 8))
                pop(2)
            pop(99)
            for i, t in enumerate(oth):
                p = 2 + i
                smf(Q1, t, ar(64 + t * 8, 8))
                if i == 2:
                    fill.extend(post_qk(Q0, K0, 0))
                pop(2)
                LW(frag_id[p])
                smf(K1, t, slot_reg(p))
                for f in frag_ops(p + 4): f()
            pop(99)
            if w < 3:
                a('s_branch %s_join_%d' % (name, par))
        a('%s_join_%d:' % (name, par))
        stamp(1)
        kx_id = {}
        def kxr(j): kx_id[j] = L('ds_read_b128 %s, %s offset:%d' % (vr(AF + 4 * j, 4), vr(V_L16), L_KX + par * 8192 + 1024 * j))
        def vpair(t, npop=0):
            smf(V0, t, ar(192 + t * 8, 8))
            pop(npop)
            LW(frag_id[8 + t])
            smf(V1, t, slot_reg(8 + t))
            if t + 4 < 8:
                for f in frag_ops(8 + t + 4): f()
            kxr(t)
            pop(npop)
        vpair(0)
        for o in post_qk(Q1, K1, 1):
            if callable(o): o()
            else: a(o)
        vpair(1)
        smf(V0, 2, ar(192 + 2 * 8, 8))
        LW(qkw_id[0])
        a('s_barrier')
        F = ACC
        f_id = []
        for es in range(4):
            L('ds_read_b64_tr_b16 %s, %s offset:%d' % (vr(F + 4 * es, 2), vr(V_FTR), es * 1024))
            f_id.append(L('ds_read_b64_tr_b16 %s, %s offset:%d' % (vr(F + 4 * es + 2, 2), vr(V_FTR), es * 1024 + 512)))
        LW(frag_id[8 + 2])
        smf(V1, 2, slot_reg(8 + 2))
        for f in frag_ops(8 + 2 + 4): f()
        kxr(2)
        for t in range(3, 8):
            vpair(t)
        stamp(2)
        SM, SX0, SX1 = WVS, WVS + 4, WVS + 8
        VM = WVS + 24
        def smm(acc, areg, es):
            c = '0' if es == 0 else vr(acc, 4)
            a('v_mfma_f32_16x16x32_bf16 %s, %s, %s, %s' % (vr(acc, 4), areg, vr(F + 4 * es, 4), c))
        LW(max(f_id[3], kx_id[3]))
        exn = [0]
        def exports():
            exn[0] += 1
            tg = '%s_ex%d_%d' % (name, par, exn[0])
            for w in range(1, 4):
                a('s_cmp_eq_u32 s%d, %d' % (S_WV, w))
                a('s_cbranch_scc1 %s_%d' % (tg, w))
            for w in range(4):
                a('%s_%d:' % (tg, w))
                a('buffer_store_dwordx4 %s, %s, s[%d:%d], s%d offen offset:%d' % (vr(F + 4 * w, 4), vr(V_L16), S_WS, S_WS + 3, S_KM, w * 1024))
                if w < 3: a('s_branch %s_e' % tg)
            a('%s_e:' % tg)
            a('buffer_store_dwordx4 %s, %s, s[%d:%d], s%d offen' % (vr(VM, 4), vr(V_L16), S_WS, S_WS + 3, S_VM))
            a('s_add_u32 s%d, s%d, 0x20000' % (S_KM, S_KM))
            a('s_add_u32 s%d, s%d, 0x20000' % (S_VM, S_VM))
        for es in range(4):
            smm(SM, vr(F + 4 * es, 4), es)
            smm(SX0, vr(AF + 4 * es, 4), es)
            if es == 2:
                for i in range(4):
                    a('v_cvt_pk_bf16_f32 %s, %s, %s' % (vr(VM + i), vr(V0 + 2 * i), vr(V0 + 2 * i + 1)))
        LW(kx_id[7])
        for es in range(4):
            smm(SX1, vr(AF + 4 * (4 + es), 4), es)
            if es == 0:
                exports()
            if es == 1:
                a('s_cmp_eq_u32 s%d, %d' % (S_STEP, nsteps - 1))
                a('s_cbranch_scc1 %s_done' % name)
            if es == 2:
                a('v_max3_f32 %s, %s, %s, %s' % (vr(T), vr(SX0), vr(SX0 + 1), vr(SX0 + 2)))
                a('v_max3_f32 %s, %s, %s, %s' % (vr(T1), vr(SX0 + 3), vr(SM), vr(SM + 1)))
        stamp(3)
        for i in range(8):
            a('v_mov_b64 %s, 0' % vr(AF + 2 * i, 2))
        a('v_max3_f32 %s, %s, %s, %s' % (vr(T1), vr(SX1), vr(SX1 + 1), vr(T1)))
        a('v_max3_f32 %s, %s, %s, %s' % (vr(T), vr(SX1 + 2), vr(SX1 + 3), vr(T)))
        a('v_max_f32 %s, %s, %s' % (vr(T), vr(T), vr(T1)))
        a('v_mov_b32 %s, %s' % (vr(T1), vr(T)))
        a('v_mov_b64 %s, 0' % vr(AF + 16, 2))
        a('v_mov_b64 %s, 0' % vr(AF + 18, 2))
        a('v_permlane32_swap_b32 %s, %s' % (vr(T), vr(T1)))
        a('v_max_f32 %s, %s, %s' % (vr(T), vr(T), vr(T1)))
        a('v_mov_b32 %s, %s' % (vr(T1), vr(T)))
        a('v_mov_b64 %s, 0' % vr(AF + 20, 2))
        a('v_mov_b64 %s, 0' % vr(AF + 22, 2))
        a('v_permlane16_swap_b32 %s, %s' % (vr(T), vr(T1)))
        a('v_max_f32 %s, %s, %s' % (vr(T), vr(T), vr(T1)))
        a('v_mul_f32 %s, s%d, %s' % (vr(T), S_C, vr(T)))
        PX = WVS + 28; PM = WVS + 2
        LS, O0, O1 = WVS + 12, WVS + 16, WVS + 20
        for i in range(2):
            a('v_fma_f32 %s, %s, s%d, -%s' % (vr(SM + i), vr(SM + i), S_C, vr(T)))
        for i in range(2):
            a('v_exp_f32 %s, %s' % (vr(SM + i), vr(SM + i)))
        for i in range(4, 12):
            a('v_fma_f32 %s, %s, s%d, -%s' % (vr(WVS + i), vr(WVS + i), S_C, vr(T)))
        a('v_cvt_pk_bf16_f32 %s, %s, %s' % (vr(PM), vr(SM), vr(SM + 1)))
        a('v_cvt_pk_bf16_f32 %s, %s, %s' % (vr(PM + 1), vr(SM), vr(SM + 1)))
        a('v_exp_f32 %s, %s' % (vr(WVS + 4), vr(WVS + 4)))
        a('v_exp_f32 %s, %s' % (vr(WVS + 5), vr(WVS + 5)))
        a('v_mfma_f32_16x16x16_bf16 %s, %s, %s, 0' % (vr(LS, 4), vr(PM, 2), vr(V_HONES, 2)))
        a('v_exp_f32 %s, %s' % (vr(WVS + 6), vr(WVS + 6)))
        a('v_exp_f32 %s, %s' % (vr(WVS + 7), vr(WVS + 7)))
        a('v_mfma_f32_16x16x16_bf16 %s, %s, %s, 0' % (vr(O0, 4), vr(PM, 2), vr(VM, 2)))
        a('v_exp_f32 %s, %s' % (vr(WVS + 8), vr(WVS + 8)))
        a('v_exp_f32 %s, %s' % (vr(WVS + 9), vr(WVS + 9)))
        a('v_mfma_f32_16x16x16_bf16 %s, %s, %s, 0' % (vr(O1, 4), vr(PM, 2), vr(VM + 2, 2)))
        a('v_exp_f32 %s, %s' % (vr(WVS + 10), vr(WVS + 10)))
        a('v_exp_f32 %s, %s' % (vr(WVS + 11), vr(WVS + 11)))
        a('v_cvt_pk_bf16_f32 %s, %s, %s' % (vr(PX), vr(SX0), vr(SX0 + 1)))
        a('v_cvt_pk_bf16_f32 %s, %s, %s' % (vr(PX + 1), vr(SX0 + 2), vr(SX0 + 3)))
        a('v_cvt_pk_bf16_f32 %s, %s, %s' % (vr(PX + 2), vr(SX1), vr(SX1 + 1)))
        a('v_cvt_pk_bf16_f32 %s, %s, %s' % (vr(PX + 3), vr(SX1 + 2), vr(SX1 + 3)))
        stamp(4)
        a('v_mov_b64 %s, 0' % vr(AF + 24, 2))
        a('v_mov_b64 %s, 0' % vr(AF + 26, 2))
        a('v_mfma_f32_16x16x32_bf16 %s, %s, %s, %s' % (vr(LS, 4), vr(PX, 4), vr(V_ONES, 4), vr(LS, 4)))
        a('v_mov_b64 %s, 0' % vr(AF + 28, 2))
        a('v_mov_b64 %s, 0' % vr(AF + 30, 2))
        a('v_mfma_f32_16x16x32_bf16 %s, %s, %s, %s' % (vr(O0, 4), vr(PX, 4), vr(VX + par * 8, 4), vr(O0, 4)))
        a('v_mfma_f32_16x16x32_bf16 %s, %s, %s, %s' % (vr(O1, 4), vr(PX, 4), vr(VX + par * 8 + 4, 4), vr(O1, 4)))
        for i in range(2, 4):
            a('v_rcp_f32 %s, %s' % (vr(LS + i), vr(LS + i)))
        for tt, O in enumerate((O0, O1)):
            for i in range(2, 4):
                a('v_mul_f32 %s, %s, %s' % (vr(O + i), vr(O + i), vr(LS + i)))
            a('v_cvt_pk_bf16_f32 %s, %s, %s' % (vr(O), vr(O + 2), vr(O + 3)))
            L('ds_write_b32 %s, %s offset:%d' % (vr(V_OW), vr(O), 256 * tt))
        a('s_waitcnt lgkmcnt(0)')
        a('s_barrier')
        OA = ACC + 16
        oa_id = []
        for t2 in range(2):
            L('ds_read_b64_tr_b16 %s, %s offset:%d' % (vr(OA + 4 * t2, 2), vr(V_OTR), t2 * 1024))
            oa_id.append(L('ds_read_b64_tr_b16 %s, %s offset:%d' % (vr(OA + 4 * t2 + 2, 2), vr(V_OTR), t2 * 1024 + 128)))
        stamp(5)
        def post_wo(u):
            A0 = AF + 8 * u; A1 = A0 + 4
            ops = []
            for A in (A0, A1):
                ops.append('v_add_f32 %s, %s, %s' % (vr(A), vr(A), vr(A + 2)))
                ops.append('v_add_f32 %s, %s, %s' % (vr(A + 1), vr(A + 1), vr(A + 3)))
            ops.append('v_cvt_pk_bf16_f32 %s, %s, %s' % (vr(A0), vr(A0), vr(A0 + 1)))
            ops.append('v_cvt_pk_bf16_f32 %s, %s, %s' % (vr(A0 + 1), vr(A1), vr(A1 + 1)))
            ops.append('buffer_store_dwordx2 %s, %s, s[%d:%d], s%d offen' % (vr(A0, 2), vr(V_H1ST), S_WS, S_WS + 3, S_H1ST + par * 4 + u))
            return ops
        LW(oa_id[0])
        for u in range(4):
            for t2 in range(2):
                if u == 0 and t2 == 1: LW(oa_id[1])
                for k in range(2):
                    tt8 = 2 * u + k
                    a('v_smfmac_f32_16x16x64_bf16 %s, %s, %s, %s' % (vr(AF + 4 * tt8, 4), vr(OA + 4 * t2, 4), vr(WO + (tt8 * 2 + t2) * 8, 8), vr(V_IDX)))
                    if t2 == 1 and k == 0 and u > 0:
                        fill.extend(post_wo(u - 1))
                    if t2 == 1:
                        pop(4)
            pop(99)
        for i in range(8, 12):
            a('v_mov_b64 %s, 0' % vr(ACC + 2 * i, 2))
        for o in post_wo(3): a(o)
        for i in range(0, 8):
            a('v_mov_b64 %s, 0' % vr(ACC + 2 * i, 2))
        R1 = WVS
        stamp(6)
        poll('p1_%d' % par, R1, [
            'buffer_load_dwordx4 %s, %s, s[%d:%d], s%d offen sc1' % (vr(R1 + 4 * it, 4), vr(V_H1LD), S_WS, S_WS + 3, S_H1LD + par * 2 + it) for it in range(2)])
        stamp(7)
        RA = WVS + 8; RB = WVS + 12; SN = WVS + 16
        a('v_mfma_f32_16x16x32_bf16 %s, %s, %s, 0' % (vr(RA, 4), vr(V_SEL, 4), vr(R1, 4)))
        a('v_mfma_f32_16x16x32_bf16 %s, %s, %s, %s' % (vr(RA, 4), vr(V_SEL, 4), vr(R1 + 4, 4), vr(RA, 4)))
        a('v_mov_b64 %s, -1' % vr(SN, 2))
        a('v_mov_b64 %s, -1' % vr(SN + 2, 2))
        a('s_add_u32 s%d, s%d, 1' % (S_STEP, S_STEP))
        for i in range(4):
            a('v_add_f32_dpp %s, %s, %s row_ror:4 row_mask:0xf bank_mask:0xf' % (vr(RB + i), vr(RA + i), vr(RA + i)))
        for i in range(4):
            a('v_add_f32_dpp %s, %s, %s row_ror:8 row_mask:0xf bank_mask:0xf' % (vr(RA + i), vr(RB + i), vr(RB + i)))
        a('s_mov_b64 exec, s[%d:%d]' % (S_STMASK, S_STMASK + 1))
        a('v_cvt_pk_bf16_f32 %s, %s, %s' % (vr(RA), vr(RA), vr(RA + 1)))
        a('v_cvt_pk_bf16_f32 %s, %s, %s' % (vr(RA + 1), vr(RA + 2), vr(RA + 3)))
        a('buffer_store_dword %s, %s, s[%d:%d], s%d offen' % (vr(RA), vr(V_H2ST), S_WS, S_WS + 3, S_H2 + (par ^ 1)))
        a('buffer_store_dword %s, %s, s[%d:%d], s%d offen offset:16' % (vr(RA + 1), vr(V_H2ST), S_WS, S_WS + 3, S_H2 + (par ^ 1)))
        a('buffer_store_dword %s, %s, s[%d:%d], s%d offen' % (vr(SN), vr(V_H2ST), S_WS, S_WS + 3, S_H2 + par))
        a('buffer_store_dword %s, %s, s[%d:%d], s%d offen offset:16' % (vr(SN), vr(V_H2ST), S_WS, S_WS + 3, S_H2 + par))
        a('s_mov_b64 exec, -1')
        for it in range(2):
            a('buffer_store_dwordx4 %s, %s, s[%d:%d], s%d offen' % (vr(SN, 4), vr(V_H1LD), S_WS, S_WS + 3, S_H1LD + par * 2 + it))
        if stamps:
            a('s_sub_u32 s%d, s%d, 1' % (S_STEP, S_STEP))
            stamp(8)
            a('s_add_u32 s%d, s%d, 1' % (S_STEP, S_STEP))
    step(0)
    step(1)
    a('s_branch %s_top0' % name)
    for par, ex in last_blocks:
        a('%s_last%d:' % (name, par))
        ex()
        a('s_branch %s_done' % name)
    a('%s_done:' % name)
    a('s_waitcnt vmcnt(0)')

def kernel_header(a, name):
    a.out.append('.globl %s' % name)
    a.out.append('.p2align 8')
    a.out.append('.type %s,@function' % name)
    a.out.append('%s:' % name)

def kernel_desc(name, vgpr=512, sgpr=102, accum=256):
    return '''.amdhsa_kernel %s
  .amdhsa_next_free_vgpr %d
  .amdhsa_next_free_sgpr %d
  .amdhsa_accum_offset %d
  .amdhsa_group_segment_fixed_size 0
  .amdhsa_kernarg_size 160
  .amdhsa_user_sgpr_count 2
  .amdhsa_user_sgpr_kernarg_segment_ptr 1
  .amdhsa_system_sgpr_workgroup_id_x 1
.end_amdhsa_kernel
''' % (name, vgpr, sgpr, accum)

def gen_init(a, name):
    kernel_header(a, name)
    a('s_cmp_ge_u32 s2, 33')
    a('s_cbranch_scc1 %s_end' % name)
    a('s_load_dwordx2 s[8:9], s[0:1], 152')
    a('s_waitcnt lgkmcnt(0)')
    build_srd(a, 4, 8, WS_BYTES)
    a('s_lshl_b32 s3, s2, 14')
    a('s_add_u32 s3, s3, 0x%x' % H1_OFF)
    a('v_lshlrev_b32 v1, 4, v0')
    for i in range(4):
        a('v_mov_b32 v%d, -1' % (4 + i))
    for i in range(4):
        a('s_add_u32 s10, s3, %d' % (i * 4096))
        a('buffer_store_dwordx4 v[4:7], v1, s[4:7], s10 offen')
    a('%s_end:' % name)
    a('s_endpgm')

def gen_chain_kernel(a, name, **kw):
    kernel_header(a, name)
    gen_role(a, name)
    a('s_cmp_gt_u32 s%d, 31' % S_H)
    a('s_cbranch_scc1 %s_exit' % name)
    gen_chain_body(a, name, **kw)
    a('%s_exit:' % name)
    a('s_endpgm')

if __name__ == '__main__':
    import sys
    a = Asm()
    hdr = '''; @launch kernel=init_kernel grid=(33,1,1) block=(256,1,1) lds=0
; @launch kernel=chain_kernel grid=(256,1,1) block=(256,1,1) lds=163840
.amdgcn_target "amdgcn-amd-amdhsa--gfx950"
.text
'''
    gen_init(a, 'init_kernel')
    gen_chain_kernel(a, 'chain_kernel', dump=('dump' in sys.argv), stamps=('stamps' in sys.argv))
    txt = hdr + a.text() + '.section .rodata,"a"\n.p2align 6\n' + kernel_desc('init_kernel', 16, 16, 16) + '.p2align 6\n' + kernel_desc('chain_kernel')
    open(sys.argv[1], 'w').write(txt)
    print('nops inserted', a.nops_inserted, 'lines', len(a.out))
```

```python
from asmgen import Asm, vr, ar, sr
from layout import *
from gen_chain import build_srd, kernel_header, kernel_desc

XROW = 1040
XBUF = 64 * XROW
G_LDS = 2 * XBUF
WSTG = XBUF

def gen_gemm_task(a, name, s_task, uid=''):
    N = name + uid
    P = lambda i: 52 + 2 * i
    S_M, S_Hh, S_TB, S_W, S_T = 12, 13, 14, 15, 16
    a('s_mul_hi_u32 s%d, s%d, 0x%x' % (S_TB, s_task, (1 << 32) // 96 + 1))
    a('s_mul_i32 s%d, s%d, 96' % (S_T, S_TB))
    a('s_sub_u32 s%d, s%d, s%d' % (S_T, s_task, S_T))
    a('s_lshr_b32 s%d, s%d, 5' % (S_M, S_T))
    a('s_and_b32 s%d, s%d, 31' % (S_Hh, S_T))
    a('v_lshrrev_b32 v1, 6, v0')
    a('v_readfirstlane_b32 s%d, v1' % S_W)
    a('v_and_b32 v2, 63, v0')
    a('s_mov_b32 s8, s%d' % P(3)); a('s_mov_b32 s9, s%d' % (P(3) + 1))
    a('s_cmp_eq_u32 s%d, 1' % S_M)
    a('s_cselect_b32 s8, s%d, s8' % P(4)); a('s_cselect_b32 s9, s%d, s9' % (P(4) + 1))
    a('s_cmp_eq_u32 s%d, 2' % S_M)
    a('s_cselect_b32 s8, s%d, s8' % P(2)); a('s_cselect_b32 s9, s%d, s9' % (P(2) + 1))
    a('s_and_b32 s9, s9, 0xffff')
    a('s_mov_b32 s10, 0x400000')
    a('s_mov_b32 s11, 0x00020000')
    build_srd(a, 20, P(0), 2097152)
    a('v_and_b32 v106, 15, v0')
    a('v_lshrrev_b32 v107, 4, v0')
    a('v_lshlrev_b32 v108, 4, v106')
    a('v_lshl_add_u32 v109, v107, 13, v108')
    a('s_lshl_b32 s%d, s%d, 8' % (S_T, S_Hh))
    a('v_add_u32 v109, s%d, v109' % S_T)
    a('v_lshl_add_u32 v104, v107, 8, v108')
    a('v_add_u32 v104, %d, v104' % WSTG)
    a('v_lshrrev_b32 v3, 5, v2')
    a('v_bfe_u32 v4, v2, 2, 2')
    a('v_lshl_add_u32 v3, v3, 3, v4')
    a('v_lshlrev_b32 v3, 8, v3')
    a('v_bfe_u32 v4, v2, 4, 1')
    a('v_lshl_add_u32 v3, v4, 5, v3')
    a('v_and_b32 v4, 3, v2')
    a('v_lshl_add_u32 v3, v4, 3, v3')
    a('s_and_b32 s%d, s%d, 1' % (S_T, S_W))
    a('s_lshl_b32 s%d, s%d, 7' % (S_T, S_T))
    a('s_add_u32 s%d, s%d, %d' % (S_T, S_T, WSTG))
    a('v_add_u32 v105, s%d, v3' % S_T)
    a('v_and_b32 v3, 31, v2')
    a('s_lshr_b32 s%d, s%d, 1' % (S_T, S_W))
    a('s_lshl_b32 s%d, s%d, 5' % (S_T, S_T))
    a('v_add_u32 v3, s%d, v3' % S_T)
    a('v_mul_u32_u24 v3, %d, v3' % XROW)
    a('v_lshrrev_b32 v4, 5, v2')
    a('v_lshl_add_u32 v103, v4, 4, v3')
    a('v_add_u32 v101, %d, v103' % XBUF)
    a('v_lshlrev_b32 v102, 4, v2')
    a('v_and_b32 v3, 15, v2')
    a('v_lshl_add_u32 v3, v4, 4, v3')
    a('v_lshlrev_b32 v3, 4, v3')
    a('v_bfe_u32 v4, v2, 4, 1')
    a('s_cmp_eq_u32 s%d, 1' % S_M)
    a('s_cselect_b32 s%d, 10, 12' % S_T)
    a('v_lshlrev_b32 v4, s%d, v4' % S_T)
    a('v_add_u32 v100, v3, v4')
    a('s_mov_b32 s24, 0x%x' % KX_OFF)
    a('s_mov_b32 s25, 1024')
    a('s_cmp_eq_u32 s%d, 1' % S_M)
    a('s_cselect_b32 s24, 0x%x, s24' % VX_OFF)
    a('s_cselect_b32 s25, 2048, s25')
    a('s_cmp_eq_u32 s%d, 2' % S_M)
    a('s_cselect_b32 s24, 0x%x, s24' % QX_OFF)
    a('s_lshl_b32 s%d, s%d, 3' % (S_T, S_TB))
    a('s_lshr_b32 s%d, s%d, 1' % (S_T + 1, S_W))
    a('s_add_u32 s%d, s%d, s%d' % (S_T, S_T, S_T + 1))
    a('s_lshl_b32 s%d, s%d, 5' % (S_T, S_T))
    a('s_add_u32 s%d, s%d, s%d' % (S_T, S_T, S_Hh))
    a('s_lshl_b32 s%d, s%d, 13' % (S_T, S_T))
    a('s_add_u32 s24, s24, s%d' % S_T)
    a('s_and_b32 s%d, s%d, 1' % (S_T, S_W))
    a('s_lshl_b32 s%d, s%d, 1' % (S_T, S_T))
    a('s_mul_i32 s%d, s%d, s25' % (S_T, S_T))
    a('s_add_u32 s24, s24, s%d' % S_T)
    a('s_add_u32 s26, s24, s25')
    a('s_lshl_b32 s27, s%d, 18' % S_TB)
    a('s_lshl_b32 s%d, s%d, 14' % (S_T, S_W))
    a('s_add_u32 s27, s27, s%d' % S_T)
    a('s_mul_i32 s28, s%d, %d' % (S_W, 16 * XROW))
    def dma_tile(buf):
        for i in range(16):
            a('s_add_u32 m0, s28, %d' % (buf * XBUF + i * XROW))
            a('s_add_u32 s%d, s27, %d' % (S_T, i * 1024))
            a('buffer_load_dwordx4 v102, s[20:23], s%d offen lds' % S_T)
        a('s_add_u32 s27, s27, 65536')
    a('s_barrier')
    dma_tile(0)
    def issue_loads(ci):
        base = 8 + (ci % 3) * 16
        for i in range(4):
            a('s_mov_b32 s%d, 0x%x' % (S_T, (64 * ci + 16 * i) * 8192))
            a('buffer_load_dwordx4 %s, v109, s[8:11], s%d offen' % (vr(base + 4 * i, 4), S_T))
    issue_loads(0); issue_loads(1)
    for ci in range(8):
        if ci + 2 < 8:
            issue_loads(ci + 2); a('s_waitcnt vmcnt(8)')
        elif ci + 1 < 8:
            a('s_waitcnt vmcnt(4)')
        else:
            a('s_waitcnt vmcnt(0)')
        base = 8 + (ci % 3) * 16
        sb = (ci % 2) * 16384
        for i in range(4):
            a('ds_write_b128 v104, %s offset:%d' % (vr(base + 4 * i, 4), sb + i * 4096))
        a('s_waitcnt lgkmcnt(0)')
        a('s_barrier')
        for ct in range(2):
            for kk in range(4):
                for q in range(2):
                    a('ds_read_b64_tr_b16 %s, v105 offset:%d' % (ar((ct * 32 + ci * 4 + kk) * 4 + 2 * q, 2), sb + (16 * kk + 4 * q) * 256 + ct * 64))
    a('s_waitcnt lgkmcnt(0)')
    a('s_barrier')
    a('s_cmp_eq_u32 s%d, 1' % S_M)
    a('s_cbranch_scc1 %s_vpath' % N)
    for path in range(2):
        if path == 1:
            a('%s_vpath:' % N)
        for tile in range(4):
            buf = tile % 2
            xa = 'v103' if buf == 0 else 'v101'
            a('s_waitcnt vmcnt(0)')
            a('s_barrier')
            if tile + 1 < 4:
                dma_tile(buf ^ 1)
            NS = 8
            for ks in range(NS):
                a('ds_read_b128 %s, %s offset:%d' % (vr(32 + 4 * (ks % NS), 4), xa, ks * 32))
            for ks in range(32):
                a('s_waitcnt lgkmcnt(%d)' % min(NS - 1, 31 - ks))
                xf = vr(32 + 4 * (ks % NS), 4)
                for ct in range(2):
                    wf = ar((ct * 32 + ks) * 4, 4)
                    c = '0' if ks == 0 else vr(16 * ct, 16)
                    if path == 0:
                        a('v_mfma_f32_32x32x16_bf16 %s, %s, %s, %s' % (vr(16 * ct, 16), wf, xf, c))
                    else:
                        a('v_mfma_f32_32x32x16_bf16 %s, %s, %s, %s' % (vr(16 * ct, 16), xf, wf, c))
                if ks + NS < 32:
                    a('ds_read_b128 %s, %s offset:%d' % (xf, xa, (ks + NS) * 32))
            for ct in range(2):
                b = 16 * ct
                o = 112 + 8 * ct
                for ch in range(2):
                    a('v_cvt_pk_bf16_f32 %s, %s, %s' % (vr(o + 4 * ch), vr(b + 4 * ch), vr(b + 4 * ch + 1)))
                    a('v_cvt_pk_bf16_f32 %s, %s, %s' % (vr(o + 4 * ch + 1), vr(b + 4 * ch + 2), vr(b + 4 * ch + 3)))
                    a('v_cvt_pk_bf16_f32 %s, %s, %s' % (vr(o + 4 * ch + 2), vr(b + 8 + 4 * ch), vr(b + 8 + 4 * ch + 1)))
                    a('v_cvt_pk_bf16_f32 %s, %s, %s' % (vr(o + 4 * ch + 3), vr(b + 8 + 4 * ch + 2), vr(b + 8 + 4 * ch + 3)))
                    a('buffer_store_dwordx4 %s, v100, s[4:7], s%d offen offset:%d' % (vr(o + 4 * ch, 4), 24 if ct == 0 else 26, 512 * ch))
            a('s_add_u32 s24, s24, 0x80000')
            a('s_add_u32 s26, s26, 0x80000')
        if path == 0:
            a('s_branch %s_end' % N)
    a('%s_end:' % N)

def load_ptrs(a):
    a('s_load_dwordx16 s[52:67], s[0:1], 0')
    a('s_load_dwordx2 s[50:51], s[0:1], 152')
    a('s_waitcnt lgkmcnt(0)')
    build_srd(a, 4, 50, WS_BYTES)

def gen_gemm_kernel(a, name):
    kernel_header(a, name)
    a('s_cmp_ge_u32 s2, 768')
    a('s_cbranch_scc1 %s_exit' % name)
    load_ptrs(a)
    a('s_cmp_ge_u32 s2, 33')
    a('s_cbranch_scc1 %s_noinit' % name)
    a('s_lshl_b32 s3, s2, 14')
    a('s_add_u32 s3, s3, 0x%x' % H1_OFF)
    a('v_lshlrev_b32 v1, 4, v0')
    for i in range(4):
        a('v_mov_b32 v%d, -1' % (4 + i))
    for i in range(4):
        a('s_add_u32 s10, s3, %d' % (i * 4096))
        a('buffer_store_dwordx4 v[4:7], v1, s[4:7], s10 offen')
    a('%s_noinit:' % name)
    a('s_mov_b32 s49, s2')
    gen_gemm_task(a, name, 49)
    a('%s_exit:' % name)
    a('s_endpgm')

if __name__ == '__main__':
    import sys
    a = Asm()
    hdr = '''; @launch kernel=gemm_kernel grid=(768,1,1) block=(256,1,1) lds=%d
.amdgcn_target "amdgcn-amd-amdhsa--gfx950"
.text
''' % G_LDS
    gen_gemm_kernel(a, 'gemm_kernel')
    txt = hdr + a.text() + '.section .rodata,"a"\n.p2align 6\n' + kernel_desc('gemm_kernel', 384, 102, 128)
    open(sys.argv[1], 'w').write(txt)
    print('nops inserted', a.nops_inserted, 'lines', len(a.out))
```

```python
from asmgen import Asm, vr, ar, sr
from layout import *
from gen_chain import build_srd, kernel_header, kernel_desc, f32bits
from gen_gemm import load_ptrs
from gen_attn import gen_simple_kernel

C_RH = 0; C_RL = 4160; C_XT = 8320; C_KT = 12928; C_YT = 15520; C_SZ = 19712
S_LDS = 2 * C_SZ
BLOCKS = [(0,1),(64,1),(128,1),(192,1),(256,2),(384,2),(512,4),(768,4),(1024,8),(1536,8),(2048,0)]

def gen_ssm_task(a, name, s_task, uid='', sc1=False):
    N = name + uid
    SC = ' sc1' if sc1 else ''
    S_W, S_T, S_CH, S_PW, S_D = 15, 16, 12, 13, 14
    a('v_lshrrev_b32 v1, 6, v0')
    a('v_readfirstlane_b32 s%d, v1' % S_W)
    a('v_and_b32 v2, 63, v0')
    a('s_lshr_b32 s%d, s%d, 1' % (S_CH, S_W))
    a('s_and_b32 s%d, s%d, 1' % (S_PW, S_W))
    a('s_lshl_b32 s%d, s%d, 1' % (S_D, s_task))
    a('s_add_u32 s%d, s%d, s%d' % (S_D, S_D, S_CH))
    a('s_load_dwordx16 s[68:83], s[0:1], 64')
    a('s_mul_i32 s20, s%d, %d' % (S_CH, C_SZ))
    build_srd(a, 8, 52, 2097152)
    a('s_waitcnt lgkmcnt(0)')
    a('s_barrier')
    a('v_lshlrev_b32 v3, 10, v0')
    a('s_lshl_b32 s%d, s%d, 2' % (S_T, s_task))
    a('v_add_u32 v3, s%d, v3' % S_T)
    for i in range(8):
        a('s_mov_b32 s%d, %d' % (S_T, i * 262144))
        a('buffer_load_dword %s, v3, s[8:11], s%d offen' % (vr(100 + i), S_T))
    a('v_lshlrev_b32 v4, 1, v2')
    a('s_lshl_b32 s%d, s%d, 8' % (S_T, S_D))
    a('v_add_u32 v4, s%d, v4' % S_T)
    for k in range(6):
        build_srd(a, 24, 68 + 2 * k, 131072)
        a('buffer_load_ushort %s, v4, s[24:27], 0 offen' % vr(10 + 2 * k))
        a('buffer_load_ushort %s, v4, s[24:27], 0 offen offset:128' % vr(11 + 2 * k))
    a('s_lshl_b32 s%d, s%d, 1' % (S_T, S_D))
    a('v_mov_b32 v5, s%d' % S_T)
    build_srd(a, 24, 80, 1024)
    a('buffer_load_ushort v22, v5, s[24:27], 0 offen')
    build_srd(a, 28, 82, 1024)
    a('buffer_load_ushort v23, v5, s[28:31], 0 offen')
    a('v_mov_b32 v6, 0')
    a('v_and_b32 v7, 127, v0')
    a('v_lshlrev_b32 v7, 2, v7')
    a('v_add_u32 v7, s20, v7')
    a('ds_write_b32 v7, v6 offset:%d' % C_XT)
    a('s_mov_b64 exec, 0xffff')
    a('v_lshlrev_b32 v8, 2, v2')
    a('v_add_u32 v8, s20, v8')
    a('ds_write_b32 v8, v6 offset:%d' % (C_RH + 4096))
    a('ds_write_b32 v8, v6 offset:%d' % (C_RL + 4096))
    a('s_mov_b64 exec, -1')
    a('v_lshlrev_b32 v9, 1, v0')
    a('s_waitcnt vmcnt(14)')
    for i in range(8):
        a('ds_write_b16 v9, %s offset:%d' % (vr(100 + i), C_XT + 512 + i * 512))
        a('ds_write_b16_d16_hi v9, %s offset:%d' % (vr(100 + i), C_SZ + C_XT + 512 + i * 512))
    a('s_waitcnt vmcnt(0)')
    for r in list(range(10, 24)):
        a('v_lshlrev_b32 %s, 16, %s' % (vr(r), vr(r)))
    a('v_mul_f32 v22, 0x3fb8aa3b, v22')
    a('v_exp_f32 v22, v22')
    a('v_cvt_pk_bf16_f32 v22, v22, v22')
    a('v_and_b32 v22, 0xffff0000, v22')
    for h in range(2):
        a('v_mul_f32 %s, v22, %s' % (vr(10 + h), vr(10 + h)))
        a('v_mul_f32 %s, 0x3fb8aa3b, %s' % (vr(10 + h), vr(10 + h)))
        a('v_mul_f32 %s, v22, %s' % (vr(12 + h), vr(12 + h)))
        a('v_mul_f32 %s, 0.15915494, %s' % (vr(12 + h), vr(12 + h)))
        a('v_mul_f32 %s, v22, %s' % (vr(14 + h), vr(14 + h)))
        a('v_mul_f32 %s, v22, %s' % (vr(16 + h), vr(16 + h)))
        a('v_mul_f32 v24, %s, %s' % (vr(18 + h), vr(14 + h)))
        a('v_mul_f32 v25, %s, %s' % (vr(18 + h), vr(16 + h)))
        a('v_fma_f32 %s, -%s, %s, v24' % (vr(26 + h), vr(20 + h), vr(16 + h)))
        a('v_fma_f32 %s, %s, %s, v25' % (vr(28 + h), vr(20 + h), vr(14 + h)))
    LV = 32; AC = 40
    a('v_cvt_f32_u32 v30, v2')
    for bi in range(6):
        b0 = BLOCKS[2 * bi]; b1 = BLOCKS[2 * bi + 1] if 2 * bi + 1 < 11 else BLOCKS[10]
        a('s_cmp_eq_u32 s%d, 0' % S_PW)
        a('s_mov_b32 s22, 0x%x' % f32bits(float(b1[0])))
        a('s_cselect_b32 s21, 0x%x, s22' % f32bits(float(b0[0])))
        a('v_mov_b32 v31, s21')
        a('v_fma_f32 %s, v30, %s, v31' % (vr(LV + bi), {0: '0', 1: '1.0', 2: '2.0', 4: '4.0'}.get(b0[1], None) or 's23') if b0[1] != 8 else 's_mov_b32 s23, 0x41000000')
        if b0[1] == 8:
            a('v_fma_f32 %s, v30, s23, v31' % vr(LV + bi))
        a('v_mov_b32 %s, 0' % vr(AC + bi))
    for h in range(2):
        a('s_mov_b32 s21, 0')
        a('%s_ml%d:' % (N, h))
        a('v_readlane_b32 s32, %s, s21' % vr(10 + h))
        a('v_readlane_b32 s33, %s, s21' % vr(12 + h))
        a('v_readlane_b32 s34, %s, s21' % vr(26 + h))
        a('v_readlane_b32 s35, %s, s21' % vr(28 + h))
        for grp in range(2):
            bs = [3 * grp, 3 * grp + 1, 3 * grp + 2]
            for k, bi in enumerate(bs):
                a('v_mul_f32 %s, s32, %s' % (vr(48 + k), vr(LV + bi)))
                a('v_mul_f32 %s, s33, %s' % (vr(52 + k), vr(LV + bi)))
            for k in range(3):
                a('v_exp_f32 %s, %s' % (vr(48 + k), vr(48 + k)))
                a('v_fract_f32 %s, %s' % (vr(52 + k), vr(52 + k)))
            for k in range(3):
                a('v_cos_f32 %s, %s' % (vr(56 + k), vr(52 + k)))
                a('v_sin_f32 %s, %s' % (vr(52 + k), vr(52 + k)))
            for k in range(3):
                a('v_mul_f32 %s, s34, %s' % (vr(56 + k), vr(56 + k)))
            for k in range(3):
                a('v_fma_f32 %s, -s35, %s, %s' % (vr(56 + k), vr(52 + k), vr(56 + k)))
            for k, bi in enumerate(bs):
                a('v_fma_f32 %s, %s, %s, %s' % (vr(AC + bi), vr(48 + k), vr(56 + k), vr(AC + bi)))
        a('s_add_u32 s21, s21, 1')
        a('s_cmp_lt_u32 s21, 64')
        a('s_cbranch_scc1 %s_ml%d' % (N, h))
    a('s_lshl_b32 s21, s%d, 8' % S_PW)
    a('s_add_u32 s21, s21, s20')
    a('v_lshlrev_b32 v8, 2, v2')
    a('v_add_u32 v8, s21, v8')
    for bi in range(5):
        a('ds_write_b32 v8, %s offset:%d' % (vr(AC + bi), C_KT + bi * 512))
    a('s_mov_b64 exec, 1')
    a('v_mov_b32 v8, s20')
    a('ds_write_b32 v8, %s offset:%d' % (vr(AC + 5), C_KT + 2560))
    a('s_mov_b64 exec, -1')
    a('s_waitcnt lgkmcnt(0)')
    a('s_barrier')
    a('v_and_b32 v7, 127, v0')
    for i in range(16):
        r = 60 + i
        a('v_add_u32 v8, %d, v7' % (128 * i))
        if i == 0:
            a('v_lshlrev_b32 v9, 2, v8')
        else:
            a('v_cvt_f32_u32 v9, v8')
            a('v_cvt_pk_bf16_f32 v9, v9, v9')
            a('v_and_b32 v9, 0xffff, v9')
            a('v_subrev_u32 v9, 17024, v9')
            a('v_lshlrev_b32 v9, 2, v9')
        a('v_add_u32 v9, s20, v9')
        a('ds_read_b32 %s, v9 offset:%d' % (vr(r), C_KT))
    a('v_lshlrev_b32 v8, 1, v7')
    a('v_sub_u32 v8, %d, v8' % (4094 - 256 * 15))
    a('v_add_u32 v8, s20, v8')
    for i in range(16):
        r = 60 + i
        a('s_waitcnt lgkmcnt(%d)' % min(15, 15 - i + 2 * i if False else 15 - i))
        a('v_cvt_pk_bf16_f32 v9, %s, %s' % (vr(r), vr(r)))
        a('v_and_b32 v10, 0xffff0000, v9')
        a('v_sub_f32 v10, %s, v10' % vr(r))
        a('v_cvt_pk_bf16_f32 %s, v10, v10' % vr(r))
        a('v_mov_b32 %s, v9' % vr(80 + i))
    for i in range(16):
        a('ds_write_b16 v8, %s offset:%d' % (vr(80 + i), C_RH + 256 * (15 - i)))
        a('ds_write_b16 v8, %s offset:%d' % (vr(60 + i), C_RL + 256 * (15 - i)))
    a('v_and_b32 v3, 15, v2')
    a('v_lshrrev_b32 v4, 4, v2')
    a('v_lshlrev_b32 v5, 4, v4')
    a('v_lshlrev_b32 v6, 1, v3')
    a('v_sub_u32 v5, v5, v6')
    a('v_add_u32 v5, %d, v5' % (4062 - 64 * 63))
    a('v_add_u32 v5, s20, v5')
    a('v_lshlrev_b32 v6, 5, v3')
    a('v_lshl_add_u32 v6, v4, 4, v6')
    a('v_add_u32 v6, %d, v6' % (C_XT + 480 - 448))
    a('v_add_u32 v6, s20, v6')
    a('v_lshlrev_b32 v7, 5, v3')
    a('v_lshl_add_u32 v7, v4, 3, v7')
    a('v_add_u32 v7, s20, v7')
    a('s_waitcnt lgkmcnt(0)')
    a('s_barrier')
    a('s_cmp_eq_u32 s%d, 1' % S_PW)
    a('s_cbranch_scc1 %s_cv1' % N)
    YA = 32; AR = 64; BR = 96
    for pw in range(2):
        if pw == 1: a('%s_cv1:' % N)
        cts = [0, 3, 4, 7] if pw == 0 else [1, 2, 5, 6]
        seq = []
        for D in range(64):
            use = [k for k, ct in enumerate(cts) if 8 * ct + 7 >= D]
            if not use: continue
            seq.append(('A', D))
            for k in use: seq.append(('B', D, k))
        n = [0]; done = [-1]; idm = {}
        def L(t):
            a(t); n[0] += 1; return n[0] - 1
        def LW(i):
            if i <= done[0]: return
            c = min(n[0] - i - 1, 14); a('s_waitcnt lgkmcnt(%d)' % c); done[0] = n[0] - c - 1
        bslot = {}; bc = [0]
        def issue(item):
            if item[0] == 'A':
                D = item[1]; r = AR + (D % 3) * 8
                L('ds_read_b128 %s, v5 offset:%d' % (vr(r, 4), C_RH + 64 * (63 - D)))
                idm[item] = L('ds_read_b128 %s, v5 offset:%d' % (vr(r + 4, 4), C_RL + 64 * (63 - D)))
            else:
                _, D, k = item
                r = BR + (bc[0] % 6) * 4; bc[0] += 1; bslot[item] = r
                idm[item] = L('ds_read_b128 %s, v6 offset:%d' % (vr(r, 4), cts[k] * 512 - D * 64 + 448))
        LA = 5
        ptr = 0
        first = set()
        cons = [x for x in seq if x[0] == 'B']
        ci = 0
        for ci, item in enumerate(cons):
            while ptr < len(seq):
                nxt = seq[ptr]
                if nxt[0] == 'B' and cons.index(nxt) > ci + LA - 1: break
                if nxt[0] == 'A' and nxt[1] > item[1] + 2: break
                issue(nxt); ptr += 1
            _, D, k = item
            LW(idm[('A', D)]); LW(idm[item])
            r = AR + (D % 3) * 8
            y = vr(YA + 4 * k, 4)
            a('v_mfma_f32_16x16x32_bf16 %s, %s, %s, %s' % (y, vr(r, 4), vr(bslot[item], 4), y if k in first else '0'))
            first.add(k)
            a('v_mfma_f32_16x16x32_bf16 %s, %s, %s, %s' % (y, vr(r + 4, 4), vr(bslot[item], 4), y))
        for k, ct in enumerate(cts):
            a('ds_read_b64 %s, v7 offset:%d' % (vr(64 + 2 * k, 2), C_XT + 512 + ct * 512))
        for k, ct in enumerate(cts):
            a('s_waitcnt lgkmcnt(%d)' % (3 - k + k if False else 3))
            a('s_waitcnt lgkmcnt(0)')
            y = YA + 4 * k
            for h2 in range(2):
                a('v_cvt_pk_bf16_f32 v80, %s, %s' % (vr(y + 2 * h2), vr(y + 2 * h2 + 1)))
                a('v_lshlrev_b32 v81, 16, %s' % vr(64 + 2 * k + h2))
                a('v_and_b32 v82, 0xffff0000, %s' % vr(64 + 2 * k + h2))
                a('v_mul_f32 v81, v81, v23')
                a('v_mul_f32 v82, v82, v23')
                a('v_cvt_pk_bf16_f32 v81, v81, v82')
                a('v_lshlrev_b32 v82, 16, v80')
                a('v_and_b32 v80, 0xffff0000, v80')
                a('v_lshlrev_b32 v83, 16, v81')
                a('v_and_b32 v81, 0xffff0000, v81')
                a('v_add_f32 v82, v82, v83')
                a('v_add_f32 v80, v80, v81')
                a('v_cvt_pk_bf16_f32 %s, v82, v80' % vr(72 + 2 * k + h2))
            a('ds_write_b64 v7, %s offset:%d' % (vr(72 + 2 * k, 2), C_YT + ct * 512))
        if pw == 0: a('s_branch %s_cvend' % N)
    a('%s_cvend:' % N)
    a('s_waitcnt lgkmcnt(0)')
    a('s_barrier')
    a('v_lshlrev_b32 v9, 1, v0')
    for i in range(8):
        a('ds_read_u16 %s, v9 offset:%d' % (vr(32 + i), C_YT + i * 512))
        a('ds_read_u16_d16_hi %s, v9 offset:%d' % (vr(40 + i), C_SZ + C_YT + i * 512))
    a('v_lshlrev_b32 v3, 10, v0')
    a('s_lshl_b32 s%d, s%d, 2' % (S_T, s_task))
    a('v_add_u32 v3, s%d, v3' % S_T)
    a('s_waitcnt lgkmcnt(0)')
    for i in range(8):
        a('v_and_b32 %s, 0xffff0000, %s' % (vr(40 + i), vr(40 + i)))
        a('v_or_b32 %s, %s, %s' % (vr(32 + i), vr(32 + i), vr(40 + i)))
        a('s_mov_b32 s%d, 0x%x' % (S_T, BOUT_OFF + i * 262144))
        a('buffer_store_dword %s, v3, s[4:7], s%d offen%s' % (vr(32 + i), S_T, SC))

if __name__ == '__main__':
    import sys
    a = Asm()
    hdr = '''; @launch kernel=ssm_kernel grid=(256,1,1) block=(256,1,1) lds=%d
.amdgcn_target "amdgcn-amd-amdhsa--gfx950"
.text
''' % S_LDS
    gen_simple_kernel(a, 'ssm_kernel', 256, gen_ssm_task)
    txt = hdr + a.text() + '.section .rodata,"a"\n.p2align 6\n' + kernel_desc('ssm_kernel', 128, 102, 128)
    open(sys.argv[1], 'w').write(txt)
    print('nops inserted', a.nops_inserted, 'lines', len(a.out))
```

```python
MB = 1 << 20
KX_OFF = 0
VX_OFF = 16 * MB
QX_OFF = 32 * MB
KM_OFF = 48 * MB
VM_OFF = 56 * MB
H1_OFF = 64 * MB
H2_OFF = 64 * MB + 512 * 1024
DBG_OFF = 65 * MB
STAMP_OFF = 66 * MB
WS_BYTES = 268435456
WOF_OFF = 72 * MB
BOUT_OFF = 80 * MB
OF_OFF = 96 * MB
FLG_OFF = 67 * MB
```

```python
import sys
from asmgen import Asm
from layout import *
import gen_chain, gen_gemm, gen_attn, gen_ssm
from gen_chain import kernel_desc

def header():
    ref = open('gated_mix__memory_aug_recurrent_mem_tr__ssm_conv_s4__prompt.s.ref').read().split('\n')
    out = []
    for l in ref:
        if l.startswith('; Override launch') : break
        out.append(l)
    return '\n'.join(out) + '\n'

a = Asm()
hdr = header() + '''; @launch kernel=gemm_kernel grid=(768,1,1) block=(256,1,1) lds=%d
; @launch kernel=wof_kernel grid=(128,1,1) block=(256,1,1) lds=34816
; @launch kernel=ssm_kernel grid=(256,1,1) block=(256,1,1) lds=%d
; @launch kernel=chain_kernel grid=(256,1,1) block=(256,1,1) lds=163840
; @launch kernel=attn_kernel grid=(256,1,1) block=(256,1,1) lds=%d
.amdgcn_target "amdgcn-amd-amdhsa--gfx950"
.text
''' % (gen_gemm.G_LDS, gen_ssm.S_LDS, gen_attn.A_LDS)
gen_gemm.gen_gemm_kernel(a, 'gemm_kernel')
gen_attn.gen_simple_kernel(a, 'wof_kernel', 128, gen_attn.gen_wof_task)
gen_attn.gen_simple_kernel(a, 'ssm_kernel', 256, gen_ssm.gen_ssm_task)
gen_chain.gen_chain_kernel(a, 'chain_kernel')
gen_attn.gen_simple_kernel(a, 'attn_kernel', 256, gen_attn.gen_attn_task)
txt = hdr + a.text() + '.section .rodata,"a"\n'
for nm, v, s, acc in [('gemm_kernel', 384, 102, 128), ('wof_kernel', 64, 102, 64), ('ssm_kernel', 128, 102, 128), ('chain_kernel', 512, 102, 256), ('attn_kernel', 416, 102, 160)]:
    txt += '.p2align 6\n' + kernel_desc(nm, v, s, acc)
open(sys.argv[1], 'w').write(txt)
print('lines', len(a.out), 'bytes', len(txt))
```

```python
def header():
    ref = open('gated_mix__memory_aug_recurrent_mem_tr__ssm_conv_s4__prompt.s.ref').read().split('\n')
    out = []
    for l in ref:
        if l.startswith('; Override launch') : break
        out.append(l)
    return '\n'.join(out) + '\n'
```

```python
from asmgen import Asm, vr, ar, sr
from layout import *
from gen_chain import build_srd, kernel_header, kernel_desc, f32bits, SCALE_LOG2E
from gen_gemm import load_ptrs

def gen_wof_task(a, name, s_task, uid='', sc1=False):
    RS = 1056
    build_srd(a, 8, 52 + 2 * 5, 4194304)
    a('v_and_b32 v2, 63, v0')
    a('v_lshrrev_b32 v1, 6, v0')
    a('v_readfirstlane_b32 s15, v1')
    a('v_lshlrev_b32 v3, 4, v2')
    a('v_lshl_add_u32 v4, v1, 10, v3')
    a('v_mul_u32_u24 v5, %d, v1' % RS)
    a('v_add_u32 v5, v5, v3')
    a('s_lshl_b32 s16, s%d, 15' % s_task)
    a('s_barrier')
    for i in range(8):
        a('s_add_u32 s17, s16, %d' % (i * 4096))
        a('buffer_load_dwordx4 %s, v4, s[8:11], s17 offen' % vr(8 + 4 * i, 4))
    for i in range(8):
        a('s_waitcnt vmcnt(%d)' % (7 - i))
        a('ds_write_b128 v5, %s offset:%d' % (vr(8 + 4 * i, 4), i * 4 * RS))
    a('v_lshrrev_b32 v6, 2, v2')
    a('v_mul_u32_u24 v6, %d, v6' % RS)
    a('v_and_b32 v7, 3, v2')
    a('v_lshl_add_u32 v6, v7, 3, v6')
    a('s_lshl_b32 s17, s15, 8')
    a('v_add_u32 v6, s17, v6')
    a('s_waitcnt lgkmcnt(0)')
    a('s_barrier')
    for k in range(8):
        a('ds_read_b64_tr_b16 %s, v6 offset:%d' % (vr(8 + 4 * k, 2), k * 32))
        a('ds_read_b64_tr_b16 %s, v6 offset:%d' % (vr(8 + 4 * k + 2, 2), k * 32 + 16 * RS))
    a('s_lshl_b32 s17, s15, 13')
    a('s_add_u32 s16, s16, s17')
    a('s_add_u32 s16, s16, 0x%x' % WOF_OFF)
    for k in range(8):
        a('s_waitcnt lgkmcnt(%d)' % (14 - 2 * k))
        if k == 4:
            a('s_add_u32 s16, s16, 4096')
        a('buffer_store_dwordx4 %s, v3, s[4:7], s16 offen offset:%d%s' % (vr(8 + 4 * k, 4), (k % 4) * 1024, ' sc1' if sc1 else ''))

A_LDS = 65536 + 256

def gen_attn_task(a, name, s_task, uid='', sc1=False):
    N = name + uid
    SC = ' sc1' if sc1 else ''
    S_S, S_CQ, S_W, S_T = 12, 13, 15, 16
    YA = 0; SA = 64; PXr = 76; PMr = 80; OAc = 84; OF = 116
    MB_ = 148; VL16 = 152; T = 153; T1 = 154; LSUM = 155; VX_ = 156
    AW = 0; AQ = 128; AK = 160; AKM = 192; AV = 208; AVM = 240
    a('s_lshr_b32 s%d, s%d, 2' % (S_S, s_task))
    a('s_and_b32 s%d, s%d, 3' % (S_CQ, s_task))
    a('v_lshrrev_b32 v1, 6, v0')
    a('v_readfirstlane_b32 s%d, v1' % S_W)
    a('v_and_b32 v2, 63, v0')
    a('v_lshlrev_b32 %s, 4, v2' % vr(VL16))
    a('s_load_dwordx2 s[28:29], s[0:1], 128')
    a('s_load_dwordx2 s[30:31], s[0:1], 136')
    build_srd(a, 8, 52, 2097152)
    a('s_mov_b32 s27, 0x%x' % f32bits(SCALE_LOG2E))
    a('s_waitcnt lgkmcnt(0)')
    build_srd(a, 20, 28, 1024)
    build_srd(a, 32, 30, 2097152)
    vm_n = [0]; vm_done = [-1]
    def V(text):
        a(text); vm_n[0] += 1; return vm_n[0] - 1
    def VW(idx):
        if idx <= vm_done[0]: return
        n = vm_n[0] - idx - 1
        assert n <= 62, n
        a('s_waitcnt vmcnt(%d)' % n); vm_done[0] = idx
    a('s_lshl_b32 s%d, s%d, 5' % (S_T, S_S))
    a('s_add_u32 s%d, s%d, s%d' % (S_T, S_T, S_W))
    a('s_lshl_b32 s36, s%d, 13' % S_T)
    a('s_add_u32 s37, s36, 0x%x' % VX_OFF)
    a('s_add_u32 s38, s36, 0x%x' % QX_OFF)
    a('s_lshl_b32 s39, s%d, 12' % S_T)
    a('s_add_u32 s40, s39, 0x%x' % VM_OFF)
    a('s_add_u32 s39, s39, 0x%x' % KM_OFF)
    a('s_lshl_b32 s41, s%d, 17' % S_W)
    a('s_lshl_b32 s%d, s%d, 13' % (S_T, S_CQ))
    a('s_add_u32 s41, s41, s%d' % S_T)
    a('s_add_u32 s41, s41, 0x%x' % WOF_OFF)
    ids = {}
    def ld(dst, soff, off, sc=''):
        if off >= 4096:
            a('s_add_u32 s%d, s%d, %d' % (S_T, soff, off & ~4095)); so = S_T
        else:
            so = soff
        return V('buffer_load_dwordx4 %s, %s, s[4:7], s%d offen offset:%d%s' % (dst, vr(VL16), so, off & 4095, sc))
    def ld_qk(i):
        for j in range(8): ld(ar(AQ + 4 * j, 4), 38, j * 1024, SC)
        for j in range(8): ld(ar(AK + 4 * j, 4), 36, j * 1024, SC)
        for j in range(4): ids[('qk', i)] = ld(ar(AKM + 4 * j, 4), 39, j * 1024, SC)
        a('s_add_u32 s38, s38, 0x8000'); a('s_add_u32 s36, s36, 0x8000'); a('s_add_u32 s39, s39, 0x4000')
    def ld_v(i):
        for j in range(8): ld(ar(AV + 4 * j, 4), 37, j * 1024, SC)
        for j in range(4): ids[('v', i)] = ld(ar(AVM + 4 * j, 4), 40, j * 1024, SC)
        a('s_add_u32 s37, s37, 0x8000'); a('s_add_u32 s40, s40, 0x4000')
    def ld_w(i, es):
        for nt in range(8): ids[('w', i, es)] = ld(ar(AW + (es * 8 + nt) * 4, 4), 41, es * 32768 + nt * 1024, SC)
        if es == 3: a('s_add_u32 s41, s41, 0x80000')
    ld_qk(0); ld_v(0)
    for es in range(4): ld_w(0, es)
    a('s_barrier')
    gw = V('buffer_load_dwordx4 v[8:11], %s, s[20:23], 0 offen' % vr(VL16))
    a('s_lshl_b32 s%d, s%d, 5' % (S_T, S_S))
    a('s_lshl_b32 s%d, s%d, 3' % (S_T + 1, S_W))
    a('s_add_u32 s%d, s%d, s%d' % (S_T, S_T, S_T + 1))
    a('s_lshl_b32 s%d, s%d, 10' % (S_T + 1, S_T))
    a('s_add_u32 s%d, s%d, 4096' % (S_T + 2, S_T + 1))
    xid = []
    for k in range(8):
        xid.append(V('buffer_load_dwordx4 %s, %s, s[8:11], s%d offen offset:%d' % (vr(24 + 4 * k, 4), vr(VL16), S_T + 1 + k // 4, (k % 4) * 1024)))
    VW(gw)
    for j in range(4):
        a('v_lshlrev_b32 %s, 16, %s' % (vr(12 + 2 * j), vr(8 + j)))
        a('v_and_b32 %s, 0xffff0000, %s' % (vr(13 + 2 * j), vr(8 + j)))
    a('s_mov_b32 s26, 0x3f803f80')
    for k in range(8):
        VW(xid[k])
        b = 24 + 4 * k
        for j in range(4):
            a('v_lshlrev_b32 v20, 16, %s' % vr(b + j))
            a('v_and_b32 v21, 0xffff0000, %s' % vr(b + j))
            a('v_mul_f32 v20, v20, %s' % vr(12 + 2 * j))
            a('v_mul_f32 v21, v21, %s' % vr(13 + 2 * j))
            a('v_cvt_pk_bf16_f32 v20, v20, v21')
            a('v_dot2_f32_bf16 %s, v20, s26, %s' % (vr(56 + k), '0' if j == 0 else vr(56 + k)))
    for k in range(8):
        for sh in (1, 2, 4, 8):
            a('v_add_f32_dpp %s, %s, %s row_ror:%d row_mask:0xf bank_mask:0xf' % (vr(56 + k), vr(56 + k), vr(56 + k), sh) if False else
              'v_mov_b32_dpp v20, %s row_ror:%d row_mask:0xf bank_mask:0xf' % (vr(56 + k), sh))
            a('v_add_f32 %s, %s, v20' % (vr(56 + k), vr(56 + k)))
        a('v_mov_b32 v20, %s' % vr(56 + k))
        a('v_permlane32_swap_b32 %s, v20' % vr(56 + k))
        a('v_add_f32 %s, %s, v20' % (vr(56 + k), vr(56 + k)))
        a('v_mov_b32 v20, %s' % vr(56 + k))
        a('v_permlane16_swap_b32 %s, v20' % vr(56 + k))
        a('v_add_f32 %s, %s, v20' % (vr(56 + k), vr(56 + k)))
    a('v_mov_b32 v22, v56')
    for k in range(1, 8):
        a('v_cmp_eq_u32 vcc, %d, v2' % k)
        a('v_cndmask_b32 v22, v22, %s, vcc' % vr(56 + k))
    a('v_cvt_pk_bf16_f32 v22, v22, v22')
    a('v_and_b32 v22, 0xffff0000, v22')
    a('v_mul_f32 v22, 0xbfb8aa3b, v22')
    a('v_exp_f32 v22, v22')
    a('v_add_f32 v22, 1.0, v22')
    a('v_rcp_f32 v22, v22')
    a('v_cvt_pk_bf16_f32 v22, v22, v22')
    a('v_and_b32 v22, 0xffff0000, v22')
    a('s_lshl_b32 s%d, s%d, 5' % (S_T, S_W))
    a('s_add_u32 s%d, s%d, 65536' % (S_T, S_T))
    a('v_lshlrev_b32 v23, 2, v2')
    a('v_add_u32 v23, s%d, v23' % S_T)
    a('s_mov_b64 exec, 0xff')
    a('ds_write_b32 v23, v22')
    a('s_mov_b64 exec, -1')
    a('v_and_b32 v3, 15, v2')
    a('v_lshrrev_b32 v4, 4, v2')
    a('v_lshlrev_b32 v4, 2, v4')
    a('v_mov_b32 v5, 0xff800000')
    a('v_mov_b32 v6, 0')
    for i in range(4):
        a('v_add_u32 v7, %d, v4' % i)
        a('v_cmp_le_u32 vcc, v7, v3')
        a('v_cndmask_b32 %s, v5, v6, vcc' % vr(MB_ + i))
    a('v_mov_b32 %s, v2' % vr(VX_))
    for i in range(32):
        a('v_mov_b64 %s, 0' % vr(YA + 2 * i, 2))
    SM, SX0, SX1 = SA, SA + 4, SA + 8
    def mm(acc, A_, B_, first):
        a('v_mfma_f32_16x16x32_bf16 %s, %s, %s, %s' % (vr(acc, 4), A_, B_, '0' if first else vr(acc, 4)))
    a('s_mov_b32 s44, 0') if False else None
    a('s_mov_b32 s26, 0')
    a('%s_hl:' % N)
    a('s_waitcnt vmcnt(44)')
    for tt in range(2):
        for es in range(4):
            q = ar(AQ + (tt * 4 + es) * 4, 4)
            mm(SM, ar(AKM + 4 * es, 4), q, es == 0)
            mm(SX0, ar(AK + 4 * es, 4), q, es == 0)
            if tt == 1:
                mm(SX1, ar(AK + 16 + 4 * es, 4), q, es == 0)
        if tt == 1:
            ld_qk(1)
        DG = SX0 if tt == 0 else SX1
        for j in range(4):
            a('v_add_f32 %s, %s, %s' % (vr(DG + j), vr(DG + j), vr(MB_ + j)))
        a('v_max3_f32 %s, %s, %s, %s' % (vr(T), vr(SX0), vr(SX0 + 1), vr(SX0 + 2)))
        a('v_max3_f32 %s, %s, %s, %s' % (vr(T1), vr(SX0 + 3), vr(SM), vr(SM + 1)))
        if tt == 1:
            a('v_max3_f32 %s, %s, %s, %s' % (vr(T1), vr(SX1), vr(SX1 + 1), vr(T1)))
            a('v_max3_f32 %s, %s, %s, %s' % (vr(T), vr(SX1 + 2), vr(SX1 + 3), vr(T)))
        a('v_max_f32 %s, %s, %s' % (vr(T), vr(T), vr(T1)))
        a('v_mov_b32 %s, %s' % (vr(T1), vr(T)))
        a('v_permlane32_swap_b32 %s, %s' % (vr(T), vr(T1)))
        a('v_max_f32 %s, %s, %s' % (vr(T), vr(T), vr(T1)))
        a('v_mov_b32 %s, %s' % (vr(T1), vr(T)))
        a('v_permlane16_swap_b32 %s, %s' % (vr(T), vr(T1)))
        a('v_max_f32 %s, %s, %s' % (vr(T), vr(T), vr(T1)))
        a('v_mul_f32 %s, s27, %s' % (vr(T), vr(T)))
        regs = [SM, SM + 1] + [SX0 + j for j in range(4)] + ([SX1 + j for j in range(4)] if tt == 1 else [])
        for r in regs:
            a('v_fma_f32 %s, %s, s27, -%s' % (vr(r), vr(r), vr(T)))
        for r in regs:
            a('v_exp_f32 %s, %s' % (vr(r), vr(r)))
        a('v_add_f32 %s, %s, %s' % (vr(LSUM), vr(regs[0]), vr(regs[1])))
        for r in regs[2:]:
            a('v_add_f32 %s, %s, %s' % (vr(LSUM), vr(LSUM), vr(r)))
        a('v_cvt_pk_bf16_f32 %s, %s, %s' % (vr(PMr), vr(SM), vr(SM + 1)))
        a('v_cvt_pk_bf16_f32 %s, %s, %s' % (vr(PMr + 1), vr(SM), vr(SM + 1)))
        a('v_cvt_pk_bf16_f32 %s, %s, %s' % (vr(PXr), vr(SX0), vr(SX0 + 1)))
        a('v_cvt_pk_bf16_f32 %s, %s, %s' % (vr(PXr + 1), vr(SX0 + 2), vr(SX0 + 3)))
        if tt == 1:
            a('v_cvt_pk_bf16_f32 %s, %s, %s' % (vr(PXr + 2), vr(SX1), vr(SX1 + 1)))
            a('v_cvt_pk_bf16_f32 %s, %s, %s' % (vr(PXr + 3), vr(SX1 + 2), vr(SX1 + 3)))
        else:
            a('v_mov_b64 %s, 0' % vr(PXr + 2, 2))
        a('v_mov_b32 %s, %s' % (vr(T1), vr(LSUM)))
        if tt == 0:
            a('s_waitcnt vmcnt(32)')
        for et in range(8):
            a('v_mfma_f32_16x16x16_bf16 %s, %s, %s, 0' % (vr(OAc + 4 * et, 4), ar(AVM + 2 * et, 2), vr(PMr, 2)))
            if et == 0:
                a('v_permlane32_swap_b32 %s, %s' % (vr(LSUM), vr(T1)))
                a('v_add_f32 %s, %s, %s' % (vr(LSUM), vr(LSUM), vr(T1)))
                a('v_mov_b32 %s, %s' % (vr(T1), vr(LSUM)))
            if et == 2:
                a('v_permlane16_swap_b32 %s, %s' % (vr(LSUM), vr(T1)))
                a('v_add_f32 %s, %s, %s' % (vr(LSUM), vr(LSUM), vr(T1)))
                a('v_rcp_f32 %s, %s' % (vr(LSUM), vr(LSUM)))
        for et in range(8):
            a('v_mfma_f32_16x16x32_bf16 %s, %s, %s, %s' % (vr(OAc + 4 * et, 4), ar(AV + 4 * et, 4), vr(PXr, 4), vr(OAc + 4 * et, 4)))
        if tt == 1:
            ld_v(1)
        for et in range(8):
            o = OAc + 4 * et
            for j in range(4):
                a('v_mul_f32 %s, %s, %s' % (vr(o + j), vr(o + j), vr(LSUM)))
            a('v_cvt_pk_bf16_f32 %s, %s, %s' % (vr(OF + tt * 16 + 2 * et), vr(o), vr(o + 1)))
            a('v_cvt_pk_bf16_f32 %s, %s, %s' % (vr(OF + tt * 16 + 2 * et + 1), vr(o + 2), vr(o + 3)))
    for es in range(4):
        a('s_waitcnt vmcnt(56)')
        for nt in range(8):
            for tt in range(2):
                y = YA + (nt * 2 + tt) * 4
                a('v_mfma_f32_16x16x32_bf16 %s, %s, %s, %s' % (vr(y, 4), ar(AW + (es * 8 + nt) * 4, 4), vr(OF + tt * 16 + 4 * es, 4), vr(y, 4)))
        ld_w(1, es)
    a('s_add_u32 s26, s26, 1')
    a('s_cmp_lt_u32 s26, 8')
    a('s_cbranch_scc1 %s_hl' % N)
    vm_done[0] = -1
    a('s_lshl_b32 s%d, s%d, 14' % (S_T, S_W))
    a('v_add_u32 %s, s%d, %s' % (vr(T), S_T, vr(VL16)))
    for k in range(16):
        a('ds_write_b128 %s, %s offset:%d' % (vr(T), vr(YA + 4 * k, 4), k * 1024))
    lane = vr(VX_)
    a('v_and_b32 v64, 15, %s' % lane)
    a('v_lshrrev_b32 v65, 4, %s' % lane)
    a('v_lshlrev_b32 v66, 10, v64')
    a('v_lshl_add_u32 v66, v65, 3, v66')
    a('s_lshl_b32 s%d, s%d, 15' % (S_T, S_S))
    a('s_lshl_b32 s%d, s%d, 8' % (S_T + 1, S_CQ))
    a('s_add_u32 s%d, s%d, s%d' % (S_T, S_T, S_T + 1))
    a('s_lshl_b32 s%d, s%d, 6' % (S_T + 1, S_W))
    a('s_add_u32 s24, s%d, s%d' % (S_T, S_T + 1))
    a('s_add_u32 s25, s24, 16384')
    a('v_lshlrev_b32 v90, 14, v65')
    a('v_lshl_add_u32 v90, v64, 1, v90')
    a('s_lshl_b32 s42, s%d, 19' % S_CQ)
    a('s_lshl_b32 s%d, s%d, 17' % (S_T + 1, S_W))
    a('s_add_u32 s42, s42, s%d' % (S_T + 1))
    a('s_lshl_b32 s%d, s%d, 6' % (S_T + 1, S_S))
    a('s_add_u32 s42, s42, s%d' % (S_T + 1))
    a('s_add_u32 s42, s42, 0x%x' % BOUT_OFF)
    bid = {}
    for u in range(2):
        for tt in range(2):
            for j in range(4):
                a('s_add_u32 s43, s42, %d' % ((16 * u + j) * 4096))
                bid[(u, tt)] = V('buffer_load_ushort %s, v90, s[4:7], s43 offen offset:%d%s' % (vr(96 + (u * 2 + tt) * 4 + j), tt * 32, SC))
    a('s_lshl_b32 s%d, s%d, 12' % (S_T, S_W))
    a('v_add_u32 %s, s%d, %s' % (vr(T), S_T, vr(VL16)))
    a('v_lshlrev_b32 v67, 2, v64')
    a('s_waitcnt lgkmcnt(0)')
    a('s_barrier')
    for p in range(4):
        for k in range(4):
            a('ds_read_b128 %s, %s offset:%d' % (vr(YA + (p * 4 + k) * 4, 4), vr(T), p * 16384 + k * 1024))
    a('ds_read_b32 v76, v67 offset:%d' % 65535 if False else 'v_add_u32 v67, 65536, v67')
    a('ds_read_b32 v76, v67')
    a('ds_read_b32 v77, v67 offset:64')
    a('s_waitcnt lgkmcnt(0)')
    for tt in range(2):
        a('v_sub_f32 %s, 1.0, %s' % (vr(78 + tt), vr(76 + tt)))
        a('v_cvt_pk_bf16_f32 %s, %s, %s' % (vr(78 + tt), vr(78 + tt), vr(78 + tt)))
        a('v_and_b32 %s, 0xffff0000, %s' % (vr(78 + tt), vr(78 + tt)))
    for u in range(2):
        for tt in range(2):
            k = u * 2 + tt
            y = YA + k * 4
            for j in range(4):
                a('v_add_f32 %s, %s, %s' % (vr(y + j), vr(y + j), vr(y + 16 + j)))
                a('v_add_f32 %s, %s, %s' % (vr(y + 32 + j), vr(y + 32 + j), vr(y + 48 + j)))
            for j in range(4):
                a('v_add_f32 %s, %s, %s' % (vr(y + j), vr(y + j), vr(y + 32 + j)))
            a('v_cvt_pk_bf16_f32 v80, %s, %s' % (vr(y), vr(y + 1)))
            a('v_cvt_pk_bf16_f32 v81, %s, %s' % (vr(y + 2), vr(y + 3)))
            VW(bid[(u, tt)])
            bb = 68 + k * 2
            a('v_lshl_or_b32 %s, %s, 16, %s' % (vr(bb), vr(96 + 4 * k + 1), vr(96 + 4 * k)))
            a('v_lshl_or_b32 %s, %s, 16, %s' % (vr(bb + 1), vr(96 + 4 * k + 3), vr(96 + 4 * k + 2)))
            for h2 in range(2):
                a('v_lshlrev_b32 v82, 16, %s' % vr(80 + h2))
                a('v_and_b32 v83, 0xffff0000, %s' % vr(80 + h2))
                a('v_mul_f32 v82, v82, %s' % vr(76 + tt))
                a('v_mul_f32 v83, v83, %s' % vr(76 + tt))
                a('v_cvt_pk_bf16_f32 v82, v82, v83')
                a('v_lshlrev_b32 v84, 16, %s' % vr(bb + h2))
                a('v_and_b32 v85, 0xffff0000, %s' % vr(bb + h2))
                a('v_mul_f32 v84, v84, %s' % vr(78 + tt))
                a('v_mul_f32 v85, v85, %s' % vr(78 + tt))
                a('v_cvt_pk_bf16_f32 v84, v84, v85')
                a('v_lshlrev_b32 v83, 16, v82')
                a('v_and_b32 v82, 0xffff0000, v82')
                a('v_lshlrev_b32 v85, 16, v84')
                a('v_and_b32 v84, 0xffff0000, v84')
                a('v_add_f32 v83, v83, v85')
                a('v_add_f32 v82, v82, v84')
                a('v_cvt_pk_bf16_f32 %s, v83, v82' % vr(86 + 2 * k + h2))
            V('buffer_store_dwordx2 %s, v66, s[32:35], s%d offen offset:%d' % (vr(86 + 2 * k, 2), 24 + tt, u * 32))

def gen_simple_kernel(a, name, ntasks, body):
    kernel_header(a, name)
    a('s_cmp_ge_u32 s2, %d' % ntasks)
    a('s_cbranch_scc1 %s_exit' % name)
    load_ptrs(a)
    a('s_mov_b32 s49, s2')
    body(a, name, 49)
    a('%s_exit:' % name)
    a('s_endpgm')

if __name__ == '__main__':
    import sys
    a = Asm()
    hdr = '''; @launch kernel=wof_kernel grid=(128,1,1) block=(256,1,1) lds=34816
; @launch kernel=attn_kernel grid=(256,1,1) block=(256,1,1) lds=%d
.amdgcn_target "amdgcn-amd-amdhsa--gfx950"
.text
''' % A_LDS
    gen_simple_kernel(a, 'wof_kernel', 128, gen_wof_task)
    gen_simple_kernel(a, 'attn_kernel', 256, gen_attn_task)
    txt = hdr + a.text() + '.section .rodata,"a"\n.p2align 6\n' + kernel_desc('wof_kernel', 64, 102, 64) + '.p2align 6\n' + kernel_desc('attn_kernel', 416, 102, 160)
    open(sys.argv[1], 'w').write(txt)
    print('nops inserted', a.nops_inserted, 'lines', len(a.out))
```

```python
from asmgen import Asm, vr, ar, sr
from layout import *
from gen_chain import build_srd, f32bits, SCALE_LOG2E, S_DBG

def static_poll(a, tag, s_blk=None, need_all=True):
    a('s_cmp_lg_u32 s48, 0')
    a('s_cbranch_scc1 %s_ok' % tag)
    a('s_cmp_eq_u32 s97, 1')
    a('s_cbranch_scc1 %s_ok' % tag)
    a('v_mbcnt_lo_u32_b32 v250, -1, 0')
    a('v_mbcnt_hi_u32_b32 v250, -1, v250')
    a('v_lshlrev_b32 v250, 2, v250')
    a('s_mov_b32 s21, 0x40000')
    a('%s:' % tag)
    a('buffer_load_dword v251, v250, s[%d:%d], 0 offen sc1' % (S_DBG, S_DBG + 3))
    a('s_waitcnt vmcnt(0)')
    a('v_mov_b32 v249, 0')
    a('v_lshrrev_b32 v248, 2, v250')
    for lo, hi, tg in ((18, 18, 128), (19, 19, 256), (20, 20, 32), (24, 32, 64), (33, 41, 32)):
        a('v_cmp_le_u32 vcc, %d, v248' % lo)
        a('v_cmp_ge_u32 s[22:23], %d, v248' % hi)
        a('s_and_b64 vcc, vcc, s[22:23]')
        a('v_mov_b32 v247, %d' % tg)
        a('v_cndmask_b32 v249, v249, v247, vcc')
    a('v_cmp_lt_u32 vcc, v251, v249')
    a('s_cmp_eq_u64 vcc, 0')
    a('s_cselect_b32 s97, 1, 0')
    a('s_cbranch_scc1 %s_ok' % tag)
    a('s_mov_b32 s27, 1')
    conds = [('20', '32')]
    if need_all: conds += [('18', '128'), ('19', '256')]
    if s_blk is not None:
        a('s_add_u32 s24, s%d, 24' % s_blk)
        a('s_add_u32 s25, s%d, 33' % s_blk)
        conds += [('s24', '64'), ('s25', '32')]
    for ln, tg in conds:
        a('v_readlane_b32 s22, v251, %s' % ln)
        a('s_cmp_ge_u32 s22, %s' % tg)
        a('s_cselect_b32 s27, s27, 0')
    a('s_cmp_eq_u32 s27, 1')
    a('s_cbranch_scc1 %s_ok' % tag)
    a('s_sleep 40')
    a('s_sub_u32 s21, s21, 1')
    a('s_cbranch_scc0 %s' % tag)
    a('%s_ok:' % tag)
    a('s_barrier')

def prog_poll(a, tag, s_seg, acnt=False, sleep=10):
    a('s_cmp_lg_u32 s48, 0')
    a('s_cbranch_scc1 %s_ok' % tag)
    a('s_mov_b64 exec, 1')
    a('s_and_b32 s22, s2, 31')
    a('s_lshl_b32 s22, s22, 7')
    a('s_add_u32 s22, s22, 0x%x' % FLG_OFF)
    a('v_mov_b32 v250, s22')
    a('s_lshl_b32 s22, s%d, 7' % s_seg)
    a('s_add_u32 s22, s22, 0x%x' % (FLG_OFF + 4096))
    a('v_mov_b32 v249, s22')
    a('v_mov_b32 v248, 84')
    a('s_mov_b32 s21, 0x40000')
    a('s_add_u32 s23, s%d, 1' % s_seg)
    a('s_min_u32 s24, s23, 63')
    a('%s_p:' % tag)
    a('s_cmp_ge_u32 s96, s24')
    a('s_cbranch_scc1 %s_p2' % tag)
    a('buffer_load_dword v251, v250, s[4:7], 0 offen sc1')
    a('s_waitcnt vmcnt(0)')
    a('v_readfirstlane_b32 s96, v251')
    a('s_cmp_ge_u32 s96, s24')
    a('s_cbranch_scc1 %s_p2' % tag)
    a('s_sub_u32 s22, s24, s96')
    a('%s_bk:' % tag)
    a('s_cmp_lt_u32 s22, 2')
    a('s_cbranch_scc1 %s_bke' % tag)
    a('s_sleep 56')
    a('s_sub_u32 s22, s22, 1')
    a('s_branch %s_bk' % tag)
    a('%s_bke:' % tag)
    a('s_sleep %d' % sleep)
    a('s_sub_u32 s21, s21, 1')
    a('s_cbranch_scc0 %s_p' % tag)
    a('%s_p2:' % tag)
    if acnt:
        a('buffer_load_dword v251, v249, s[4:7], 0 offen sc1')
        a('s_waitcnt vmcnt(0)')
        a('v_readfirstlane_b32 s22, v251')
        a('s_cmp_ge_u32 s22, 8')
        a('s_cbranch_scc1 %s_done' % tag)
    else:
        a('s_cmp_lt_u32 s%d, 63' % s_seg)
        a('s_cbranch_scc1 %s_done' % tag)
        a('buffer_load_dword v251, v248, s[%d:%d], 0 offen sc1' % (S_DBG, S_DBG + 3))
        a('s_waitcnt vmcnt(0)')
        a('v_readfirstlane_b32 s22, v251')
        a('s_cmp_ge_u32 s22, 32')
        a('s_cbranch_scc1 %s_done' % tag)
    a('s_sleep %d' % sleep)
    a('s_sub_u32 s21, s21, 1')
    a('s_cbranch_scc0 %s_p2' % tag)
    a('%s_done:' % tag)
    a('s_mov_b64 exec, -1')
    a('%s_ok:' % tag)
    a('s_barrier')

def seg_block(a, dst, s_seg):
    a('s_add_u32 s%d, s%d, 6' % (dst, s_seg))
    a('s_lshr_b32 s%d, s%d, 3' % (dst, dst))

def gen_attnA(a, name, s_seg, s_hg, s_wave):
    N = name
    SA = 64; PXr = 76; PMr = 80; OAc = 84; OF = 116
    MB_ = 148; VL16 = 152; T = 153; T1 = 154; LSUM = 155
    AQ = 128; AK = 160; AKM = 192; AV = 208; AVM = 240
    a('v_and_b32 v2, 63, v0')
    a('v_lshlrev_b32 %s, 4, v2' % vr(VL16))
    seg_block(a, 18, s_seg)
    static_poll(a, N + '_d0', s_blk=18, need_all=False)
    a('s_lshl_b32 s16, s%d, 5' % s_seg)
    a('s_lshl_b32 s17, s%d, 2' % s_hg)
    a('s_add_u32 s16, s16, s17')
    a('s_add_u32 s16, s16, s%d' % s_wave)
    a('s_lshl_b32 s36, s16, 13')
    a('s_add_u32 s37, s36, 0x%x' % VX_OFF)
    a('s_add_u32 s38, s36, 0x%x' % QX_OFF)
    a('s_add_u32 s41, s36, 0x%x' % OF_OFF)
    a('s_lshl_b32 s39, s16, 12')
    a('s_add_u32 s40, s39, 0x%x' % VM_OFF)
    a('s_add_u32 s39, s39, 0x%x' % KM_OFF)
    def ld(dst, soff, off):
        if off >= 4096:
            a('s_add_u32 s17, s%d, %d' % (soff, off & ~4095)); so = 17
        else:
            so = soff
        a('buffer_load_dwordx4 %s, %s, s[4:7], s%d offen offset:%d' % (dst, vr(VL16), so, off & 4095))
    for j in range(8): ld(ar(AQ + 4 * j, 4), 38, j * 1024)
    for j in range(8): ld(ar(AK + 4 * j, 4), 36, j * 1024)
    for j in range(8): ld(ar(AV + 4 * j, 4), 37, j * 1024)
    a('v_and_b32 v3, 15, v2')
    a('v_lshrrev_b32 v4, 4, v2')
    a('v_lshlrev_b32 v4, 2, v4')
    a('v_mov_b32 v5, 0xff800000')
    a('v_mov_b32 v6, 0')
    for i in range(4):
        a('v_add_u32 v7, %d, v4' % i)
        a('v_cmp_le_u32 vcc, v7, v3')
        a('v_cndmask_b32 %s, v5, v6, vcc' % vr(MB_ + i))
    prog_poll(a, N + '_d1', s_seg)
    for j in range(4): ld(ar(AKM + 4 * j, 4), 39, j * 1024)
    for j in range(4): ld(ar(AVM + 4 * j, 4), 40, j * 1024)
    a('s_mov_b32 s27, 0x%x' % f32bits(SCALE_LOG2E))
    a('s_waitcnt vmcnt(8)')
    SM, SX0, SX1 = SA, SA + 4, SA + 8
    def mm(acc, A_, B_, first):
        a('v_mfma_f32_16x16x32_bf16 %s, %s, %s, %s' % (vr(acc, 4), A_, B_, '0' if first else vr(acc, 4)))
    for tt in range(2):
        for es in range(4):
            q = ar(AQ + (tt * 4 + es) * 4, 4)
            mm(SX0, ar(AK + 4 * es, 4), q, es == 0)
            if tt == 1:
                mm(SX1, ar(AK + 16 + 4 * es, 4), q, es == 0)
        if tt == 0: a('s_waitcnt vmcnt(4)')
        for es in range(4):
            mm(SM, ar(AKM + 4 * es, 4), ar(AQ + (tt * 4 + es) * 4, 4), es == 0)
        DG = SX0 if tt == 0 else SX1
        for j in range(4):
            a('v_add_f32 %s, %s, %s' % (vr(DG + j), vr(DG + j), vr(MB_ + j)))
        a('v_max3_f32 %s, %s, %s, %s' % (vr(T), vr(SX0), vr(SX0 + 1), vr(SX0 + 2)))
        if tt == 1:
            a('v_max3_f32 %s, %s, %s, %s' % (vr(T), vr(SX1), vr(SX1 + 1), vr(T)))
            a('v_max3_f32 %s, %s, %s, %s' % (vr(T), vr(SX1 + 2), vr(SX1 + 3), vr(T)))
        a('v_max3_f32 %s, %s, %s, %s' % (vr(T1), vr(SX0 + 3), vr(SM), vr(SM + 1)))
        a('v_max_f32 %s, %s, %s' % (vr(T), vr(T), vr(T1)))
        a('v_mov_b32 %s, %s' % (vr(T1), vr(T)))
        a('v_permlane32_swap_b32 %s, %s' % (vr(T), vr(T1)))
        a('v_max_f32 %s, %s, %s' % (vr(T), vr(T), vr(T1)))
        a('v_mov_b32 %s, %s' % (vr(T1), vr(T)))
        a('v_permlane16_swap_b32 %s, %s' % (vr(T), vr(T1)))
        a('v_max_f32 %s, %s, %s' % (vr(T), vr(T), vr(T1)))
        a('v_mul_f32 %s, s27, %s' % (vr(T), vr(T)))
        regs = [SM, SM + 1] + [SX0 + j for j in range(4)] + ([SX1 + j for j in range(4)] if tt == 1 else [])
        for r in regs:
            a('v_fma_f32 %s, %s, s27, -%s' % (vr(r), vr(r), vr(T)))
        for r in regs:
            a('v_exp_f32 %s, %s' % (vr(r), vr(r)))
        a('v_add_f32 %s, %s, %s' % (vr(LSUM), vr(regs[0]), vr(regs[1])))
        for r in regs[2:]:
            a('v_add_f32 %s, %s, %s' % (vr(LSUM), vr(LSUM), vr(r)))
        a('v_cvt_pk_bf16_f32 %s, %s, %s' % (vr(PMr), vr(SM), vr(SM + 1)))
        a('v_cvt_pk_bf16_f32 %s, %s, %s' % (vr(PMr + 1), vr(SM), vr(SM + 1)))
        a('v_cvt_pk_bf16_f32 %s, %s, %s' % (vr(PXr), vr(SX0), vr(SX0 + 1)))
        a('v_cvt_pk_bf16_f32 %s, %s, %s' % (vr(PXr + 1), vr(SX0 + 2), vr(SX0 + 3)))
        if tt == 1:
            a('v_cvt_pk_bf16_f32 %s, %s, %s' % (vr(PXr + 2), vr(SX1), vr(SX1 + 1)))
            a('v_cvt_pk_bf16_f32 %s, %s, %s' % (vr(PXr + 3), vr(SX1 + 2), vr(SX1 + 3)))
        else:
            a('v_mov_b64 %s, 0' % vr(PXr + 2, 2))
        a('v_mov_b32 %s, %s' % (vr(T1), vr(LSUM)))
        if tt == 0:
            a('s_waitcnt vmcnt(0)')
        for et in range(8):
            a('v_mfma_f32_16x16x16_bf16 %s, %s, %s, 0' % (vr(OAc + 4 * et, 4), ar(AVM + 2 * et, 2), vr(PMr, 2)))
            if et == 0:
                a('v_permlane32_swap_b32 %s, %s' % (vr(LSUM), vr(T1)))
                a('v_add_f32 %s, %s, %s' % (vr(LSUM), vr(LSUM), vr(T1)))
                a('v_mov_b32 %s, %s' % (vr(T1), vr(LSUM)))
            if et == 2:
                a('v_permlane16_swap_b32 %s, %s' % (vr(LSUM), vr(T1)))
                a('v_add_f32 %s, %s, %s' % (vr(LSUM), vr(LSUM), vr(T1)))
                a('v_rcp_f32 %s, %s' % (vr(LSUM), vr(LSUM)))
        for et in range(8):
            a('v_mfma_f32_16x16x32_bf16 %s, %s, %s, %s' % (vr(OAc + 4 * et, 4), ar(AV + 4 * et, 4), vr(PXr, 4), vr(OAc + 4 * et, 4)))
        for et in range(8):
            o = OAc + 4 * et
            for j in range(4):
                a('v_mul_f32 %s, %s, %s' % (vr(o + j), vr(o + j), vr(LSUM)))
            a('v_cvt_pk_bf16_f32 %s, %s, %s' % (vr(OF + tt * 16 + 2 * et), vr(o), vr(o + 1)))
            a('v_cvt_pk_bf16_f32 %s, %s, %s' % (vr(OF + tt * 16 + 2 * et + 1), vr(o + 2), vr(o + 3)))
            if et % 2 == 1:
                es = et // 2
                a('buffer_store_dwordx4 %s, %s, s[4:7], s41 offen offset:%d sc1' % (vr(OF + tt * 16 + 4 * es, 4), vr(VL16), es * 1024))
        a('s_add_u32 s41, s41, 4096')

def gen_attnB(a, name, s_seg, s_c16, s_wave):
    N = name
    VL16 = 4; T = 5
    S_T = 16
    a('v_and_b32 v2, 63, v0')
    a('v_lshlrev_b32 %s, 4, v2' % vr(VL16))
    a('s_load_dwordx2 s[28:29], s[0:1], 128')
    a('s_load_dwordx2 s[30:31], s[0:1], 136')
    build_srd(a, 8, 52, 2097152)
    a('s_waitcnt lgkmcnt(0)')
    build_srd(a, 36, 28, 1024)
    build_srd(a, 32, 30, 2097152)
    static_poll(a, N + '_d0')
    a('s_lshl_b32 s41, s%d, 20' % s_wave)
    a('s_lshl_b32 s%d, s%d, 11' % (S_T, s_c16))
    a('s_add_u32 s41, s41, s%d' % S_T)
    a('s_add_u32 s41, s41, 0x%x' % WOF_OFF)
    for k in range(32):
        for u in range(2):
            a('buffer_load_dwordx4 %s, %s, s[4:7], s41 offen offset:%d' % (ar((k * 2 + u) * 4, 4), vr(VL16), u * 1024))
        a('s_add_u32 s41, s41, 0x8000')
    a('s_barrier')
    a('buffer_load_dwordx4 v[8:11], %s, s[36:39], 0 offen' % vr(VL16))
    a('s_lshl_b32 s%d, s%d, 5' % (S_T, s_seg))
    a('s_lshl_b32 s%d, s%d, 3' % (S_T + 1, s_wave))
    a('s_add_u32 s%d, s%d, s%d' % (S_T, S_T, S_T + 1))
    a('s_lshl_b32 s%d, s%d, 10' % (S_T + 1, S_T))
    a('s_add_u32 s%d, s%d, 4096' % (S_T + 2, S_T + 1))
    for k in range(8):
        a('buffer_load_dwordx4 %s, %s, s[8:11], s%d offen offset:%d' % (vr(24 + 4 * k, 4), vr(VL16), S_T + 1 + k // 4, (k % 4) * 1024))
    a('v_and_b32 v64, 15, v2')
    a('v_lshrrev_b32 v65, 4, v2')
    a('v_lshlrev_b32 v66, 14, v65')
    a('v_lshl_add_u32 v66, v64, 1, v66')
    a('s_lshl_b32 s42, s%d, 17' % s_c16)
    a('s_lshr_b32 s%d, s%d, 1' % (S_T, s_wave))
    a('s_lshl_b32 s%d, s%d, 16' % (S_T, S_T))
    a('s_add_u32 s42, s42, s%d' % S_T)
    a('s_lshl_b32 s%d, s%d, 6' % (S_T, s_seg))
    a('s_add_u32 s42, s42, s%d' % S_T)
    a('s_and_b32 s%d, s%d, 1' % (S_T, s_wave))
    a('s_lshl_b32 s%d, s%d, 5' % (S_T, S_T))
    a('s_add_u32 s42, s42, s%d' % S_T)
    a('s_add_u32 s42, s42, 0x%x' % BOUT_OFF)
    for j in range(4):
        a('buffer_load_ushort %s, v66, s[4:7], s42 offen' % vr(68 + j))
        a('s_add_u32 s42, s42, 4096')
    a('s_waitcnt vmcnt(12)')
    for j in range(4):
        a('v_lshlrev_b32 %s, 16, %s' % (vr(12 + 2 * j), vr(8 + j)))
        a('v_and_b32 %s, 0xffff0000, %s' % (vr(13 + 2 * j), vr(8 + j)))
    a('s_mov_b32 s26, 0x3f803f80')
    for k in range(8):
        a('s_waitcnt vmcnt(%d)' % (11 - k))
        b = 24 + 4 * k
        for j in range(4):
            a('v_lshlrev_b32 v20, 16, %s' % vr(b + j))
            a('v_and_b32 v21, 0xffff0000, %s' % vr(b + j))
            a('v_mul_f32 v20, v20, %s' % vr(12 + 2 * j))
            a('v_mul_f32 v21, v21, %s' % vr(13 + 2 * j))
            a('v_cvt_pk_bf16_f32 v20, v20, v21')
            a('v_dot2_f32_bf16 %s, v20, s26, %s' % (vr(56 + k), '0' if j == 0 else vr(56 + k)))
    for k in range(8):
        for sh in (1, 2, 4, 8):
            a('v_mov_b32_dpp v20, %s row_ror:%d row_mask:0xf bank_mask:0xf' % (vr(56 + k), sh))
            a('v_add_f32 %s, %s, v20' % (vr(56 + k), vr(56 + k)))
        a('v_mov_b32 v20, %s' % vr(56 + k))
        a('v_permlane32_swap_b32 %s, v20' % vr(56 + k))
        a('v_add_f32 %s, %s, v20' % (vr(56 + k), vr(56 + k)))
        a('v_mov_b32 v20, %s' % vr(56 + k))
        a('v_permlane16_swap_b32 %s, v20' % vr(56 + k))
        a('v_add_f32 %s, %s, v20' % (vr(56 + k), vr(56 + k)))
    a('v_mov_b32 v22, v56')
    for k in range(1, 8):
        a('v_cmp_eq_u32 vcc, %d, v2' % k)
        a('v_cndmask_b32 v22, v22, %s, vcc' % vr(56 + k))
    a('v_cvt_pk_bf16_f32 v22, v22, v22')
    a('v_and_b32 v22, 0xffff0000, v22')
    a('v_mul_f32 v22, 0xbfb8aa3b, v22')
    a('v_exp_f32 v22, v22')
    a('v_add_f32 v22, 1.0, v22')
    a('v_rcp_f32 v22, v22')
    a('v_cvt_pk_bf16_f32 v22, v22, v22')
    a('v_and_b32 v22, 0xffff0000, v22')
    a('s_lshl_b32 s%d, s%d, 5' % (S_T, s_wave))
    a('s_add_u32 s%d, s%d, 16384' % (S_T, S_T))
    a('v_lshlrev_b32 v23, 2, v2')
    a('v_add_u32 v23, s%d, v23' % S_T)
    a('s_mov_b64 exec, 0xff')
    a('ds_write_b32 v23, v22')
    a('s_mov_b64 exec, -1')
    a('v_lshlrev_b32 v67, 10, v64')
    a('v_lshl_add_u32 v67, v65, 3, v67')
    a('s_lshl_b32 s24, s%d, 15' % s_seg)
    a('s_and_b32 s%d, s%d, 1' % (S_T, s_wave))
    a('s_lshl_b32 s%d, s%d, 14' % (S_T, S_T))
    a('s_add_u32 s24, s24, s%d' % S_T)
    a('s_lshl_b32 s%d, s%d, 6' % (S_T, s_c16))
    a('s_add_u32 s24, s24, s%d' % S_T)
    a('s_lshr_b32 s%d, s%d, 1' % (S_T, s_wave))
    a('s_lshl_b32 s%d, s%d, 5' % (S_T, S_T))
    a('s_add_u32 s43, s24, s%d' % S_T)
    prog_poll(a, N + '_d1', s_seg, acnt=True)
    a('s_lshl_b32 s40, s%d, 5' % s_seg)
    a('s_lshl_b32 s%d, s%d, 3' % (S_T, s_wave))
    a('s_add_u32 s40, s40, s%d' % S_T)
    a('s_lshl_b32 s40, s40, 13')
    a('s_add_u32 s40, s40, 0x%x' % OF_OFF)
    OB = [96, 128, 160, 192]
    def ldo(i):
        for k in range(8):
            if k == 4: a('s_add_u32 s40, s40, 4096')
            a('buffer_load_dwordx4 %s, %s, s[4:7], s40 offen offset:%d' % (vr(OB[i % 4] + 4 * k, 4), vr(VL16), (k % 4) * 1024))
        a('s_add_u32 s40, s40, 4096')
    for i in range(4): ldo(i)
    YA = 72
    for i in range(8):
        rem = min(3, 7 - i)
        a('s_waitcnt vmcnt(%d)' % (8 * rem))
        for es in range(4):
            for u in range(2):
                for tt in range(2):
                    y = vr(YA + (u * 2 + tt) * 4, 4)
                    first = (i == 0 and es == 0)
                    a('v_mfma_f32_16x16x32_bf16 %s, %s, %s, %s' % (y, ar(((i * 4 + es) * 2 + u) * 4, 4), vr(OB[i % 4] + (tt * 4 + es) * 4, 4), '0' if first else y))
        if i + 4 < 8: ldo(i + 4)
    a('s_lshl_b32 s%d, s%d, 12' % (S_T, s_wave))
    a('v_add_u32 %s, s%d, %s' % (vr(T), S_T, vr(VL16)))
    for k in range(4):
        a('ds_write_b128 %s, %s offset:%d' % (vr(T), vr(YA + 4 * k, 4), k * 1024))
    a('s_lshl_b32 s%d, s%d, 10' % (S_T, s_wave))
    a('v_add_u32 %s, s%d, %s' % (vr(T), S_T, vr(VL16)))
    a('s_and_b32 s%d, s%d, 1' % (S_T, s_wave))
    a('s_lshl_b32 s%d, s%d, 6' % (S_T, S_T))
    a('s_add_u32 s%d, s%d, 16384' % (S_T, S_T))
    a('v_lshlrev_b32 v90, 2, v64')
    a('v_add_u32 v90, s%d, v90' % S_T)
    a('s_waitcnt lgkmcnt(0)')
    a('s_barrier')
    for p in range(4):
        a('ds_read_b128 %s, %s offset:%d' % (vr(8 + 4 * p, 4), vr(T), p * 4096))
    a('ds_read_b32 v76, v90')
    a('v_lshl_or_b32 v68, v69, 16, v68')
    a('v_lshl_or_b32 v69, v71, 16, v70')
    a('s_waitcnt lgkmcnt(0)')
    a('v_sub_f32 v78, 1.0, v76')
    a('v_cvt_pk_bf16_f32 v78, v78, v78')
    a('v_and_b32 v78, 0xffff0000, v78')
    for j in range(4):
        a('v_add_f32 %s, %s, %s' % (vr(8 + j), vr(8 + j), vr(12 + j)))
        a('v_add_f32 %s, %s, %s' % (vr(16 + j), vr(16 + j), vr(20 + j)))
    for j in range(4):
        a('v_add_f32 %s, %s, %s' % (vr(8 + j), vr(8 + j), vr(16 + j)))
    a('v_cvt_pk_bf16_f32 v80, v8, v9')
    a('v_cvt_pk_bf16_f32 v81, v10, v11')
    for h2 in range(2):
        a('v_lshlrev_b32 v82, 16, %s' % vr(80 + h2))
        a('v_and_b32 v83, 0xffff0000, %s' % vr(80 + h2))
        a('v_mul_f32 v82, v82, v76')
        a('v_mul_f32 v83, v83, v76')
        a('v_cvt_pk_bf16_f32 v82, v82, v83')
        a('v_lshlrev_b32 v84, 16, %s' % vr(68 + h2))
        a('v_and_b32 v85, 0xffff0000, %s' % vr(68 + h2))
        a('v_mul_f32 v84, v84, v78')
        a('v_mul_f32 v85, v85, v78')
        a('v_cvt_pk_bf16_f32 v84, v84, v85')
        a('v_lshlrev_b32 v83, 16, v82')
        a('v_and_b32 v82, 0xffff0000, v82')
        a('v_lshlrev_b32 v85, 16, v84')
        a('v_and_b32 v84, 0xffff0000, v84')
        a('v_add_f32 v83, v83, v85')
        a('v_add_f32 v82, v82, v84')
        a('v_cvt_pk_bf16_f32 %s, v83, v82' % vr(86 + h2))
    a('buffer_store_dwordx2 v[86:87], v67, s[32:35], s43 offen')
```

```python
from asmgen import Asm, vr, ar, sr
from layout import *

L_WV = 32768
L_KX = 0
L_EX = L_KX + 16384
L_QK = L_EX + 8192
L_O = L_QK + 4096
L_MISC = L_O + 2048
LDS_BYTES = 163840
L_STG = 0

AF = 0
ACC = 32
WVS = 56
VX = 88
V_IDX = 104
V_T0 = 105
V_ONES = 106
V_HONES = 110
V_SEL = 112
V_L16 = 116
V_WVA = 117
V_QKW = 118
V_FTR = 119
V_OW = 120
V_OTR = 121
V_H1ST = 122
V_H1LD = 123
V_H2LD = 124
V_H2ST = 125
V_BIAS = 126
V_T1 = 127
V_LANE = 7
WO = 128

S_WS = 4
S_W = 8
S_H = 12
S_WV = 13
S_STEP = 14
S_T = 15
S_H1ST = 20
S_H1LD = 28
S_H2 = 32
S_KXP = 34
S_VXP = 35
S_KM = 36
S_VM = 37
S_ONELO = 38
S_ONEHI = 39
S_STMASK = 40
S_C = 42
S_CNT = 43
S_DBG = 44
S_HI32 = 48
S_PTR = 50
S_DUMP = 66
S_M0A = 67
S_M0B = 68
S_TS = 70
S_KMX = 72

import os
PK = int(os.environ.get('PK', '1')); PGAP = int(os.environ.get('PGAP', '1')); PMASK = int(os.environ.get('PMASK', '1'))
SCALE_LOG2E = 0.08838834764831845 * 1.4426950408889634

def f32bits(x):
    import struct
    return struct.unpack('<I', struct.pack('<f', x))[0]

def build_srd(a, d, ptr_lo, nbytes):
    a('s_mov_b32 s%d, s%d' % (d, ptr_lo))
    a('s_and_b32 s%d, s%d, 0xffff' % (d + 1, ptr_lo + 1))
    a('s_mov_b32 s%d, 0x%x' % (d + 2, nbytes))
    a('s_mov_b32 s%d, 0x00020000' % (d + 3))

def gen_role(a, name):
    a('s_load_dwordx2 s[%d:%d], s[0:1], 144' % (S_T + 1, S_T + 2))
    a('s_getreg_b32 s%d, hwreg(HW_REG_XCC_ID)' % S_T)
    a('s_and_b32 s%d, s%d, 15' % (S_T, S_T))
    a('s_waitcnt lgkmcnt(0)')
    build_srd(a, S_DBG, S_T + 1, 256)
    a('v_lshrrev_b32 v1, 6, v0')
    a('v_readfirstlane_b32 s%d, v1' % S_WV)
    a('v_and_b32 %s, 63, v0' % vr(V_LANE))
    a('s_cmp_lg_u32 s%d, 0' % S_WV)
    a('s_cbranch_scc1 %s_role_wait' % name)
    a('s_mov_b64 exec, 1')
    a('s_lshl_b32 s%d, s%d, 2' % (S_T + 3, S_T))
    a('v_mov_b32 v2, s%d' % (S_T + 3))
    a('v_mov_b32 v3, 1')
    a('buffer_atomic_add v3, v2, s[%d:%d], 0 offen sc0' % (S_DBG, S_DBG + 3))
    a('s_waitcnt vmcnt(0)')
    a('v_readfirstlane_b32 s%d, v3' % (S_T + 3))
    a('s_mov_b32 s%d, 99' % S_H)
    a('s_cmp_gt_u32 s%d, 31' % (S_T + 3))
    a('s_cbranch_scc1 %s_role_pub' % name)
    a('s_cmp_lg_u32 s%d, 31' % (S_T + 3))
    a('s_cbranch_scc1 %s_role_poll' % name)
    a('s_add_u32 s%d, s%d, 1' % (S_T + 4, S_T))
    a('v_mov_b32 v4, s%d' % (S_T + 4))
    a('v_mov_b32 v5, 0')
    a('v_mov_b32 v2, 64')
    a('buffer_atomic_cmpswap v[4:5], v2, s[%d:%d], 0 offen' % (S_DBG, S_DBG + 3))
    a('s_waitcnt vmcnt(0)')
    a('%s_role_poll:' % name)
    a('s_mov_b32 s%d, 0x400000' % S_CNT)
    a('v_mov_b32 v2, 64')
    a('%s_role_poll_loop:' % name)
    a('buffer_load_dword v4, v2, s[%d:%d], 0 offen sc1' % (S_DBG, S_DBG + 3))
    a('s_waitcnt vmcnt(0)')
    a('v_readfirstlane_b32 s%d, v4' % (S_T + 4))
    a('s_sub_u32 s%d, s%d, 1' % (S_CNT, S_CNT))
    a('s_cmp_eq_u32 s%d, 0' % S_CNT)
    a('s_cbranch_scc1 %s_role_pub' % name)
    a('s_cmp_eq_u32 s%d, 0' % (S_T + 4))
    a('s_cbranch_scc1 %s_role_poll_loop' % name)
    a('s_sub_u32 s%d, s%d, 1' % (S_T + 4, S_T + 4))
    a('s_cmp_lg_u32 s%d, s%d' % (S_T + 4, S_T))
    a('s_cbranch_scc1 %s_role_pub' % name)
    a('s_mov_b32 s%d, s%d' % (S_H, S_T + 3))
    a('%s_role_pub:' % name)
    a('v_mov_b32 v2, %d' % L_MISC)
    a('v_mov_b32 v3, s%d' % S_H)
    a('ds_write_b32 v2, v3')
    a('s_waitcnt lgkmcnt(0)')
    a('s_mov_b64 exec, -1')
    a('%s_role_wait:' % name)
    a('s_barrier')
    a('v_mov_b32 v2, %d' % L_MISC)
    a('ds_read_b32 v3, v2')
    a('s_waitcnt lgkmcnt(0)')
    a('v_readfirstlane_b32 s%d, v3' % S_H)
    a('s_barrier')

def gen_chain_body(a, name, nsteps=64, dump=False, stamps=False, fused=False):
    SC = ' sc1' if fused else ''
    lane = vr(V_LANE)
    if stamps: a('s_memrealtime s[94:95]')
    a('s_load_dwordx16 s[%d:%d], s[0:1], 0' % (S_PTR + 2, S_PTR + 17))
    a('s_load_dwordx2 s[%d:%d], s[0:1], 152' % (S_PTR, S_PTR + 1))
    a('s_waitcnt lgkmcnt(0)')
    P = lambda i: S_PTR + 2 + 2 * i
    build_srd(a, S_WS, S_PTR, WS_BYTES)
    a('v_and_b32 v1, 15, %s' % lane)
    a('v_lshrrev_b32 v2, 4, %s' % lane)
    a('v_lshlrev_b32 %s, 4, %s' % (vr(V_L16), lane))
    a('v_and_b32 v3, 2, v1')
    a('v_cmp_eq_u32 vcc, 0, v3')
    a('v_mov_b32 v3, 0xeeee')
    a('v_mov_b32 v4, 0x4444')
    a('v_cndmask_b32 %s, v3, v4, vcc' % vr(V_IDX))
    for i in range(4):
        a('v_mov_b32 %s, 0x3f803f80' % vr(V_ONES + i))
    a('v_cmp_gt_u32 vcc, 32, %s' % lane)
    a('v_mov_b32 v3, 0xff800000')
    a('v_mov_b32 v4, 0')
    a('v_cndmask_b32 %s, v3, v4, vcc' % vr(V_BIAS))
    a('s_lshl_b32 s%d, s%d, 15' % (S_T, S_WV))
    a('s_add_u32 s%d, s%d, %d' % (S_T, S_T, L_WV))
    a('v_add_u32 %s, s%d, %s' % (vr(V_WVA), S_T, vr(V_L16)))
    a('s_lshl_b32 s%d, s%d, 10' % (S_T, S_WV))
    a('s_add_u32 s%d, s%d, %d' % (S_T, S_T, L_QK))
    a('v_lshlrev_b32 v3, 5, v1')
    a('v_lshl_add_u32 v3, v2, 3, v3')
    a('v_add_u32 %s, s%d, v3' % (vr(V_QKW), S_T))
    a('v_lshrrev_b32 v5, 2, v1')
    a('v_and_b32 v6, 3, v1')
    a('v_lshl_add_u32 v3, v2, 2, v5')
    a('v_lshlrev_b32 v3, 5, v3')
    a('v_lshl_add_u32 v3, v6, 3, v3')
    a('v_add_u32 %s, %d, v3' % (vr(V_FTR), L_QK))
    a('v_lshl_add_u32 v3, v2, 3, v5')
    a('v_lshlrev_b32 v3, 5, v3')
    a('v_lshl_add_u32 v3, v6, 3, v3')
    a('v_add_u32 %s, %d, v3' % (vr(V_OTR), L_O))
    a('v_and_b32 v3, 1, v1')
    a('v_lshl_add_u32 v3, v5, 1, v3')
    a('v_lshlrev_b32 v3, 5, v3')
    a('v_bfe_u32 v4, v1, 1, 1')
    a('v_lshl_add_u32 v3, v4, 2, v3')
    a('v_lshl_add_u32 v3, v2, 3, v3')
    a('s_lshl_b32 s%d, s%d, 9' % (S_T, S_WV))
    a('s_add_u32 s%d, s%d, %d' % (S_T, S_T, L_O))
    a('v_add_u32 %s, s%d, v3' % (vr(V_OW), S_T))
    a('v_lshrrev_b32 v3, 5, %s' % lane)
    a('v_lshlrev_b32 v3, 13, v3')
    a('v_and_b32 v4, 1, v2')
    a('v_lshl_add_u32 v3, v4, 7, v3')
    a('v_lshl_add_u32 v3, v1, 3, v3')
    a('s_lshl_b32 s%d, s%d, 14' % (S_T, S_WV))
    a('s_lshl_b32 s%d, s%d, 8' % (S_T + 1, S_H))
    a('s_add_u32 s%d, s%d, s%d' % (S_T, S_T, S_T + 1))
    a('v_add_u32 %s, s%d, v3' % (vr(V_H1ST), S_T))
    a('v_lshrrev_b32 v3, 2, %s' % lane)
    a('v_lshlrev_b32 v3, 8, v3')
    a('v_lshl_add_u32 v3, v6, 4, v3')
    a('s_lshl_b32 s%d, s%d, 13' % (S_T, S_H))
    a('s_lshl_b32 s%d, s%d, 6' % (S_T + 1, S_WV))
    a('s_add_u32 s%d, s%d, s%d' % (S_T, S_T, S_T + 1))
    a('v_add_u32 %s, s%d, v3' % (vr(V_H1LD), S_T))
    a('s_lshl_b32 s%d, s%d, 11' % (S_T, S_WV))
    a('v_add_u32 %s, s%d, %s' % (vr(V_H2LD), S_T, vr(V_L16)))
    a('v_lshlrev_b32 v3, 8, v2')
    a('v_and_b32 v4, 1, %s' % lane)
    a('v_lshl_add_u32 v3, v4, 5, v3')
    a('v_bfe_u32 v4, %s, 1, 1' % lane)
    a('v_lshl_add_u32 v3, v4, 2, v3')
    a('s_lshr_b32 s%d, s%d, 1' % (S_T, S_H))
    a('s_lshl_b32 s%d, s%d, 9' % (S_T, S_T))
    a('s_and_b32 s%d, s%d, 1' % (S_T + 1, S_H))
    a('s_lshl_b32 s%d, s%d, 7' % (S_T + 1, S_T + 1))
    a('s_add_u32 s%d, s%d, s%d' % (S_T, S_T, S_T + 1))
    a('s_lshr_b32 s%d, s%d, 1' % (S_T + 1, S_WV))
    a('s_lshl_b32 s%d, s%d, 6' % (S_T + 1, S_T + 1))
    a('s_add_u32 s%d, s%d, s%d' % (S_T, S_T, S_T + 1))
    a('s_and_b32 s%d, s%d, 1' % (S_T + 1, S_WV))
    a('s_lshl_b32 s%d, s%d, 3' % (S_T + 1, S_T + 1))
    a('s_add_u32 s%d, s%d, s%d' % (S_T, S_T, S_T + 1))
    a('v_add_u32 %s, s%d, v3' % (vr(V_H2ST), S_T))
    a('v_mov_b32 %s, 0x3f803f80' % vr(V_HONES))
    a('v_mov_b32 %s, 0' % vr(V_HONES + 1))
    a('v_and_b32 v3, 1, v1')
    a('v_lshlrev_b32 v3, 2, v3')
    a('v_lshl_add_u32 v3, v5, 1, v3')
    a('v_bfe_u32 v4, v1, 1, 1')
    a('v_add_u32 v3, v3, v4')
    a('v_cmp_gt_u32 vcc, 8, v1')
    a('v_mov_b32 v4, 99')
    a('v_cndmask_b32 v3, v4, v3, vcc')
    a('v_mov_b32 v8, 0x3f80')
    a('v_mov_b32 v9, 0x3f800000')
    a('v_mov_b32 v10, 0')
    for k in range(4):
        a('v_cmp_eq_u32 vcc, %d, v3' % (2 * k))
        a('v_cndmask_b32 v4, v10, v8, vcc')
        a('v_cmp_eq_u32 vcc, %d, v3' % (2 * k + 1))
        a('v_cndmask_b32 %s, v4, v9, vcc' % vr(V_SEL + k))
    a('s_lshl_b32 s%d, s%d, 4' % (S_T, S_WV))
    a('s_mov_b64 s[%d:%d], 0xffff' % (S_KMX, S_KMX + 1))
    a('s_lshl_b64 s[%d:%d], s[%d:%d], s%d' % (S_KMX, S_KMX + 1, S_KMX, S_KMX + 1, S_T))
    for par in range(2):
        for u in range(4):
            a('s_mov_b32 s%d, 0x%x' % (S_H1ST + par * 4 + u, H1_OFF + par * 262144 + u * 65536))
        for it in range(2):
            a('s_mov_b32 s%d, 0x%x' % (S_H1LD + par * 2 + it, H1_OFF + par * 262144 + it * 4096))
        a('s_mov_b32 s%d, 0x%x' % (S_H2 + par, H2_OFF + par * 8192))
    a('s_mov_b32 s%d, 0x00003f80' % S_ONELO)
    a('s_mov_b32 s%d, 0x3f800000' % S_ONEHI)
    a('s_mov_b32 s%d, 0x000f000f' % S_STMASK)
    a('s_mov_b32 s%d, 0' % (S_STMASK + 1))
    a('s_mov_b32 s%d, 0x%x' % (S_C, f32bits(SCALE_LOG2E)))
    a('s_mov_b32 s%d, 0' % S_HI32)
    a('s_mov_b32 s%d, -1' % (S_HI32 + 1))
    if fused:
        a('v_mov_b64 v[8:9], -1')
        a('v_mov_b64 v[10:11], -1')
        for par in range(2):
            for it in range(2):
                a('buffer_store_dwordx4 v[8:11], %s, s[%d:%d], s%d offen' % (vr(V_H1LD), S_WS, S_WS + 3, S_H1LD + par * 2 + it))
        a('s_mov_b64 exec, s[%d:%d]' % (S_STMASK, S_STMASK + 1))
        for par in range(2):
            a('buffer_store_dword v8, %s, s[%d:%d], s%d offen' % (vr(V_H2ST), S_WS, S_WS + 3, S_H2 + par))
            a('buffer_store_dword v8, %s, s[%d:%d], s%d offen offset:16' % (vr(V_H2ST), S_WS, S_WS + 3, S_H2 + par))
        a('s_mov_b64 exec, 7')
        a('s_lshl_b32 s%d, s%d, 7' % (S_T, S_H))
        a('s_add_u32 s%d, s%d, 0x%x' % (S_T, S_T, FLG_OFF))
        a('v_mov_b32 v9, s%d' % S_T)
        a('s_lshl_b32 s%d, s%d, 8' % (S_T, S_H))
        a('s_add_u32 s%d, s%d, 0x%x' % (S_T, S_T, FLG_OFF + 4096 - 128))
        a('v_lshlrev_b32 v10, 7, %s' % lane)
        a('v_add_u32 v10, s%d, v10' % S_T)
        a('v_cmp_eq_u32 vcc, 0, %s' % lane)
        a('v_cndmask_b32 v9, v10, v9, vcc')
        a('v_mov_b32 v8, 0')
        a('buffer_store_dword v8, v9, s[%d:%d], 0 offen sc1' % (S_WS, S_WS + 3))
        a('s_mov_b64 exec, -1')
        a('s_nop 1')
    a('v_and_b32 v60, 15, v0')
    a('v_lshrrev_b32 v61, 4, v0')
    a('v_lshlrev_b32 v62, 4, v60')
    a('v_lshl_add_u32 v63, v61, 13, v62')
    a('s_lshl_b32 s%d, s%d, 8' % (S_T, S_H))
    a('v_add_u32 v63, s%d, v63' % S_T)
    a('v_lshl_add_u32 v64, v61, 10, v62')
    a('s_lshl_b32 s%d, s%d, 17' % (S_T, S_H))
    a('v_add_u32 v64, s%d, v64' % S_T)
    a('v_lshl_add_u32 v65, v61, 8, v62')
    a('v_add_u32 v65, %d, v65' % L_STG)
    a('v_lshl_add_u32 v3, v2, 3, v5')
    a('v_lshlrev_b32 v3, 8, v3')
    a('v_lshl_add_u32 v3, v6, 3, v3')
    a('s_lshl_b32 s%d, s%d, 6' % (S_T, S_WV))
    a('s_add_u32 s%d, s%d, %d' % (S_T, S_T, L_STG))
    a('v_add_u32 v66, s%d, v3' % S_T)
    a('s_lshl_b32 s%d, s%d, 5' % (S_T, S_WV))
    a('s_add_u32 s%d, s%d, %d' % (S_T, S_T, L_STG))
    a('v_add_u32 v67, s%d, v3' % S_T)
    for i, m in enumerate((2, 3, 4, 5)):
        build_srd(a, 76 + 4 * i, P(m), 4194304)
    build_srd(a, S_W, P(1), 8192)
    chunks = []
    for m in range(3):
        for t in range(8):
            chunks.append((m, t, 0))
    for t2 in range(2):
        for cb in range(4):
            chunks.append((3, t2, cb))
    def issue_loads(ci):
        m, t, cb = chunks[ci]
        base = 8 + (ci % 3) * 16
        for i in range(4):
            if m < 3:
                off = (64 * t + 16 * i) * 8192
                a('s_mov_b32 s%d, 0x%x' % (S_T, off))
                a('buffer_load_dwordx4 %s, v63, s[%d:%d], s%d offen' % (vr(base + 4 * i, 4), 76 + 4 * m, 79 + 4 * m, S_T))
            else:
                off = (64 * t + 16 * i) * 1024 + cb * 256
                a('s_mov_b32 s%d, 0x%x' % (S_T, off))
                a('buffer_load_dwordx4 %s, v64, s[88:91], s%d offen' % (vr(base + 4 * i, 4), S_T))
    issue_loads(0); issue_loads(1)
    for ci, (m, t, cb) in enumerate(chunks):
        if ci + 2 < len(chunks):
            issue_loads(ci + 2)
            a('s_waitcnt vmcnt(8)')
        elif ci + 1 < len(chunks):
            a('s_waitcnt vmcnt(4)')
        else:
            a('s_waitcnt vmcnt(0)')
        base = 8 + (ci % 3) * 16
        sb = (ci % 2) * 16384
        for i in range(4):
            a('ds_write_b128 v65, %s offset:%d' % (vr(base + 4 * i, 4), sb + i * 4096))
        a('s_waitcnt lgkmcnt(0)')
        a('s_barrier')
        for u in range(2):
            if m == 0:
                dst = lambda k: ar((u * 8 + t) * 8 + k, 2)
                colo = 32 * u; addr = 'v66'
            elif m < 3:
                if u == 0:
                    dst = lambda k: ar(64 + 64 * m + t * 8 + k, 2)
                else:
                    dst = lambda k: vr(68 + k, 2)
                colo = 32 * u; addr = 'v66'
            else:
                dst = lambda k: vr(WO + ((2 * cb + u) * 2 + t) * 8 + k, 2)
                colo = 32 * u; addr = 'v66'
            for k, ro in enumerate((0, 4, 32, 36)):
                a('ds_read_b64_tr_b16 %s, %s offset:%d' % (dst(2 * k), addr, sb + ro * 256 + colo))
        if m in (1, 2):
            a('s_waitcnt lgkmcnt(0)')
            for hh in range(2):
                a('ds_write_b128 %s, %s offset:%d' % (vr(V_WVA), vr(68 + 4 * hh, 4), ((m - 1) * 8 + t) * 2048 + hh * 1024))
    a('s_waitcnt lgkmcnt(0)')
    a('s_barrier')
    if stamps:
        a('s_memrealtime s[96:97]')
        a('s_waitcnt lgkmcnt(0)')
        a('v_mov_b32 v3, s96')
        a('s_lshl_b32 s%d, s%d, 2' % (S_T, S_H))
        a('s_add_u32 s%d, s%d, s%d' % (S_T, S_T, S_WV))
        a('s_lshl_b32 s%d, s%d, 2' % (S_T, S_T))
        a('s_add_u32 s%d, s%d, 0x%x' % (S_T, S_T, STAMP_OFF + 0x100000))
        a('v_mov_b32 v4, 0')
        a('s_mov_b64 exec, 1')
        a('buffer_store_dword v3, v4, s[%d:%d], s%d offen' % (S_WS, S_WS + 3, S_T))
        a('s_mov_b64 exec, -1')
    a('s_lshl_b32 s%d, s%d, 13' % (S_KXP, S_H))
    a('s_add_u32 s%d, s%d, 0x%x' % (S_VXP, S_KXP, VX_OFF))
    a('s_lshl_b32 s%d, s%d, 12' % (S_KM, S_H))
    a('s_lshl_b32 s%d, s%d, 10' % (S_T, S_WV))
    a('s_add_u32 s%d, s%d, s%d' % (S_VM, S_KM, S_T))
    a('s_add_u32 s%d, s%d, 0x%x' % (S_VM, S_VM, VM_OFF))
    a('s_add_u32 s%d, s%d, 0x%x' % (S_KM, S_KM, KM_OFF))
    a('s_lshl_b32 s%d, s%d, 11' % (S_T, S_WV))
    a('s_add_u32 s%d, s%d, %d' % (S_M0A, S_T, L_KX))
    a('s_add_u32 s%d, s%d, %d' % (S_M0B, S_T, L_KX + 8192))
    a('s_mov_b32 s%d, 0x%x' % (S_DUMP, DBG_OFF))
    a('s_mov_b32 s%d, 0' % S_STEP)
    def prefetch_ops(par):
        return [
        's_mov_b32 m0, s%d' % (S_M0A if par == 0 else S_M0B),
        's_add_u32 s%d, s%d, 0x40000' % (S_T + 2, S_KXP),
        'buffer_load_dwordx4 %s, s[%d:%d], s%d offen%s lds' % (vr(V_H2LD), S_WS, S_WS + 3, S_KXP, SC),
        'buffer_load_dwordx4 %s, s[%d:%d], s%d offen offset:1024%s lds' % (vr(V_H2LD), S_WS, S_WS + 3, S_KXP, SC),
        'buffer_load_dwordx4 %s, %s, s[%d:%d], s%d offen%s' % (vr(VX + par * 8, 4), vr(V_H2LD), S_WS, S_WS + 3, S_VXP, SC),
        'buffer_load_dwordx4 %s, %s, s[%d:%d], s%d offen offset:1024%s' % (vr(VX + par * 8 + 4, 4), vr(V_H2LD), S_WS, S_WS + 3, S_VXP, SC),
        's_mov_b32 s%d, s%d' % (S_KXP, S_T + 2),
        's_add_u32 s%d, s%d, 0x40000' % (S_VXP, S_VXP)]
    def prefetch(par):
        for o in prefetch_ops(par): a(o)
    def rstamp(k):
        a('s_memrealtime s[96:97]')
        a('s_waitcnt lgkmcnt(0)')
        a('v_mov_b32 %s, s96' % vr(V_T0))
        a('s_lshl_b32 s%d, s%d, 2' % (S_T, S_H))
        a('s_add_u32 s%d, s%d, s%d' % (S_T, S_T, S_WV))
        a('s_lshl_b32 s%d, s%d, 2' % (S_T, S_T))
        a('s_add_u32 s%d, s%d, 0x%x' % (S_T, S_T, STAMP_OFF + 0x100000 + 0x1000 * k))
        a('v_mov_b32 %s, 0' % vr(V_T1))
        a('s_mov_b64 exec, 1')
        a('buffer_store_dword %s, %s, s[%d:%d], s%d offen' % (vr(V_T0), vr(V_T1), S_WS, S_WS + 3, S_T))
        a('s_mov_b64 exec, -1')
    def dbg_wait(tag, word, target):
        a('s_mov_b32 s%d, 0x200000' % S_CNT)
        a('v_mov_b32 %s, %s' % (vr(V_T1), word))
        a('%s_%s:' % (name, tag))
        a('buffer_load_dword %s, %s, s[%d:%d], 0 offen sc1' % (vr(V_BIAS), vr(V_T1), S_DBG, S_DBG + 3))
        a('s_waitcnt vmcnt(0)')
        a('v_readfirstlane_b32 s%d, %s' % (S_T + 3, vr(V_BIAS)))
        a('s_cmp_ge_u32 s%d, %d' % (S_T + 3, target))
        a('s_cbranch_scc1 %s_%s_ok' % (name, tag))
        a('s_sleep 2')
        a('s_sub_u32 s%d, s%d, 1' % (S_CNT, S_CNT))
        a('s_cbranch_scc0 %s_%s' % (name, tag))
        a('%s_%s_ok:' % (name, tag))
    def dbg_add(word):
        a('s_mov_b64 exec, 1')
        a('v_mov_b32 %s, %d' % (vr(V_T1), word * 4))
        a('v_mov_b32 %s, 1' % vr(V_T0))
        a('buffer_atomic_add %s, %s, s[%d:%d], 0 offen' % (vr(V_T0), vr(V_T1), S_DBG, S_DBG + 3))
        a('s_mov_b64 exec, -1')
    if fused:
        a('s_cmp_lg_u32 s%d, 0' % S_WV)
        a('s_cbranch_scc1 %s_noini' % name)
        dbg_add(20)
        a('%s_noini:' % name)
        dbg_wait('wini', '80', 32)
        dbg_wait('wkv0', '96', 64)
        a('v_mov_b32 %s, 0' % vr(V_BIAS))
        if stamps: rstamp(1)
    prefetch(0)
    R2 = VX + 8
    a('v_and_b32 v3, 1, v1')
    a('v_lshl_add_u32 v3, v5, 1, v3')
    a('v_lshlrev_b32 v3, 10, v3')
    a('v_lshl_add_u32 v3, v2, 5, v3')
    a('v_bfe_u32 v4, v1, 1, 1')
    a('v_lshl_add_u32 v3, v4, 2, v3')
    a('s_lshl_b32 s%d, s%d, 8' % (S_T, S_WV))
    a('v_add_u32 v3, s%d, v3' % S_T)
    for tt in range(2):
        for ip in range(4):
            a('buffer_load_dword %s, v3, s[%d:%d], 0 offen offset:%d' % (vr(R2 + tt * 4 + ip), S_W, S_W + 3, tt * 128 + ip * 8))
    for i in range(24):
        a('v_mov_b32 %s, 0' % vr(ACC + i))
    a('s_waitcnt vmcnt(0)')

    def stamp(k):
        if not stamps: return
        a('s_memtime s[%d:%d]' % (76 + 2 * k, 77 + 2 * k))
        if k != 8: return
        a('s_waitcnt lgkmcnt(0)')
        for kk in range(9):
            a('v_writelane_b32 %s, s%d, %d' % (vr(V_T0), 76 + 2 * kk, kk))
        a('s_lshl_b32 s%d, s%d, 2' % (S_T, S_H))
        a('s_add_u32 s%d, s%d, s%d' % (S_T, S_T, S_WV))
        a('s_lshl_b32 s%d, s%d, 6' % (S_T, S_T))
        a('s_add_u32 s%d, s%d, s%d' % (S_T, S_T, S_STEP))
        a('s_lshl_b32 s%d, s%d, 6' % (S_T, S_T))
        a('s_add_u32 s%d, s%d, 0x%x' % (S_T, S_T, STAMP_OFF))
        a('v_lshrrev_b32 %s, 2, %s' % (vr(V_T1), vr(V_L16)))
        a('s_mov_b64 exec, 0x1ff')
        a('buffer_store_dword %s, %s, s[%d:%d], s%d offen' % (vr(V_T0), vr(V_T1), S_WS, S_WS + 3, S_T))
        a('s_mov_b64 exec, -1')

    Q0, Q1, K0, K1, V0, V1 = [ACC + 4 * i for i in range(6)]
    T, T1 = V_T0, V_T1
    lds_n = [0]
    last_blocks = []
    def L(text):
        a(text); lds_n[0] += 1
        return lds_n[0] - 1
    lds_done = [-1]
    def LW(idx):
        if idx <= lds_done[0]:
            return
        n = lds_n[0] - idx - 1
        n = min(n, 14)
        idx = lds_n[0] - n - 1
        a('s_waitcnt lgkmcnt(%d)' % n)
        lds_done[0] = idx
    def poll(tag, R, loads, k=PK):
        a('s_mov_b32 s%d, 0x100000' % S_CNT)
        for i in range(k):
            for o in loads: a(o)
            if i < k - 1:
                a('s_nop 15')
                if PGAP > 1: a('s_nop 15')
        a('%s_%s:' % (name, tag))
        a('s_waitcnt vmcnt(%d)' % (2 * (k - 1)))
        a('v_max3_u32 %s, %s, %s, %s' % (vr(T), vr(R), vr(R + 1), vr(R + 2)))
        a('v_max3_u32 %s, %s, %s, %s' % (vr(T1), vr(R + 3), vr(R + 4), vr(R + 5)))
        a('v_max3_u32 %s, %s, %s, %s' % (vr(T), vr(R + 6), vr(R + 7), vr(T)))
        a('v_max_u32 %s, %s, %s' % (vr(T), vr(T), vr(T1)))
        a('v_cmp_eq_u32 vcc, -1, %s' % vr(T))
        a('s_cbranch_vccz %s_%sdone' % (name, tag))
        if PMASK: a('s_mov_b64 exec, vcc')
        for o in loads: a(o)
        a('s_sub_u32 s%d, s%d, 1' % (S_CNT, S_CNT))
        a('s_cbranch_scc0 %s_%s' % (name, tag))
        a('%s_%sdone:' % (name, tag))
        if PMASK: a('s_mov_b64 exec, -1')
    def step(par):
        fill = []
        def pop(n):
            for _ in range(n):
                if fill:
                    f = fill.pop(0)
                    if callable(f): f()
                    else: a(f)
        def smf(acc, t, breg):
            a('v_smfmac_f32_16x16x64_bf16 %s, %s, %s, %s' % (vr(acc, 4), vr(AF + 4 * t, 4), breg, vr(V_IDX)))
        frag_id = {}
        order = [0]
        def frag_ops(p):
            slot = WVS + (p % 4) * 8
            n = order[p] if p < 8 else p
            def r0(): L('ds_read_b128 %s, %s offset:%d' % (vr(slot, 4), vr(V_WVA), n * 2048))
            def r1(): frag_id[p] = L('ds_read_b128 %s, %s offset:%d' % (vr(slot + 4, 4), vr(V_WVA), n * 2048 + 1024))
            return [r0, r1]
        def slot_reg(p): return vr(WVS + (p % 4) * 8, 8)
        qkw_id = [None]
        def post_qk(Qr, Kr, tt):
            ops = []
            ops.append('v_add_f32 %s, %s, %s' % (vr(Kr), vr(Kr), vr(Kr + 2)))
            ops.append('v_add_f32 %s, %s, %s' % (vr(Kr + 1), vr(Kr + 1), vr(Kr + 3)))
            ops.append('v_add_f32 %s, %s, %s' % (vr(Qr), vr(Qr), vr(Qr + 2)))
            ops.append('v_add_f32 %s, %s, %s' % (vr(Qr + 1), vr(Qr + 1), vr(Qr + 3)))
            ops.append('v_cvt_pk_bf16_f32 %s, %s, %s' % (vr(Kr), vr(Kr), vr(Kr + 1)))
            ops.append('v_cvt_pk_bf16_f32 %s, %s, %s' % (vr(Kr + 1), vr(Qr), vr(Qr + 1)))
            def wr(): qkw_id[0] = L('ds_write_b64 %s, %s offset:%d' % (vr(V_QKW), vr(Kr, 2), tt * 512))
            ops.append(wr)
            return ops
        a('%s_top%d:' % (name, par))
        for w in range(1, 4):
            a('s_cmp_eq_u32 s%d, %d' % (S_WV, w))
            a('s_cbranch_scc1 %s_var%d_%d' % (name, w, par))
        base_n, base_done = lds_n[0], lds_done[0]
        for w in range(4):
            lds_n[0], lds_done[0] = base_n, base_done
            a('%s_var%d_%d:' % (name, w, par))
            own = [2 * w, 2 * w + 1]
            oth = [t for t in range(8) if t not in own]
            order[:] = own + oth
            RR = AF + 8 * w
            for p in range(4):
                for f in frag_ops(p): f()
            if par == 0:
                a('s_cmp_eq_u32 s%d, 0' % S_STEP)
                a('s_cbranch_scc1 %s_m0_%d' % (name, w))
            poll('p2_%d_%d' % (par, w), RR, [
                'buffer_load_dwordx4 %s, %s, s[%d:%d], s%d offen sc1' % (vr(RR, 4), vr(V_H2LD), S_WS, S_WS + 3, S_H2 + par),
                'buffer_load_dwordx4 %s, %s, s[%d:%d], s%d offen offset:1024 sc1' % (vr(RR + 4, 4), vr(V_H2LD), S_WS, S_WS + 3, S_H2 + par)])
            if par == 0:
                a('s_branch %s_m0done_%d' % (name, w))
                a('%s_m0_%d:' % (name, w))
                for i in range(4):
                    a('v_mov_b64 %s, %s' % (vr(RR + 2 * i, 2), vr(VX + 8 + 2 * i, 2)))
                a('%s_m0done_%d:' % (name, w))
            stamp(0)
            L('ds_write_b128 %s, %s offset:%d' % (vr(V_H2LD), vr(RR, 4), L_EX))
            wid = L('ds_write_b128 %s, %s offset:%d' % (vr(V_H2LD), vr(RR + 4, 4), L_EX + 1024))
            if dump:
                a('s_cmp_lg_u32 s%d, 0' % S_H)
                a('s_cbranch_scc1 %s_nodump_%d_%d' % (name, par, w))
                a('buffer_store_dwordx4 %s, %s, s[%d:%d], s%d offen' % (vr(RR, 4), vr(V_H2LD), S_WS, S_WS + 3, S_DUMP))
                a('buffer_store_dwordx4 %s, %s, s[%d:%d], s%d offen offset:1024' % (vr(RR + 4, 4), vr(V_H2LD), S_WS, S_WS + 3, S_DUMP))
                a('s_waitcnt vmcnt(0)')
                a('%s_nodump_%d_%d:' % (name, par, w))
                a('s_add_u32 s%d, s%d, 8192' % (S_DUMP, S_DUMP))
            def quad(t, p):
                smf(Q0, t, ar(t * 8, 8))
                smf(K0, t, ar(128 + t * 8, 8))
                smf(Q1, t, ar(64 + t * 8, 8))
                LW(frag_id[p])
                smf(K1, t, slot_reg(p))
            quad(own[0], 0)
            LW(wid)
            a('s_barrier')
            af_id = {}
            for t in oth:
                af_id[t] = L('ds_read_b128 %s, %s offset:%d' % (vr(AF + 4 * t, 4), vr(V_L16), L_EX + 1024 * t))
            quad(own[1], 1)
            if fused and w == 0:
                a('s_cmp_lg_u32 s%d, 0' % S_H)
                a('s_cbranch_scc1 %s_noprog%d' % (name, par))
                a('s_mov_b32 exec_hi, 0')
                a('v_lshlrev_b32 %s, 3, %s' % (vr(V_T1), vr(V_L16)))
                a('v_mov_b32 %s, s%d' % (vr(V_T0), S_STEP))
                a('s_mov_b32 s%d, 0x%x' % (S_T, FLG_OFF))
                a('buffer_store_dword %s, %s, s[%d:%d], s%d offen sc1' % (vr(V_T0), vr(V_T1), S_WS, S_WS + 3, S_T))
                a('s_mov_b64 exec, -1')
                a('%s_noprog%d:' % (name, par))
            for p in (4, 5):
                fill.extend(frag_ops(p))
            fill.extend(prefetch_ops(par ^ 1))
            for t in oth:
                LW(af_id[t])
                smf(Q0, t, ar(t * 8, 8))
                pop(2)
                smf(K0, t, ar(128 + t * 8, 8))
                pop(2)
            pop(99)
            for i, t in enumerate(oth):
                p = 2 + i
                smf(Q1, t, ar(64 + t * 8, 8))
                if i == 2:
                    fill.extend(post_qk(Q0, K0, 0))
                pop(2)
                LW(frag_id[p])
                smf(K1, t, slot_reg(p))
                for f in frag_ops(p + 4): f()
            pop(99)
            if w < 3:
                a('s_branch %s_join_%d' % (name, par))
        a('%s_join_%d:' % (name, par))
        stamp(1)
        kx_id = {}
        def kxr(j): kx_id[j] = L('ds_read_b128 %s, %s offset:%d' % (vr(AF + 4 * j, 4), vr(V_L16), L_KX + par * 8192 + 1024 * j))
        def vpair(t, npop=0):
            smf(V0, t, ar(192 + t * 8, 8))
            pop(npop)
            LW(frag_id[8 + t])
            smf(V1, t, slot_reg(8 + t))
            if t + 4 < 8:
                for f in frag_ops(8 + t + 4): f()
            kxr(t)
            pop(npop)
        vpair(0)
        for o in post_qk(Q1, K1, 1):
            if callable(o): o()
            else: a(o)
        vpair(1)
        smf(V0, 2, ar(192 + 2 * 8, 8))
        LW(qkw_id[0])
        a('s_barrier')
        F = ACC
        f_id = []
        for es in range(4):
            L('ds_read_b64_tr_b16 %s, %s offset:%d' % (vr(F + 4 * es, 2), vr(V_FTR), es * 1024))
            f_id.append(L('ds_read_b64_tr_b16 %s, %s offset:%d' % (vr(F + 4 * es + 2, 2), vr(V_FTR), es * 1024 + 512)))
        LW(frag_id[8 + 2])
        smf(V1, 2, slot_reg(8 + 2))
        for f in frag_ops(8 + 2 + 4): f()
        kxr(2)
        for t in range(3, 8):
            vpair(t)
        stamp(2)
        SM, SX0, SX1 = WVS, WVS + 4, WVS + 8
        VM = WVS + 24
        def smm(acc, areg, es):
            c = '0' if es == 0 else vr(acc, 4)
            a('v_mfma_f32_16x16x32_bf16 %s, %s, %s, %s' % (vr(acc, 4), areg, vr(F + 4 * es, 4), c))
        LW(max(f_id[3], kx_id[3]))
        exn = [0]
        def exports():
            exn[0] += 1
            tg = '%s_ex%d_%d' % (name, par, exn[0])
            for w in range(1, 4):
                a('s_cmp_eq_u32 s%d, %d' % (S_WV, w))
                a('s_cbranch_scc1 %s_%d' % (tg, w))
            for w in range(4):
                a('%s_%d:' % (tg, w))
                a('buffer_store_dwordx4 %s, %s, s[%d:%d], s%d offen offset:%d%s' % (vr(F + 4 * w, 4), vr(V_L16), S_WS, S_WS + 3, S_KM, w * 1024, SC))
                if w < 3: a('s_branch %s_e' % tg)
            a('%s_e:' % tg)
            a('buffer_store_dwordx4 %s, %s, s[%d:%d], s%d offen%s' % (vr(VM, 4), vr(V_L16), S_WS, S_WS + 3, S_VM, SC))
            a('s_add_u32 s%d, s%d, 0x20000' % (S_KM, S_KM))
            a('s_add_u32 s%d, s%d, 0x20000' % (S_VM, S_VM))
        for es in range(4):
            smm(SM, vr(F + 4 * es, 4), es)
            smm(SX0, vr(AF + 4 * es, 4), es)
            if es == 2:
                for i in range(4):
                    a('v_cvt_pk_bf16_f32 %s, %s, %s' % (vr(VM + i), vr(V0 + 2 * i), vr(V0 + 2 * i + 1)))
        LW(kx_id[7])
        for es in range(4):
            smm(SX1, vr(AF + 4 * (4 + es), 4), es)
            if es == 0:
                exports()
            if es == 1:
                a('s_cmp_eq_u32 s%d, %d' % (S_STEP, nsteps - 1))
                a('s_cbranch_scc1 %s_done' % name)
            if es == 2:
                a('v_max3_f32 %s, %s, %s, %s' % (vr(T), vr(SX0), vr(SX0 + 1), vr(SX0 + 2)))
                a('v_max3_f32 %s, %s, %s, %s' % (vr(T1), vr(SX0 + 3), vr(SM), vr(SM + 1)))
        stamp(3)
        for i in range(8):
            a('v_mov_b64 %s, 0' % vr(AF + 2 * i, 2))
        a('v_max3_f32 %s, %s, %s, %s' % (vr(T1), vr(SX1), vr(SX1 + 1), vr(T1)))
        a('v_max3_f32 %s, %s, %s, %s' % (vr(T), vr(SX1 + 2), vr(SX1 + 3), vr(T)))
        a('v_max_f32 %s, %s, %s' % (vr(T), vr(T), vr(T1)))
        a('v_mov_b32 %s, %s' % (vr(T1), vr(T)))
        a('v_mov_b64 %s, 0' % vr(AF + 16, 2))
        a('v_mov_b64 %s, 0' % vr(AF + 18, 2))
        a('v_permlane32_swap_b32 %s, %s' % (vr(T), vr(T1)))
        a('v_max_f32 %s, %s, %s' % (vr(T), vr(T), vr(T1)))
        a('v_mov_b32 %s, %s' % (vr(T1), vr(T)))
        a('v_mov_b64 %s, 0' % vr(AF + 20, 2))
        a('v_mov_b64 %s, 0' % vr(AF + 22, 2))
        a('v_permlane16_swap_b32 %s, %s' % (vr(T), vr(T1)))
        a('v_max_f32 %s, %s, %s' % (vr(T), vr(T), vr(T1)))
        a('v_mul_f32 %s, s%d, %s' % (vr(T), S_C, vr(T)))
        PX = WVS + 28; PM = WVS + 2
        LS, O0, O1 = WVS + 12, WVS + 16, WVS + 20
        for i in range(2):
            a('v_fma_f32 %s, %s, s%d, -%s' % (vr(SM + i), vr(SM + i), S_C, vr(T)))
        for i in range(2):
            a('v_exp_f32 %s, %s' % (vr(SM + i), vr(SM + i)))
        for i in range(4, 12):
            a('v_fma_f32 %s, %s, s%d, -%s' % (vr(WVS + i), vr(WVS + i), S_C, vr(T)))
        a('v_cvt_pk_bf16_f32 %s, %s, %s' % (vr(PM), vr(SM), vr(SM + 1)))
        a('v_cvt_pk_bf16_f32 %s, %s, %s' % (vr(PM + 1), vr(SM), vr(SM + 1)))
        a('v_exp_f32 %s, %s' % (vr(WVS + 4), vr(WVS + 4)))
        a('v_exp_f32 %s, %s' % (vr(WVS + 5), vr(WVS + 5)))
        a('v_mfma_f32_16x16x16_bf16 %s, %s, %s, 0' % (vr(LS, 4), vr(PM, 2), vr(V_HONES, 2)))
        a('v_exp_f32 %s, %s' % (vr(WVS + 6), vr(WVS + 6)))
        a('v_exp_f32 %s, %s' % (vr(WVS + 7), vr(WVS + 7)))
        a('v_mfma_f32_16x16x16_bf16 %s, %s, %s, 0' % (vr(O0, 4), vr(PM, 2), vr(VM, 2)))
        a('v_exp_f32 %s, %s' % (vr(WVS + 8), vr(WVS + 8)))
        a('v_exp_f32 %s, %s' % (vr(WVS + 9), vr(WVS + 9)))
        a('v_mfma_f32_16x16x16_bf16 %s, %s, %s, 0' % (vr(O1, 4), vr(PM, 2), vr(VM + 2, 2)))
        a('v_exp_f32 %s, %s' % (vr(WVS + 10), vr(WVS + 10)))
        a('v_exp_f32 %s, %s' % (vr(WVS + 11), vr(WVS + 11)))
        a('v_cvt_pk_bf16_f32 %s, %s, %s' % (vr(PX), vr(SX0), vr(SX0 + 1)))
        a('v_cvt_pk_bf16_f32 %s, %s, %s' % (vr(PX + 1), vr(SX0 + 2), vr(SX0 + 3)))
        a('v_cvt_pk_bf16_f32 %s, %s, %s' % (vr(PX + 2), vr(SX1), vr(SX1 + 1)))
        a('v_cvt_pk_bf16_f32 %s, %s, %s' % (vr(PX + 3), vr(SX1 + 2), vr(SX1 + 3)))
        stamp(4)
        a('v_mov_b64 %s, 0' % vr(AF + 24, 2))
        a('v_mov_b64 %s, 0' % vr(AF + 26, 2))
        a('v_mfma_f32_16x16x32_bf16 %s, %s, %s, %s' % (vr(LS, 4), vr(PX, 4), vr(V_ONES, 4), vr(LS, 4)))
        a('v_mov_b64 %s, 0' % vr(AF + 28, 2))
        a('v_mov_b64 %s, 0' % vr(AF + 30, 2))
        a('v_mfma_f32_16x16x32_bf16 %s, %s, %s, %s' % (vr(O0, 4), vr(PX, 4), vr(VX + par * 8, 4), vr(O0, 4)))
        a('v_mfma_f32_16x16x32_bf16 %s, %s, %s, %s' % (vr(O1, 4), vr(PX, 4), vr(VX + par * 8 + 4, 4), vr(O1, 4)))
        for i in range(2, 4):
            a('v_rcp_f32 %s, %s' % (vr(LS + i), vr(LS + i)))
        for tt, O in enumerate((O0, O1)):
            for i in range(2, 4):
                a('v_mul_f32 %s, %s, %s' % (vr(O + i), vr(O + i), vr(LS + i)))
            a('v_cvt_pk_bf16_f32 %s, %s, %s' % (vr(O), vr(O + 2), vr(O + 3)))
            L('ds_write_b32 %s, %s offset:%d' % (vr(V_OW), vr(O), 256 * tt))
        a('s_waitcnt lgkmcnt(0)')
        a('s_barrier')
        OA = ACC + 16
        oa_id = []
        for t2 in range(2):
            L('ds_read_b64_tr_b16 %s, %s offset:%d' % (vr(OA + 4 * t2, 2), vr(V_OTR), t2 * 1024))
            oa_id.append(L('ds_read_b64_tr_b16 %s, %s offset:%d' % (vr(OA + 4 * t2 + 2, 2), vr(V_OTR), t2 * 1024 + 128)))
        stamp(5)
        def post_wo(u):
            A0 = AF + 8 * u; A1 = A0 + 4
            ops = []
            for A in (A0, A1):
                ops.append('v_add_f32 %s, %s, %s' % (vr(A), vr(A), vr(A + 2)))
                ops.append('v_add_f32 %s, %s, %s' % (vr(A + 1), vr(A + 1), vr(A + 3)))
            ops.append('v_cvt_pk_bf16_f32 %s, %s, %s' % (vr(A0), vr(A0), vr(A0 + 1)))
            ops.append('v_cvt_pk_bf16_f32 %s, %s, %s' % (vr(A0 + 1), vr(A1), vr(A1 + 1)))
            ops.append('buffer_store_dwordx2 %s, %s, s[%d:%d], s%d offen' % (vr(A0, 2), vr(V_H1ST), S_WS, S_WS + 3, S_H1ST + par * 4 + u))
            return ops
        LW(oa_id[0])
        for u in range(4):
            for t2 in range(2):
                if u == 0 and t2 == 1: LW(oa_id[1])
                for k in range(2):
                    tt8 = 2 * u + k
                    a('v_smfmac_f32_16x16x64_bf16 %s, %s, %s, %s' % (vr(AF + 4 * tt8, 4), vr(OA + 4 * t2, 4), vr(WO + (tt8 * 2 + t2) * 8, 8), vr(V_IDX)))
                    if t2 == 1 and k == 0 and u > 0:
                        fill.extend(post_wo(u - 1))
                    if t2 == 1:
                        pop(4)
            pop(99)
        for i in range(8, 12):
            a('v_mov_b64 %s, 0' % vr(ACC + 2 * i, 2))
        for o in post_wo(3): a(o)
        for i in range(0, 8):
            a('v_mov_b64 %s, 0' % vr(ACC + 2 * i, 2))
        R1 = WVS
        stamp(6)
        poll('p1_%d' % par, R1, [
            'buffer_load_dwordx4 %s, %s, s[%d:%d], s%d offen sc1' % (vr(R1 + 4 * it, 4), vr(V_H1LD), S_WS, S_WS + 3, S_H1LD + par * 2 + it) for it in range(2)])
        stamp(7)
        RA = WVS + 8; RB = WVS + 12; SN = WVS + 16
        a('v_mfma_f32_16x16x32_bf16 %s, %s, %s, 0' % (vr(RA, 4), vr(V_SEL, 4), vr(R1, 4)))
        a('v_mfma_f32_16x16x32_bf16 %s, %s, %s, %s' % (vr(RA, 4), vr(V_SEL, 4), vr(R1 + 4, 4), vr(RA, 4)))
        a('v_mov_b64 %s, -1' % vr(SN, 2))
        a('v_mov_b64 %s, -1' % vr(SN + 2, 2))
        a('s_add_u32 s%d, s%d, 1' % (S_STEP, S_STEP))
        for i in range(4):
            a('v_add_f32_dpp %s, %s, %s row_ror:4 row_mask:0xf bank_mask:0xf' % (vr(RB + i), vr(RA + i), vr(RA + i)))
        for i in range(4):
            a('v_add_f32_dpp %s, %s, %s row_ror:8 row_mask:0xf bank_mask:0xf' % (vr(RA + i), vr(RB + i), vr(RB + i)))
        a('s_mov_b64 exec, s[%d:%d]' % (S_STMASK, S_STMASK + 1))
        a('v_cvt_pk_bf16_f32 %s, %s, %s' % (vr(RA), vr(RA), vr(RA + 1)))
        a('v_cvt_pk_bf16_f32 %s, %s, %s' % (vr(RA + 1), vr(RA + 2), vr(RA + 3)))
        a('buffer_store_dword %s, %s, s[%d:%d], s%d offen' % (vr(RA), vr(V_H2ST), S_WS, S_WS + 3, S_H2 + (par ^ 1)))
        a('buffer_store_dword %s, %s, s[%d:%d], s%d offen offset:16' % (vr(RA + 1), vr(V_H2ST), S_WS, S_WS + 3, S_H2 + (par ^ 1)))
        a('buffer_store_dword %s, %s, s[%d:%d], s%d offen' % (vr(SN), vr(V_H2ST), S_WS, S_WS + 3, S_H2 + par))
        a('buffer_store_dword %s, %s, s[%d:%d], s%d offen offset:16' % (vr(SN), vr(V_H2ST), S_WS, S_WS + 3, S_H2 + par))
        a('s_mov_b64 exec, -1')
        for it in range(2):
            a('buffer_store_dwordx4 %s, %s, s[%d:%d], s%d offen' % (vr(SN, 4), vr(V_H1LD), S_WS, S_WS + 3, S_H1LD + par * 2 + it))
        if fused:
            a('s_and_b32 s%d, s%d, 7' % (S_T, S_STEP))
            a('s_cmp_lg_u32 s%d, %d' % (S_T, 0 if par == 1 else 1))
            a('s_cbranch_scc1 %s_nokv%d' % (name, par))
            a('s_add_u32 s%d, s%d, %d' % (S_T, S_STEP, 8 if par == 1 else 7))
            a('s_lshr_b32 s%d, s%d, 3' % (S_T, S_T))
            a('s_lshl_b32 s%d, s%d, 2' % (S_T, S_T))
            a('s_add_u32 s%d, s%d, 96' % (S_T, S_T))
            if par == 1:
                a('v_mov_b32 %s, s%d' % (vr(V_T1), S_T))
                a('buffer_load_dword %s, %s, s[%d:%d], 0 offen sc1' % (vr(V_BIAS), vr(V_T1), S_DBG, S_DBG + 3))
            else:
                a('v_readfirstlane_b32 s%d, %s' % (S_T + 3, vr(V_BIAS)))
                a('s_cmp_ge_u32 s%d, 64' % (S_T + 3))
                a('s_cbranch_scc1 %s_nokv%d' % (name, par))
                dbg_wait('wkvn', 's%d' % S_T, 64)
            a('%s_nokv%d:' % (name, par))
        if stamps:
            a('s_sub_u32 s%d, s%d, 1' % (S_STEP, S_STEP))
            stamp(8)
            a('s_add_u32 s%d, s%d, 1' % (S_STEP, S_STEP))
    step(0)
    step(1)
    a('s_branch %s_top0' % name)
    for par, ex in last_blocks:
        a('%s_last%d:' % (name, par))
        ex()
        a('s_branch %s_done' % name)
    a('%s_done:' % name)
    a('s_waitcnt vmcnt(0)')
    if stamps: rstamp(2)
    if fused:
        a('s_barrier')
        a('s_cmp_lg_u32 s%d, 0' % S_WV)
        a('s_cbranch_scc1 %s_fin' % name)
        dbg_add(21)
        a('%s_fin:' % name)

def kernel_header(a, name):
    a.out.append('.globl %s' % name)
    a.out.append('.p2align 8')
    a.out.append('.type %s,@function' % name)
    a.out.append('%s:' % name)

def kernel_desc(name, vgpr=512, sgpr=102, accum=256):
    return '''.amdhsa_kernel %s
  .amdhsa_next_free_vgpr %d
  .amdhsa_next_free_sgpr %d
  .amdhsa_accum_offset %d
  .amdhsa_group_segment_fixed_size 0
  .amdhsa_kernarg_size 160
  .amdhsa_user_sgpr_count 2
  .amdhsa_user_sgpr_kernarg_segment_ptr 1
  .amdhsa_system_sgpr_workgroup_id_x 1
.end_amdhsa_kernel
''' % (name, vgpr, sgpr, accum)

def gen_init(a, name):
    kernel_header(a, name)
    a('s_cmp_ge_u32 s2, 33')
    a('s_cbranch_scc1 %s_end' % name)
    a('s_load_dwordx2 s[8:9], s[0:1], 152')
    a('s_waitcnt lgkmcnt(0)')
    build_srd(a, 4, 8, WS_BYTES)
    a('s_lshl_b32 s3, s2, 14')
    a('s_add_u32 s3, s3, 0x%x' % H1_OFF)
    a('v_lshlrev_b32 v1, 4, v0')
    for i in range(4):
        a('v_mov_b32 v%d, -1' % (4 + i))
    for i in range(4):
        a('s_add_u32 s10, s3, %d' % (i * 4096))
        a('buffer_store_dwordx4 v[4:7], v1, s[4:7], s10 offen')
    a('%s_end:' % name)
    a('s_endpgm')

def gen_chain_kernel(a, name, **kw):
    kernel_header(a, name)
    gen_role(a, name)
    a('s_cmp_gt_u32 s%d, 31' % S_H)
    a('s_cbranch_scc1 %s_exit' % name)
    gen_chain_body(a, name, **kw)
    a('%s_exit:' % name)
    a('s_endpgm')

if __name__ == '__main__':
    import sys
    a = Asm()
    hdr = '''; @launch kernel=init_kernel grid=(33,1,1) block=(256,1,1) lds=0
; @launch kernel=chain_kernel grid=(256,1,1) block=(256,1,1) lds=163840
.amdgcn_target "amdgcn-amd-amdhsa--gfx950"
.text
'''
    gen_init(a, 'init_kernel')
    gen_chain_kernel(a, 'chain_kernel', dump=('dump' in sys.argv), stamps=('stamps' in sys.argv))
    txt = hdr + a.text() + '.section .rodata,"a"\n.p2align 6\n' + kernel_desc('init_kernel', 16, 16, 16) + '.p2align 6\n' + kernel_desc('chain_kernel')
    open(sys.argv[1], 'w').write(txt)
    print('nops inserted', a.nops_inserted, 'lines', len(a.out))
```

```python
from asmgen import Asm, vr, ar, sr
from layout import *
from gen_chain import build_srd, kernel_header, kernel_desc

XROW = 1040
XBUF = 64 * XROW
G_LDS = 2 * XBUF
WSTG = XBUF

def gen_gemm_task(a, name, s_task, uid='', sc1=False):
    N = name + uid
    P = lambda i: 52 + 2 * i
    S_M, S_Hh, S_TB, S_W, S_T = 12, 13, 14, 15, 16
    if s_task is not None:
        a('s_mul_hi_u32 s%d, s%d, 0x%x' % (S_TB, s_task, (1 << 32) // 96 + 1))
        a('s_mul_i32 s%d, s%d, 96' % (S_T, S_TB))
        a('s_sub_u32 s%d, s%d, s%d' % (S_T, s_task, S_T))
        a('s_lshr_b32 s%d, s%d, 5' % (S_M, S_T))
        a('s_and_b32 s%d, s%d, 31' % (S_Hh, S_T))
        a('s_lshl_b32 s%d, s%d, 2' % (S_TB, S_TB))
        a('s_mov_b32 s33, 4')
    a('v_lshrrev_b32 v1, 6, v0')
    a('v_readfirstlane_b32 s%d, v1' % S_W)
    a('v_and_b32 v2, 63, v0')
    a('s_mov_b32 s8, s%d' % P(3)); a('s_mov_b32 s9, s%d' % (P(3) + 1))
    a('s_cmp_eq_u32 s%d, 1' % S_M)
    a('s_cselect_b32 s8, s%d, s8' % P(4)); a('s_cselect_b32 s9, s%d, s9' % (P(4) + 1))
    a('s_cmp_eq_u32 s%d, 2' % S_M)
    a('s_cselect_b32 s8, s%d, s8' % P(2)); a('s_cselect_b32 s9, s%d, s9' % (P(2) + 1))
    a('s_and_b32 s9, s9, 0xffff')
    a('s_mov_b32 s10, 0x400000')
    a('s_mov_b32 s11, 0x00020000')
    build_srd(a, 20, P(0), 2097152)
    a('v_and_b32 v106, 15, v0')
    a('v_lshrrev_b32 v107, 4, v0')
    a('v_lshlrev_b32 v108, 4, v106')
    a('v_lshl_add_u32 v109, v107, 13, v108')
    a('s_lshl_b32 s%d, s%d, 8' % (S_T, S_Hh))
    a('v_add_u32 v109, s%d, v109' % S_T)
    a('v_lshl_add_u32 v104, v107, 8, v108')
    a('v_add_u32 v104, %d, v104' % WSTG)
    a('v_lshrrev_b32 v3, 5, v2')
    a('v_bfe_u32 v4, v2, 2, 2')
    a('v_lshl_add_u32 v3, v3, 3, v4')
    a('v_lshlrev_b32 v3, 8, v3')
    a('v_bfe_u32 v4, v2, 4, 1')
    a('v_lshl_add_u32 v3, v4, 5, v3')
    a('v_and_b32 v4, 3, v2')
    a('v_lshl_add_u32 v3, v4, 3, v3')
    a('s_and_b32 s%d, s%d, 1' % (S_T, S_W))
    a('s_lshl_b32 s%d, s%d, 7' % (S_T, S_T))
    a('s_add_u32 s%d, s%d, %d' % (S_T, S_T, WSTG))
    a('v_add_u32 v105, s%d, v3' % S_T)
    a('v_and_b32 v3, 31, v2')
    a('s_lshr_b32 s%d, s%d, 1' % (S_T, S_W))
    a('s_lshl_b32 s%d, s%d, 5' % (S_T, S_T))
    a('v_add_u32 v3, s%d, v3' % S_T)
    a('v_mul_u32_u24 v3, %d, v3' % XROW)
    a('v_lshrrev_b32 v4, 5, v2')
    a('v_lshl_add_u32 v103, v4, 4, v3')
    a('v_lshlrev_b32 v102, 4, v2')
    a('v_and_b32 v3, 15, v2')
    a('v_lshl_add_u32 v3, v4, 4, v3')
    a('v_lshlrev_b32 v3, 4, v3')
    a('v_bfe_u32 v4, v2, 4, 1')
    a('s_cmp_eq_u32 s%d, 1' % S_M)
    a('s_cselect_b32 s%d, 10, 12' % S_T)
    a('v_lshlrev_b32 v4, s%d, v4' % S_T)
    a('v_add_u32 v100, v3, v4')
    a('s_mov_b32 s24, 0x%x' % KX_OFF)
    a('s_mov_b32 s25, 1024')
    a('s_cmp_eq_u32 s%d, 1' % S_M)
    a('s_cselect_b32 s24, 0x%x, s24' % VX_OFF)
    a('s_cselect_b32 s25, 2048, s25')
    a('s_cmp_eq_u32 s%d, 2' % S_M)
    a('s_cselect_b32 s24, 0x%x, s24' % QX_OFF)
    a('s_lshl_b32 s%d, s%d, 1' % (S_T, S_TB))
    a('s_lshr_b32 s%d, s%d, 1' % (S_T + 1, S_W))
    a('s_add_u32 s%d, s%d, s%d' % (S_T, S_T, S_T + 1))
    a('s_lshl_b32 s%d, s%d, 5' % (S_T, S_T))
    a('s_add_u32 s%d, s%d, s%d' % (S_T, S_T, S_Hh))
    a('s_lshl_b32 s%d, s%d, 13' % (S_T, S_T))
    a('s_add_u32 s24, s24, s%d' % S_T)
    a('s_and_b32 s%d, s%d, 1' % (S_T, S_W))
    a('s_lshl_b32 s%d, s%d, 1' % (S_T, S_T))
    a('s_mul_i32 s%d, s%d, s25' % (S_T, S_T))
    a('s_add_u32 s24, s24, s%d' % S_T)
    a('s_add_u32 s26, s24, s25')
    a('s_lshl_b32 s27, s%d, 16' % S_TB)
    a('s_lshl_b32 s%d, s%d, 14' % (S_T, S_W))
    a('s_add_u32 s27, s27, s%d' % S_T)
    a('s_mul_i32 s28, s%d, %d' % (S_W, 16 * XROW))
    def dma_tile(buf):
        a('s_add_u32 s30, s28, s29')
        for i in range(16):
            a('s_add_u32 m0, s30, %d' % (i * XROW))
            a('s_add_u32 s%d, s27, %d' % (S_T, i * 1024))
            a('buffer_load_dwordx4 v102, s[20:23], s%d offen lds' % S_T)
        a('s_add_u32 s27, s27, 65536')
        a('s_xor_b32 s29, s29, %d' % XBUF)
    a('s_mov_b32 s29, 0')
    a('s_barrier')
    deep = sc1
    if not deep: dma_tile(0)
    WB = 120 if deep else 8
    NB = 8 if deep else 3
    def issue_loads(ci):
        base = WB + (ci % NB) * 16
        for i in range(4):
            a('s_mov_b32 s%d, 0x%x' % (S_T, (64 * ci + 16 * i) * 8192))
            a('buffer_load_dwordx4 %s, v109, s[8:11], s%d offen' % (vr(base + 4 * i, 4), S_T))
    if deep:
        for ci in range(8): issue_loads(ci)
        dma_tile(0)
    else:
        issue_loads(0); issue_loads(1)
    for ci in range(8):
        if deep:
            a('s_waitcnt vmcnt(%d)' % (16 + 4 * (7 - ci)))
        elif ci + 2 < 8:
            issue_loads(ci + 2); a('s_waitcnt vmcnt(8)')
        elif ci + 1 < 8:
            a('s_waitcnt vmcnt(4)')
        else:
            a('s_waitcnt vmcnt(0)')
        base = WB + (ci % NB) * 16
        sb = (ci % 2) * 16384
        for i in range(4):
            a('ds_write_b128 v104, %s offset:%d' % (vr(base + 4 * i, 4), sb + i * 4096))
        a('s_waitcnt lgkmcnt(0)')
        a('s_barrier')
        for ct in range(2):
            for kk in range(4):
                for q in range(2):
                    a('ds_read_b64_tr_b16 %s, v105 offset:%d' % (ar((ct * 32 + ci * 4 + kk) * 4 + 2 * q, 2), sb + (16 * kk + 4 * q) * 256 + ct * 64))
    a('s_waitcnt lgkmcnt(0)')
    a('s_barrier')
    a('s_cmp_eq_u32 s%d, 1' % S_M)
    a('s_cbranch_scc1 %s_vpath' % N)
    for path in range(2):
        if path == 1:
            a('%s_vpath:' % N)
        a('s_mov_b32 s31, 1')
        a('s_mov_b32 s32, 0')
        a('s_waitcnt vmcnt(0)')
        a('%s_tl%d:' % (N, path))
        a('s_waitcnt vmcnt(4)')
        a('s_barrier')
        a('v_add_u32 v101, s32, v103')
        a('s_xor_b32 s32, s32, %d' % XBUF)
        xa = 'v101'
        NS = 8
        for ks in range(NS):
            a('ds_read_b128 %s, %s offset:%d' % (vr(32 + 4 * (ks % NS), 4), xa, ks * 32))
        a('s_cmp_eq_u32 s31, s33')
        a('s_cbranch_scc1 %s_nod%d' % (N, path))
        dma_tile(0)
        a('%s_nod%d:' % (N, path))
        for ks in range(32):
            a('s_waitcnt lgkmcnt(%d)' % min(NS - 1, 31 - ks))
            xf = vr(32 + 4 * (ks % NS), 4)
            for ct in range(2):
                wf = ar((ct * 32 + ks) * 4, 4)
                c = '0' if ks == 0 else vr(16 * ct, 16)
                if path == 0:
                    a('v_mfma_f32_32x32x16_bf16 %s, %s, %s, %s' % (vr(16 * ct, 16), wf, xf, c))
                else:
                    a('v_mfma_f32_32x32x16_bf16 %s, %s, %s, %s' % (vr(16 * ct, 16), xf, wf, c))
            if ks + NS < 32:
                a('ds_read_b128 %s, %s offset:%d' % (xf, xa, (ks + NS) * 32))
        for ct in range(2):
            b = 16 * ct
            o = 112 + 8 * ct
            for ch in range(2):
                a('v_cvt_pk_bf16_f32 %s, %s, %s' % (vr(o + 4 * ch), vr(b + 4 * ch), vr(b + 4 * ch + 1)))
                a('v_cvt_pk_bf16_f32 %s, %s, %s' % (vr(o + 4 * ch + 1), vr(b + 4 * ch + 2), vr(b + 4 * ch + 3)))
                a('v_cvt_pk_bf16_f32 %s, %s, %s' % (vr(o + 4 * ch + 2), vr(b + 8 + 4 * ch), vr(b + 8 + 4 * ch + 1)))
                a('v_cvt_pk_bf16_f32 %s, %s, %s' % (vr(o + 4 * ch + 3), vr(b + 8 + 4 * ch + 2), vr(b + 8 + 4 * ch + 3)))
                a('buffer_store_dwordx4 %s, v100, s[4:7], s%d offen offset:%d%s' % (vr(o + 4 * ch, 4), 24 if ct == 0 else 26, 512 * ch, ' sc1' if sc1 else ''))
        a('s_add_u32 s24, s24, 0x80000')
        a('s_add_u32 s26, s26, 0x80000')
        a('s_add_u32 s31, s31, 1')
        a('s_cmp_le_u32 s31, s33')
        a('s_cbranch_scc1 %s_tl%d' % (N, path))
        if path == 0:
            a('s_branch %s_end' % N)
    a('%s_end:' % N)

def load_ptrs(a):
    a('s_load_dwordx16 s[52:67], s[0:1], 0')
    a('s_load_dwordx2 s[50:51], s[0:1], 152')
    a('s_waitcnt lgkmcnt(0)')
    build_srd(a, 4, 50, WS_BYTES)

def gen_gemm_kernel(a, name):
    kernel_header(a, name)
    a('s_cmp_ge_u32 s2, 768')
    a('s_cbranch_scc1 %s_exit' % name)
    load_ptrs(a)
    a('s_cmp_ge_u32 s2, 33')
    a('s_cbranch_scc1 %s_noinit' % name)
    a('s_lshl_b32 s3, s2, 14')
    a('s_add_u32 s3, s3, 0x%x' % H1_OFF)
    a('v_lshlrev_b32 v1, 4, v0')
    for i in range(4):
        a('v_mov_b32 v%d, -1' % (4 + i))
    for i in range(4):
        a('s_add_u32 s10, s3, %d' % (i * 4096))
        a('buffer_store_dwordx4 v[4:7], v1, s[4:7], s10 offen')
    a('%s_noinit:' % name)
    a('s_mov_b32 s49, s2')
    gen_gemm_task(a, name, 49)
    a('%s_exit:' % name)
    a('s_endpgm')

if __name__ == '__main__':
    import sys
    a = Asm()
    hdr = '''; @launch kernel=gemm_kernel grid=(768,1,1) block=(256,1,1) lds=%d
.amdgcn_target "amdgcn-amd-amdhsa--gfx950"
.text
''' % G_LDS
    gen_gemm_kernel(a, 'gemm_kernel')
    txt = hdr + a.text() + '.section .rodata,"a"\n.p2align 6\n' + kernel_desc('gemm_kernel', 384, 102, 128)
    open(sys.argv[1], 'w').write(txt)
    print('nops inserted', a.nops_inserted, 'lines', len(a.out))
```

```python
from asmgen import Asm, vr, ar, sr
from layout import *
from gen_chain import build_srd, kernel_header, kernel_desc, f32bits
from gen_gemm import load_ptrs
from gen_attn import gen_simple_kernel

C_RH = 64; C_R1 = 4224; C_RL = 64 + 2 * 4224; C_XT = 17024; C_KG = C_XT + 4608; C_PT = C_KG + 8256; C_YT = C_PT + 2048; C_SZ = C_YT + 4096
S_LDS = 2 * C_SZ
BLOCKS = [(0,1),(64,1),(128,1),(192,1),(256,2),(384,2),(512,4),(768,4),(1024,8),(1536,8),(2048,0)]

def gen_ssm_task(a, name, s_task, uid='', sc1=False, stamps=False):
    def st(k):
        if stamps: a('s_memtime s[%d:%d]' % (84 + 2 * k, 85 + 2 * k))
    N = name + uid
    SC = ' sc1' if sc1 else ''
    S_W, S_T, S_CH, S_PW, S_D = 15, 16, 12, 13, 14
    a('v_lshrrev_b32 v1, 6, v0')
    a('v_readfirstlane_b32 s%d, v1' % S_W)
    a('v_and_b32 v2, 63, v0')
    a('s_lshr_b32 s%d, s%d, 1' % (S_CH, S_W))
    a('s_and_b32 s%d, s%d, 1' % (S_PW, S_W))
    a('s_lshl_b32 s%d, s%d, 1' % (S_D, s_task))
    a('s_add_u32 s%d, s%d, s%d' % (S_D, S_D, S_CH))
    a('s_load_dwordx16 s[68:83], s[0:1], 64')
    a('s_mul_i32 s20, s%d, %d' % (S_CH, C_SZ))
    build_srd(a, 8, 52, 2097152)
    a('s_waitcnt lgkmcnt(0)')
    a('s_barrier')
    st(0)
    a('v_lshlrev_b32 v3, 10, v0')
    a('s_lshl_b32 s%d, s%d, 2' % (S_T, s_task))
    a('v_add_u32 v3, s%d, v3' % S_T)
    for i in range(8):
        a('s_mov_b32 s%d, %d' % (S_T, i * 262144))
        a('buffer_load_dword %s, v3, s[8:11], s%d offen' % (vr(100 + i), S_T))
    a('v_lshlrev_b32 v4, 1, v2')
    a('s_lshl_b32 s%d, s%d, 8' % (S_T, S_D))
    a('v_add_u32 v4, s%d, v4' % S_T)
    for k in range(6):
        build_srd(a, 24, 68 + 2 * k, 131072)
        a('buffer_load_ushort %s, v4, s[24:27], 0 offen' % vr(10 + 2 * k))
        a('buffer_load_ushort %s, v4, s[24:27], 0 offen offset:128' % vr(11 + 2 * k))
    a('s_lshl_b32 s%d, s%d, 1' % (S_T, S_D))
    a('v_mov_b32 v5, s%d' % S_T)
    build_srd(a, 24, 80, 1024)
    a('buffer_load_ushort v22, v5, s[24:27], 0 offen')
    build_srd(a, 28, 82, 1024)
    a('buffer_load_ushort v23, v5, s[28:31], 0 offen')
    a('v_mov_b32 v6, 0')
    a('v_and_b32 v7, 127, v0')
    a('v_lshlrev_b32 v7, 2, v7')
    a('v_add_u32 v7, s20, v7')
    a('ds_write_b32 v7, v6 offset:%d' % C_XT)
    a('s_mov_b64 exec, 0xffff')
    a('v_lshlrev_b32 v8, 2, v2')
    a('v_add_u32 v8, s20, v8')
    for base in (C_RH, C_RL):
        a('ds_write_b32 v8, v6 offset:%d' % (base + 4096))
        a('ds_write_b32 v8, v6 offset:%d' % (base + C_R1 + 4092))
    a('s_mov_b64 exec, -1')
    a('v_lshlrev_b32 v9, 1, v0')
    a('s_waitcnt vmcnt(14)')
    for i in range(8):
        a('ds_write_b16 v9, %s offset:%d' % (vr(100 + i), C_XT + 512 + i * 512))
        a('ds_write_b16_d16_hi v9, %s offset:%d' % (vr(100 + i), C_SZ + C_XT + 512 + i * 512))
    a('s_waitcnt vmcnt(0)')
    for r in list(range(10, 24)):
        a('v_lshlrev_b32 %s, 16, %s' % (vr(r), vr(r)))
    a('v_mul_f32 v22, 0x3fb8aa3b, v22')
    a('v_exp_f32 v22, v22')
    a('v_cvt_pk_bf16_f32 v22, v22, v22')
    a('v_and_b32 v22, 0xffff0000, v22')
    for h in range(2):
        a('v_mul_f32 %s, v22, %s' % (vr(10 + h), vr(10 + h)))
        a('v_mul_f32 %s, 0x3fb8aa3b, %s' % (vr(10 + h), vr(10 + h)))
        a('v_mul_f32 %s, v22, %s' % (vr(12 + h), vr(12 + h)))
        a('v_mul_f32 %s, 0.15915494, %s' % (vr(12 + h), vr(12 + h)))
        a('v_mul_f32 %s, v22, %s' % (vr(14 + h), vr(14 + h)))
        a('v_mul_f32 %s, v22, %s' % (vr(16 + h), vr(16 + h)))
        a('v_mul_f32 v24, %s, %s' % (vr(18 + h), vr(14 + h)))
        a('v_mul_f32 v25, %s, %s' % (vr(18 + h), vr(16 + h)))
        a('v_fma_f32 %s, -%s, %s, v24' % (vr(26 + h), vr(20 + h), vr(16 + h)))
        a('v_fma_f32 %s, %s, %s, v25' % (vr(28 + h), vr(20 + h), vr(14 + h)))
    a('v_lshlrev_b32 v8, 4, v2')
    a('v_add_u32 v8, s20, v8')
    for h in range(2):
        a('v_mov_b32 v32, %s' % vr(10 + h))
        a('v_mov_b32 v33, %s' % vr(12 + h))
        a('v_mov_b32 v34, %s' % vr(26 + h))
        a('v_mov_b32 v35, %s' % vr(28 + h))
        a('ds_write_b128 v8, v[32:35] offset:%d' % (C_PT + 1024 * h))
    for h in range(2):
        a('v_mul_f32 %s, 0x45000000, %s' % (vr(36 + h), vr(10 + h)))
        a('v_mul_f32 %s, 0x45000000, %s' % (vr(38 + h), vr(12 + h)))
        a('v_exp_f32 %s, %s' % (vr(36 + h), vr(36 + h)))
        a('v_fract_f32 %s, %s' % (vr(38 + h), vr(38 + h)))
        a('v_cos_f32 %s, %s' % (vr(40 + h), vr(38 + h)))
        a('v_sin_f32 %s, %s' % (vr(38 + h), vr(38 + h)))
        a('v_mul_f32 %s, %s, %s' % (vr(40 + h), vr(26 + h), vr(40 + h)))
        a('v_fma_f32 %s, -%s, %s, %s' % (vr(40 + h), vr(28 + h), vr(38 + h), vr(40 + h)))
        a('v_mul_f32 %s, %s, %s' % (vr(40 + h), vr(36 + h), vr(40 + h)))
    a('v_add_f32 v40, v40, v41')
    for sh in (1, 2, 4, 8):
        a('v_mov_b32_dpp v41, v40 row_ror:%d row_mask:0xf bank_mask:0xf' % sh)
        a('v_add_f32 v40, v40, v41')
    a('v_mov_b32 v41, v40')
    a('v_permlane32_swap_b32 v40, v41')
    a('v_add_f32 v40, v40, v41')
    a('v_mov_b32 v41, v40')
    a('v_permlane16_swap_b32 v40, v41')
    a('v_add_f32 v40, v40, v41')
    a('v_mov_b32 v8, s20')
    a('ds_write_b32 v8, v40 offset:%d' % (C_KG + 8192))
    a('v_and_b32 v3, 15, v2')
    a('v_lshrrev_b32 v4, 4, v2')
    a('v_cvt_f32_u32 v30, v3')
    a('v_add_f32 v31, 0x41800000, v30')
    a('s_lshl_b32 s21, s%d, 10' % S_PW)
    a('v_cvt_f32_u32 v32, s21')
    a('v_fma_f32 v28, v30, 0x42000000, v32' if False else 's_mov_b32 s22, 0x42000000')
    a('v_fma_f32 v28, v30, s22, v32')
    a('v_fma_f32 v29, v31, s22, v32')
    a('v_lshlrev_b32 v9, 6, v4')
    a('v_add_u32 v9, s20, v9')
    a('v_add_u32 v9, %d, v9' % C_PT)
    DK = 32
    for i in range(8):
        a('v_mov_b64 %s, 0' % vr(DK + 2 * i, 2))
    a('s_waitcnt lgkmcnt(0)')
    a('s_barrier')
    st(1)
    PR = 48
    FH = 64
    FL = 80
    a('s_mov_b32 s21, 0')
    a('%s_kl:' % N)
    for m in range(4):
        a('ds_read_b128 %s, v9 offset:%d' % (vr(PR + 4 * m, 4), 16 * m))
    a('v_add_u32 v9, 256, v9')
    for f in range(4):
        lv = [28, 29, 30, 31][f]
        for m in range(4):
            if f == 0: a('s_waitcnt lgkmcnt(%d)' % (3 - m))
            a('v_mul_f32 %s, %s, %s' % (vr(96 + m), vr(PR + 4 * m), vr(lv)))
            a('v_mul_f32 %s, %s, %s' % (vr(100 + m), vr(PR + 4 * m + 1), vr(lv)))
        for m in range(4):
            a('v_exp_f32 %s, %s' % (vr(96 + m), vr(96 + m)))
            a('v_fract_f32 %s, %s' % (vr(100 + m), vr(100 + m)))
        for m in range(4):
            a('v_cos_f32 %s, %s' % (vr(104 + m), vr(100 + m)))
            a('v_sin_f32 %s, %s' % (vr(100 + m), vr(100 + m)))
        for m in range(4):
            c_, s_, E = 104 + m, 100 + m, 96 + m
            if f < 2:
                wr, wi = PR + 4 * m + 2, PR + 4 * m + 3
                a('v_mul_f32 v108, %s, %s' % (vr(wr), vr(c_)))
                a('v_mul_f32 v109, %s, %s' % (vr(wr), vr(s_)))
                a('v_fma_f32 v108, -%s, %s, v108' % (vr(wi), vr(s_)))
                a('v_fma_f32 v109, %s, %s, v109' % (vr(wi), vr(c_)))
                a('v_mul_f32 v108, %s, v108' % vr(E))
                a('v_mul_f32 v109, -%s, v109' % vr(E) if False else 'v_mul_f32_e64 v109, -%s, v109' % vr(E))
            else:
                a('v_mul_f32 v108, %s, %s' % (vr(E), vr(c_)))
                a('v_mul_f32 v109, %s, %s' % (vr(E), vr(s_)))
            hi = FH + 4 * f + m
            a('v_cvt_pk_bf16_f32 %s, v108, v109' % vr(hi))
            a('v_lshlrev_b32 v110, 16, %s' % vr(hi))
            a('v_and_b32 v111, 0xffff0000, %s' % vr(hi))
            a('v_sub_f32 v108, v108, v110')
            a('v_sub_f32 v109, v109, v111')
            a('v_cvt_pk_bf16_f32 %s, v108, v109' % vr(FL + 4 * f + m))
    for ta in range(2):
        for tb in range(2):
            d_ = vr(DK + (ta * 2 + tb) * 4, 4)
            for (x, y) in ((FH, FH), (FH, FL), (FL, FH)):
                a('v_mfma_f32_16x16x32_bf16 %s, %s, %s, %s' % (d_, vr(x + 4 * ta, 4), vr(y + 8 + 4 * tb, 4), d_))
    a('s_add_u32 s21, s21, 1')
    a('s_cmp_lt_u32 s21, 8')
    a('s_cbranch_scc1 %s_kl' % N)
    st(2)
    a('v_lshlrev_b32 v8, 9, v4')
    a('v_lshl_add_u32 v8, v3, 2, v8')
    a('s_lshl_b32 s21, s%d, 12' % S_PW)
    a('s_add_u32 s21, s21, s20')
    a('v_add_u32 v8, s21, v8')
    for ta in range(2):
        for tb in range(2):
            for r in range(4):
                a('ds_write_b32 v8, %s offset:%d' % (vr(DK + (ta * 2 + tb) * 4 + r), C_KG + ta * 2048 + r * 128 + tb * 64))
    a('s_waitcnt lgkmcnt(0)')
    a('s_barrier')
    a('v_and_b32 v7, 127, v0')
    for i in range(16):
        r = 60 + i
        a('v_add_u32 v8, %d, v7' % (128 * i))
        if i < 2:
            a('v_lshlrev_b32 v9, 2, v8')
        else:
            a('v_cvt_f32_u32 v9, v8')
            a('v_cvt_pk_bf16_f32 v9, v9, v9')
            a('v_and_b32 v9, 0xffff0000, v9')
            a('v_cvt_u32_f32 v9, v9')
            a('v_lshlrev_b32 v9, 2, v9')
        a('v_add_u32 v9, s20, v9')
        a('ds_read_b32 %s, v9 offset:%d' % (vr(r), C_KG))
    a('v_lshlrev_b32 v8, 1, v7')
    a('v_sub_u32 v8, %d, v8' % (4094 - 256 * 15))
    a('v_add_u32 v8, s20, v8')
    for i in range(16):
        r = 60 + i
        a('s_waitcnt lgkmcnt(%d)' % min(15, 15 - i + 2 * i if False else 15 - i))
        a('v_cvt_pk_bf16_f32 v9, %s, %s' % (vr(r), vr(r)))
        a('v_and_b32 v10, 0xffff0000, v9')
        a('v_sub_f32 v10, %s, v10' % vr(r))
        a('v_cvt_pk_bf16_f32 %s, v10, v10' % vr(r))
        a('v_mov_b32 %s, v9' % vr(80 + i))
    a('s_waitcnt lgkmcnt(0)')
    for i in range(16):
        for p in range(2):
            a('ds_write_b16 v8, %s offset:%d' % (vr(80 + i), C_RH + p * (C_R1 - 2) + 256 * (15 - i)))
            a('ds_write_b16 v8, %s offset:%d' % (vr(60 + i), C_RL + p * (C_R1 - 2) + 256 * (15 - i)))
    a('v_and_b32 v3, 15, v2')
    a('v_lshrrev_b32 v4, 4, v2')
    a('v_lshlrev_b32 v5, 4, v4')
    a('v_lshlrev_b32 v6, 1, v3')
    a('v_sub_u32 v5, v5, v6')
    a('v_add_u32 v5, %d, v5' % (C_RH + 4062 - 64 * 63))
    a('v_add_u32 v5, s20, v5')
    a('v_and_b32 v6, 1, v3')
    a('v_xor_b32 v6, 1, v6')
    a('v_mul_u32_u24 v6, %d, v6' % (C_R1 - 2))
    a('v_add_u32 v5, v5, v6')
    a('v_lshlrev_b32 v6, 5, v3')
    a('v_lshl_add_u32 v6, v4, 4, v6')
    a('v_add_u32 v6, %d, v6' % (C_XT + 480 - 448))
    a('v_add_u32 v6, s20, v6')
    a('v_lshlrev_b32 v7, 5, v3')
    a('v_lshl_add_u32 v7, v4, 3, v7')
    a('v_add_u32 v7, s20, v7')
    a('s_waitcnt lgkmcnt(0)')
    a('s_barrier')
    st(3)
    a('s_cmp_eq_u32 s%d, 1' % S_PW)
    a('s_cbranch_scc1 %s_cv1' % N)
    YA = 32; AR = 64; BR = 96
    for pw in range(2):
        if pw == 1: a('%s_cv1:' % N)
        cts = [0, 3, 4, 7] if pw == 0 else [1, 2, 5, 6]
        seq = []
        for D in range(64):
            use = [k for k, ct in enumerate(cts) if 8 * ct + 7 >= D]
            if not use: continue
            seq.append(('A', D))
            for k in use: seq.append(('B', D, k))
        n = [0]; done = [-1]; idm = {}
        def L(t):
            a(t); n[0] += 1; return n[0] - 1
        def LW(i):
            if i <= done[0]: return
            c = min(n[0] - i - 1, 14); a('s_waitcnt lgkmcnt(%d)' % c); done[0] = n[0] - c - 1
        bslot = {}; bc = [0]; curblk = [-1]
        def issue(item):
            if item[0] == 'A':
                D = item[1]; r = AR + (D % 3) * 8
                blk = (63 - D) // 8
                if curblk[0] != blk:
                    curblk[0] = blk
                    a('v_add_u32 v120, %d, v5' % (512 * blk))
                    a('v_add_u32 v121, %d, v5' % (512 * blk + C_RL - C_RH))
                o = 16 * ((63 - D) % 8)
                L('ds_read2_b32 %s, v120 offset0:%d offset1:%d' % (vr(r, 2), o, o + 1))
                L('ds_read2_b32 %s, v120 offset0:%d offset1:%d' % (vr(r + 2, 2), o + 2, o + 3))
                L('ds_read2_b32 %s, v121 offset0:%d offset1:%d' % (vr(r + 4, 2), o, o + 1))
                idm[item] = L('ds_read2_b32 %s, v121 offset0:%d offset1:%d' % (vr(r + 6, 2), o + 2, o + 3))
            else:
                _, D, k = item
                r = BR + (bc[0] % 6) * 4; bc[0] += 1; bslot[item] = r
                idm[item] = L('ds_read_b128 %s, v6 offset:%d' % (vr(r, 4), cts[k] * 512 - D * 64 + 448))
        LA = 5
        ptr = 0
        first = set()
        cons = [x for x in seq if x[0] == 'B']
        ci = 0
        for ci, item in enumerate(cons):
            while ptr < len(seq):
                nxt = seq[ptr]
                if nxt[0] == 'B' and cons.index(nxt) > ci + LA - 1: break
                if nxt[0] == 'A' and nxt[1] > item[1] + 2: break
                issue(nxt); ptr += 1
            _, D, k = item
            LW(idm[('A', D)]); LW(idm[item])
            r = AR + (D % 3) * 8
            y = vr(YA + 4 * k, 4)
            a('v_mfma_f32_16x16x32_bf16 %s, %s, %s, %s' % (y, vr(r, 4), vr(bslot[item], 4), y if k in first else '0'))
            first.add(k)
            a('v_mfma_f32_16x16x32_bf16 %s, %s, %s, %s' % (y, vr(r + 4, 4), vr(bslot[item], 4), y))
        for k, ct in enumerate(cts):
            a('ds_read_b64 %s, v7 offset:%d' % (vr(64 + 2 * k, 2), C_XT + 512 + ct * 512))
        for k, ct in enumerate(cts):
            a('s_waitcnt lgkmcnt(%d)' % (3 - k + k if False else 3))
            a('s_waitcnt lgkmcnt(0)')
            y = YA + 4 * k
            for h2 in range(2):
                a('v_cvt_pk_bf16_f32 v80, %s, %s' % (vr(y + 2 * h2), vr(y + 2 * h2 + 1)))
                a('v_lshlrev_b32 v81, 16, %s' % vr(64 + 2 * k + h2))
                a('v_and_b32 v82, 0xffff0000, %s' % vr(64 + 2 * k + h2))
                a('v_mul_f32 v81, v81, v23')
                a('v_mul_f32 v82, v82, v23')
                a('v_cvt_pk_bf16_f32 v81, v81, v82')
                a('v_lshlrev_b32 v82, 16, v80')
                a('v_and_b32 v80, 0xffff0000, v80')
                a('v_lshlrev_b32 v83, 16, v81')
                a('v_and_b32 v81, 0xffff0000, v81')
                a('v_add_f32 v82, v82, v83')
                a('v_add_f32 v80, v80, v81')
                a('v_cvt_pk_bf16_f32 %s, v82, v80' % vr(72 + 2 * k + h2))
            a('ds_write_b64 v7, %s offset:%d' % (vr(72 + 2 * k, 2), C_YT + ct * 512))
        if pw == 0: a('s_branch %s_cvend' % N)
    a('%s_cvend:' % N)
    st(4)
    a('s_waitcnt lgkmcnt(0)')
    a('s_barrier')
    a('v_and_b32 v7, 127, v0')
    a('v_lshlrev_b32 v7, 4, v7')
    a('v_add_u32 v9, s20, v7')
    a('ds_read_b128 v[32:35], v9 offset:%d' % C_YT)
    a('ds_read_b128 v[36:39], v9 offset:%d' % (C_YT + 2048))
    a('s_lshl_b32 s%d, s%d, 12' % (S_T, S_D))
    a('s_add_u32 s%d, s%d, 0x%x' % (S_T, S_T, BOUT_OFF))
    a('s_waitcnt lgkmcnt(1)')
    a('buffer_store_dwordx4 v[32:35], v7, s[4:7], s%d offen%s' % (S_T, SC))
    a('s_waitcnt lgkmcnt(0)')
    a('buffer_store_dwordx4 v[36:39], v7, s[4:7], s%d offen offset:2048%s' % (S_T, SC))
    if stamps:
        a('s_waitcnt vmcnt(0)')
        st(5)
        a('s_waitcnt lgkmcnt(0)')
        for k in range(6):
            a('v_writelane_b32 v40, s%d, %d' % (84 + 2 * k, k))
        a('s_lshl_b32 s16, s%d, 2' % s_task)
        a('s_add_u32 s16, s16, s%d' % S_W)
        a('s_lshl_b32 s16, s16, 5')
        a('s_add_u32 s16, s16, 0x%x' % STAMP_OFF)
        a('v_lshlrev_b32 v41, 2, v2')
        a('s_mov_b64 exec, 0x3f')
        a('buffer_store_dword v40, v41, s[4:7], s16 offen')
        a('s_mov_b64 exec, -1')

if __name__ == '__main__':
    import sys
    a = Asm()
    hdr = '''; @launch kernel=ssm_kernel grid=(256,1,1) block=(256,1,1) lds=%d
.amdgcn_target "amdgcn-amd-amdhsa--gfx950"
.text
''' % S_LDS
    gen_simple_kernel(a, 'ssm_kernel', 256, lambda a, n, t: gen_ssm_task(a, n, t, stamps=True))
    txt = hdr + a.text() + '.section .rodata,"a"\n.p2align 6\n' + kernel_desc('ssm_kernel', 128, 102, 128)
    open(sys.argv[1], 'w').write(txt)
    print('nops inserted', a.nops_inserted, 'lines', len(a.out))
```

```python
import sys
from asmgen import Asm, vr
from layout import *
import gen_chain, gen_gemm, gen_attn, gen_ssm, gen_attn2
from gen_chain import kernel_desc, kernel_header, S_DBG, S_H, S_WV
from gen_all_hdr import header

L_TK = 163840 - 16
import os
NTAIL = int(os.environ.get('NTAIL', '14'))
T_Q = 576; T_WOF = 864; T_SSM = 992; T_MO = 1248; T_AT = T_MO + (64 - NTAIL) * 4; T_END = T_AT + NTAIL * 24
def gen_main(a, name, stamps=False):
    kernel_header(a, name)
    a('s_cmp_ge_u32 s2, 256')
    a('s_cbranch_scc1 %s_exit' % name)
    gen_chain.gen_role(a, name)
    a('s_cmp_gt_u32 s%d, 31' % S_H)
    a('s_cbranch_scc1 %s_worker' % name)
    gen_chain.gen_chain_body(a, name, fused=True, stamps=stamps)
    a('s_branch %s_exit' % name)
    a('%s_worker:' % name)
    a('s_mov_b32 s48, s%d' % S_WV)
    a('s_mov_b32 s96, 0')
    a('s_mov_b32 s97, 0')
    gen_gemm.load_ptrs(a)
    def fetch():
        a('s_mov_b64 exec, 1')
        a('v_mov_b32 v253, 68')
        a('v_mov_b32 v254, 1')
        a('buffer_atomic_add v254, v253, s[%d:%d], 0 offen sc0' % (S_DBG, S_DBG + 3))
        a('s_mov_b64 exec, -1')
    a('s_cmp_lg_u32 s48, 0')
    a('s_cbranch_scc1 %s_loop' % name)
    fetch()
    a('%s_loop:' % name)
    a('v_mbcnt_lo_u32_b32 v0, -1, 0')
    a('v_mbcnt_hi_u32_b32 v0, -1, v0')
    a('s_lshl_b32 s16, s48, 6')
    a('v_add_u32 v0, s16, v0')
    a('v_mov_b32 v2, %d' % L_TK)
    a('s_cmp_lg_u32 s48, 0')
    a('s_cbranch_scc1 %s_tkw' % name)
    a('s_waitcnt vmcnt(0)')
    a('s_mov_b64 exec, 1')
    a('ds_write_b32 v2, v254')
    a('s_waitcnt lgkmcnt(0)')
    a('s_mov_b64 exec, -1')
    a('%s_tkw:' % name)
    a('s_barrier')
    a('ds_read_b32 v3, v2')
    a('s_waitcnt lgkmcnt(0)')
    a('v_readfirstlane_b32 s49, v3')
    a('s_barrier')
    a('s_mov_b32 s99, 0')
    a('s_cmp_lg_u32 s48, 0')
    a('s_cbranch_scc1 %s_nopf' % name)
    a('s_cmp_ge_u32 s49, %d' % (T_SSM - 224))
    a('s_cbranch_scc1 %s_nopf' % name)
    fetch()
    a('s_mov_b32 s99, 1')
    a('%s_nopf:' % name)
    a('s_cmp_ge_u32 s49, %d' % T_END)
    a('s_cbranch_scc1 %s_exit' % name)
    if stamps:
        a('s_memrealtime s[90:91]')
        a('s_lshl_b32 s98, s49, 4')
        a('s_add_u32 s98, s98, 0x%x' % (STAMP_OFF + 0x200000))
    a('s_mov_b32 s93, 1')
    a('s_cmp_ge_u32 s49, %d' % T_AT)
    a('s_cbranch_scc1 %s_t_attn' % name)
    a('s_cmp_ge_u32 s49, %d' % T_MO)
    a('s_cbranch_scc1 %s_t_mono' % name)
    a('s_cmp_ge_u32 s49, %d' % T_SSM)
    a('s_cbranch_scc1 %s_t_ssm' % name)
    a('s_cmp_ge_u32 s49, %d' % T_WOF)
    a('s_cbranch_scc1 %s_t_wof' % name)
    a('s_cmp_ge_u32 s49, %d' % T_Q)
    a('s_cbranch_scc1 %s_t_q' % name)
    a('s_lshr_b32 s16, s49, 6')
    a('s_bfe_u32 s12, s49, 0x10005')
    a('s_and_b32 s13, s49, 31')
    a('s_add_u32 s92, s16, 24')
    a('s_branch %s_t_g' % name)
    a('%s_t_q:' % name)
    a('s_sub_u32 s17, s49, %d' % T_Q)
    a('s_lshr_b32 s16, s17, 5')
    a('s_and_b32 s13, s17, 31')
    a('s_mov_b32 s12, 2')
    a('s_add_u32 s92, s16, 33')
    a('%s_t_g:' % name)
    a('s_lshl_b32 s14, s16, 2')
    a('s_sub_u32 s14, s14, 3')
    a('s_mov_b32 s33, 4')
    a('s_cmp_eq_u32 s16, 8')
    a('s_cselect_b32 s33, 3, s33')
    a('s_cmp_eq_u32 s16, 0')
    a('s_cselect_b32 s33, 1, s33')
    a('s_cselect_b32 s14, 0, s14')
    gen_gemm.gen_gemm_task(a, name + '_g', None, sc1=True)
    a('s_branch %s_sig' % name)
    a('%s_t_wof:' % name)
    a('s_sub_u32 s49, s49, %d' % T_WOF)
    a('s_mov_b32 s92, 18')
    gen_attn.gen_wof_task(a, name + '_w', 49, sc1=True)
    a('s_branch %s_sig' % name)
    a('%s_t_ssm:' % name)
    a('s_sub_u32 s49, s49, %d' % T_SSM)
    a('s_mov_b32 s92, 19')
    gen_ssm.gen_ssm_task(a, name + '_s', 49, sc1=True)
    a('s_branch %s_sig' % name)
    a('%s_t_mono:' % name)
    a('s_sub_u32 s49, s49, %d' % T_MO)
    a('s_lshr_b32 s16, s49, 2')
    gen_attn2.seg_block(a, 18, 16)
    gen_attn2.static_poll(a, name + '_md0', s_blk=18)
    gen_attn2.prog_poll(a, name + '_md1', 16)
    a('s_mov_b32 s92, 51')
    gen_attn.gen_attn_task(a, name + '_m', 49, sc1=False)
    a('s_branch %s_sig' % name)
    a('%s_t_attn:' % name)
    a('s_sub_u32 s49, s49, %d' % T_AT)
    a('s_mul_hi_u32 s12, s49, 0x%x' % ((1 << 32) // 24 + 1))
    a('s_mul_i32 s16, s12, 24')
    a('s_sub_u32 s13, s49, s16')
    a('s_add_u32 s12, s12, %d' % (64 - NTAIL))
    a('s_cmp_ge_u32 s13, 8')
    a('s_cbranch_scc1 %s_t_b' % name)
    a('s_lshl_b32 s92, s12, 7')
    a('s_add_u32 s92, s92, 0x%x' % (FLG_OFF + 4096))
    gen_attn2.gen_attnA(a, name + '_a', 12, 13, 48)
    a('s_branch %s_sig' % name)
    a('%s_t_b:' % name)
    a('s_sub_u32 s13, s13, 8')
    a('s_mov_b32 s92, 50')
    gen_attn2.gen_attnB(a, name + '_b', 12, 13, 48)
    a('%s_sig:' % name)
    a('s_waitcnt vmcnt(0)')
    a('s_barrier')
    a('s_cmp_lg_u32 s48, 0')
    a('s_cbranch_scc1 %s_loop' % name)
    a('s_mov_b64 exec, 1')
    a('v_mov_b32 v3, 1')
    a('s_cmp_ge_u32 s92, 64')
    a('s_cbranch_scc1 %s_sigws' % name)
    a('s_lshl_b32 s92, s92, 2')
    a('v_mov_b32 v2, s92')
    a('buffer_atomic_add v3, v2, s[%d:%d], 0 offen' % (S_DBG, S_DBG + 3))
    a('s_branch %s_sige' % name)
    a('%s_sigws:' % name)
    a('v_mov_b32 v2, s92')
    a('buffer_atomic_add v3, v2, s[4:7], 0 offen')
    a('%s_sige:' % name)
    if stamps:
        a('s_memrealtime s[94:95]')
        a('s_waitcnt lgkmcnt(0)')
        a('v_mov_b32 v4, s90')
        a('v_mov_b32 v5, s94')
        a('v_mov_b32 v6, 0')
        a('v_mov_b32 v7, s2')
        a('v_mov_b32 v2, 0')
        a('buffer_store_dwordx4 v[4:7], v2, s[4:7], s98 offen')
    a('s_mov_b64 exec, -1')
    a('s_cmp_eq_u32 s99, 1')
    a('s_cbranch_scc1 %s_loop' % name)
    fetch()
    a('s_branch %s_loop' % name)
    a('%s_exit:' % name)
    a('s_endpgm')

if __name__ == '__main__':
    a = Asm()
    hdr = header() + '''; @launch kernel=main_kernel grid=(256,1,1) block=(256,1,1) lds=163840
.amdgcn_target "amdgcn-amd-amdhsa--gfx950"
.text
'''
    gen_main(a, 'main_kernel', stamps=('stamps' in sys.argv))
    txt = hdr + a.text() + '.section .rodata,"a"\n.p2align 6\n' + kernel_desc('main_kernel', 512, 102, 256)
    open(sys.argv[1], 'w').write(txt)
    print('lines', len(a.out), 'bytes', len(txt))
```

```python
from asmgen import Asm, vr, ar, sr
from layout import *

L_WV = 32768
L_KX = 0
L_EX = L_KX + 16384
L_QK = L_EX + 8192
L_O = L_QK + 4096
L_MISC = L_O + 2048
LDS_BYTES = 163840
L_STG = 0

AF = 0
ACC = 32
WVS = 56
VX = 88
V_IDX = 104
V_T0 = 105
V_ONES = 106
V_HONES = 110
V_SEL = 112
V_L16 = 116
V_WVA = 117
V_QKW = 118
V_FTR = 119
V_OW = 120
V_OTR = 121
V_H1ST = 122
V_H1LD = 123
V_H2LD = 124
V_H2ST = 125
V_BIAS = 126
V_T1 = 127
V_LANE = 7
WV1 = 128
WO = 192

S_WS = 4
S_W = 8
S_H = 12
S_WV = 13
S_STEP = 14
S_T = 15
S_H1ST = 20
S_H1LD = 28
S_H2 = 32
S_KXP = 34
S_VXP = 35
S_KM = 36
S_VM = 37
S_ONELO = 38
S_ONEHI = 39
S_STMASK = 40
S_C = 42
S_CNT = 43
S_DBG = 44
S_HI32 = 48
S_PTR = 50
S_DUMP = 66
S_M0A = 67
S_M0B = 68
S_TS = 70
S_KMX = 72
S_FLG = 74

import os
PK = int(os.environ.get('PK', '1')); PGAP = int(os.environ.get('PGAP', '1')); PMASK = int(os.environ.get('PMASK', '1'))
PD1 = int(os.environ.get('PD1', '0')); PD2 = int(os.environ.get('PD2', '0'))
SCALE_LOG2E = 0.08838834764831845 * 1.4426950408889634

def f32bits(x):
    import struct
    return struct.unpack('<I', struct.pack('<f', x))[0]

def build_srd(a, d, ptr_lo, nbytes):
    a('s_mov_b32 s%d, s%d' % (d, ptr_lo))
    a('s_and_b32 s%d, s%d, 0xffff' % (d + 1, ptr_lo + 1))
    a('s_mov_b32 s%d, 0x%x' % (d + 2, nbytes))
    a('s_mov_b32 s%d, 0x00020000' % (d + 3))

def gen_role(a, name):
    a('s_load_dwordx2 s[%d:%d], s[0:1], 144' % (S_T + 1, S_T + 2))
    a('s_getreg_b32 s%d, hwreg(HW_REG_XCC_ID)' % S_T)
    a('s_and_b32 s%d, s%d, 15' % (S_T, S_T))
    a('s_waitcnt lgkmcnt(0)')
    build_srd(a, S_DBG, S_T + 1, 256)
    a('v_lshrrev_b32 v1, 6, v0')
    a('v_readfirstlane_b32 s%d, v1' % S_WV)
    a('v_and_b32 %s, 63, v0' % vr(V_LANE))
    a('s_cmp_lg_u32 s%d, 0' % S_WV)
    a('s_cbranch_scc1 %s_role_wait' % name)
    a('s_mov_b64 exec, 1')
    a('s_lshl_b32 s%d, s%d, 2' % (S_T + 3, S_T))
    a('v_mov_b32 v2, s%d' % (S_T + 3))
    a('v_mov_b32 v3, 1')
    a('buffer_atomic_add v3, v2, s[%d:%d], 0 offen sc0' % (S_DBG, S_DBG + 3))
    a('s_waitcnt vmcnt(0)')
    a('v_readfirstlane_b32 s%d, v3' % (S_T + 3))
    a('s_mov_b32 s%d, 99' % S_H)
    a('s_cmp_gt_u32 s%d, 31' % (S_T + 3))
    a('s_cbranch_scc1 %s_role_pub' % name)
    a('s_cmp_lg_u32 s%d, 31' % (S_T + 3))
    a('s_cbranch_scc1 %s_role_poll' % name)
    a('s_add_u32 s%d, s%d, 1' % (S_T + 4, S_T))
    a('v_mov_b32 v4, s%d' % (S_T + 4))
    a('v_mov_b32 v5, 0')
    a('v_mov_b32 v2, 64')
    a('buffer_atomic_cmpswap v[4:5], v2, s[%d:%d], 0 offen' % (S_DBG, S_DBG + 3))
    a('s_waitcnt vmcnt(0)')
    a('%s_role_poll:' % name)
    a('s_mov_b32 s%d, 0x400000' % S_CNT)
    a('v_mov_b32 v2, 64')
    a('%s_role_poll_loop:' % name)
    a('buffer_load_dword v4, v2, s[%d:%d], 0 offen sc1' % (S_DBG, S_DBG + 3))
    a('s_waitcnt vmcnt(0)')
    a('v_readfirstlane_b32 s%d, v4' % (S_T + 4))
    a('s_sub_u32 s%d, s%d, 1' % (S_CNT, S_CNT))
    a('s_cmp_eq_u32 s%d, 0' % S_CNT)
    a('s_cbranch_scc1 %s_role_pub' % name)
    a('s_cmp_eq_u32 s%d, 0' % (S_T + 4))
    a('s_cbranch_scc1 %s_role_poll_loop' % name)
    a('s_sub_u32 s%d, s%d, 1' % (S_T + 4, S_T + 4))
    a('s_cmp_lg_u32 s%d, s%d' % (S_T + 4, S_T))
    a('s_cbranch_scc1 %s_role_pub' % name)
    a('s_mov_b32 s%d, s%d' % (S_H, S_T + 3))
    a('%s_role_pub:' % name)
    a('v_mov_b32 v2, %d' % L_MISC)
    a('v_mov_b32 v3, s%d' % S_H)
    a('ds_write_b32 v2, v3')
    a('s_waitcnt lgkmcnt(0)')
    a('s_mov_b64 exec, -1')
    a('%s_role_wait:' % name)
    a('s_barrier')
    a('v_mov_b32 v2, %d' % L_MISC)
    a('ds_read_b32 v3, v2')
    a('s_waitcnt lgkmcnt(0)')
    a('v_readfirstlane_b32 s%d, v3' % S_H)
    a('s_barrier')

def gen_chain_body(a, name, nsteps=64, dump=False, stamps=False, fused=False):
    SC = ' sc1' if fused else ''
    lane = vr(V_LANE)
    if stamps: a('s_memrealtime s[94:95]')
    a('s_load_dwordx16 s[%d:%d], s[0:1], 0' % (S_PTR + 2, S_PTR + 17))
    a('s_load_dwordx2 s[%d:%d], s[0:1], 152' % (S_PTR, S_PTR + 1))
    a('s_waitcnt lgkmcnt(0)')
    P = lambda i: S_PTR + 2 + 2 * i
    build_srd(a, S_WS, S_PTR, WS_BYTES)
    a('v_and_b32 v1, 15, %s' % lane)
    a('v_lshrrev_b32 v2, 4, %s' % lane)
    a('v_lshlrev_b32 %s, 4, %s' % (vr(V_L16), lane))
    a('v_and_b32 v3, 2, v1')
    a('v_cmp_eq_u32 vcc, 0, v3')
    a('v_mov_b32 v3, 0xeeee')
    a('v_mov_b32 v4, 0x4444')
    a('v_cndmask_b32 %s, v3, v4, vcc' % vr(V_IDX))
    for i in range(4):
        a('v_mov_b32 %s, 0x3f803f80' % vr(V_ONES + i))
    a('v_cmp_gt_u32 vcc, 32, %s' % lane)
    a('v_mov_b32 v3, 0xff800000')
    a('v_mov_b32 v4, 0')
    a('v_cndmask_b32 %s, v3, v4, vcc' % vr(V_BIAS))
    a('s_lshl_b32 s%d, s%d, 15' % (S_T, S_WV))
    a('s_add_u32 s%d, s%d, %d' % (S_T, S_T, L_WV))
    a('v_add_u32 %s, s%d, %s' % (vr(V_WVA), S_T, vr(V_L16)))
    a('s_lshl_b32 s%d, s%d, 10' % (S_T, S_WV))
    a('s_add_u32 s%d, s%d, %d' % (S_T, S_T, L_QK))
    a('v_lshlrev_b32 v3, 5, v1')
    a('v_lshl_add_u32 v3, v2, 3, v3')
    a('v_add_u32 %s, s%d, v3' % (vr(V_QKW), S_T))
    a('v_lshrrev_b32 v5, 2, v1')
    a('v_and_b32 v6, 3, v1')
    a('v_lshl_add_u32 v3, v2, 2, v5')
    a('v_lshlrev_b32 v3, 5, v3')
    a('v_lshl_add_u32 v3, v6, 3, v3')
    a('v_add_u32 %s, %d, v3' % (vr(V_FTR), L_QK))
    a('v_lshl_add_u32 v3, v2, 3, v5')
    a('v_lshlrev_b32 v3, 5, v3')
    a('v_lshl_add_u32 v3, v6, 3, v3')
    a('v_add_u32 %s, %d, v3' % (vr(V_OTR), L_O))
    a('v_and_b32 v3, 1, v1')
    a('v_lshl_add_u32 v3, v5, 1, v3')
    a('v_lshlrev_b32 v3, 5, v3')
    a('v_bfe_u32 v4, v1, 1, 1')
    a('v_lshl_add_u32 v3, v4, 2, v3')
    a('v_lshl_add_u32 v3, v2, 3, v3')
    a('s_lshl_b32 s%d, s%d, 9' % (S_T, S_WV))
    a('s_add_u32 s%d, s%d, %d' % (S_T, S_T, L_O))
    a('v_add_u32 %s, s%d, v3' % (vr(V_OW), S_T))
    a('v_lshrrev_b32 v3, 5, %s' % lane)
    a('v_lshlrev_b32 v3, 13, v3')
    a('v_and_b32 v4, 1, v2')
    a('v_lshl_add_u32 v3, v4, 7, v3')
    a('v_lshl_add_u32 v3, v1, 3, v3')
    a('s_lshl_b32 s%d, s%d, 14' % (S_T, S_WV))
    a('s_lshl_b32 s%d, s%d, 8' % (S_T + 1, S_H))
    a('s_add_u32 s%d, s%d, s%d' % (S_T, S_T, S_T + 1))
    a('v_add_u32 %s, s%d, v3' % (vr(V_H1ST), S_T))
    a('v_lshrrev_b32 v3, 2, %s' % lane)
    a('v_lshlrev_b32 v3, 8, v3')
    a('v_lshl_add_u32 v3, v6, 4, v3')
    a('s_lshl_b32 s%d, s%d, 13' % (S_T, S_H))
    a('s_lshl_b32 s%d, s%d, 6' % (S_T + 1, S_WV))
    a('s_add_u32 s%d, s%d, s%d' % (S_T, S_T, S_T + 1))
    a('v_add_u32 %s, s%d, v3' % (vr(V_H1LD), S_T))
    a('s_lshl_b32 s%d, s%d, 11' % (S_T, S_WV))
    a('v_add_u32 %s, s%d, %s' % (vr(V_H2LD), S_T, vr(V_L16)))
    a('v_lshlrev_b32 v3, 8, v2')
    a('v_and_b32 v4, 1, %s' % lane)
    a('v_lshl_add_u32 v3, v4, 5, v3')
    a('v_bfe_u32 v4, %s, 1, 1' % lane)
    a('v_lshl_add_u32 v3, v4, 2, v3')
    a('s_lshr_b32 s%d, s%d, 1' % (S_T, S_H))
    a('s_lshl_b32 s%d, s%d, 9' % (S_T, S_T))
    a('s_and_b32 s%d, s%d, 1' % (S_T + 1, S_H))
    a('s_lshl_b32 s%d, s%d, 7' % (S_T + 1, S_T + 1))
    a('s_add_u32 s%d, s%d, s%d' % (S_T, S_T, S_T + 1))
    a('s_lshr_b32 s%d, s%d, 1' % (S_T + 1, S_WV))
    a('s_lshl_b32 s%d, s%d, 6' % (S_T + 1, S_T + 1))
    a('s_add_u32 s%d, s%d, s%d' % (S_T, S_T, S_T + 1))
    a('s_and_b32 s%d, s%d, 1' % (S_T + 1, S_WV))
    a('s_lshl_b32 s%d, s%d, 3' % (S_T + 1, S_T + 1))
    a('s_add_u32 s%d, s%d, s%d' % (S_T, S_T, S_T + 1))
    a('v_add_u32 %s, s%d, v3' % (vr(V_H2ST), S_T))
    a('v_mov_b32 %s, 0x3f803f80' % vr(V_HONES))
    a('v_mov_b32 %s, 0' % vr(V_HONES + 1))
    a('v_and_b32 v3, 1, v1')
    a('v_lshlrev_b32 v3, 2, v3')
    a('v_lshl_add_u32 v3, v5, 1, v3')
    a('v_bfe_u32 v4, v1, 1, 1')
    a('v_add_u32 v3, v3, v4')
    a('v_cmp_gt_u32 vcc, 8, v1')
    a('v_mov_b32 v4, 99')
    a('v_cndmask_b32 v3, v4, v3, vcc')
    a('v_mov_b32 v8, 0x3f80')
    a('v_mov_b32 v9, 0x3f800000')
    a('v_mov_b32 v10, 0')
    for k in range(4):
        a('v_cmp_eq_u32 vcc, %d, v3' % (2 * k))
        a('v_cndmask_b32 v4, v10, v8, vcc')
        a('v_cmp_eq_u32 vcc, %d, v3' % (2 * k + 1))
        a('v_cndmask_b32 %s, v4, v9, vcc' % vr(V_SEL + k))
    a('s_mov_b32 s%d, 0' % (S_KMX + 1))
    a('s_cmp_eq_u32 s%d, 0' % S_H)
    a('s_cselect_b32 s%d, -1, 1' % S_KMX)
    a('s_lshl_b32 s%d, s%d, 7' % (S_T, S_H))
    a('s_add_u32 s%d, s%d, 0x%x' % (S_T, S_T, FLG_OFF + 16384))
    a('s_cmp_eq_u32 s%d, 0' % S_H)
    a('s_cselect_b32 s%d, 0x%x, s%d' % (S_FLG, FLG_OFF, S_T))
    for par in range(2):
        for u in range(4):
            a('s_mov_b32 s%d, 0x%x' % (S_H1ST + par * 4 + u, H1_OFF + par * 262144 + u * 65536))
        for it in range(2):
            a('s_mov_b32 s%d, 0x%x' % (S_H1LD + par * 2 + it, H1_OFF + par * 262144 + it * 4096))
        a('s_mov_b32 s%d, 0x%x' % (S_H2 + par, H2_OFF + par * 8192))
    a('s_mov_b32 s%d, 0x00003f80' % S_ONELO)
    a('s_mov_b32 s%d, 0x3f800000' % S_ONEHI)
    a('s_mov_b32 s%d, 0x000f000f' % S_STMASK)
    a('s_mov_b32 s%d, 0' % (S_STMASK + 1))
    a('s_mov_b32 s%d, 0x%x' % (S_C, f32bits(SCALE_LOG2E)))
    a('s_mov_b32 s%d, 0' % S_HI32)
    a('s_mov_b32 s%d, -1' % (S_HI32 + 1))
    if fused:
        a('v_mov_b64 v[8:9], -1')
        a('v_mov_b64 v[10:11], -1')
        for par in range(2):
            for it in range(2):
                a('buffer_store_dwordx4 v[8:11], %s, s[%d:%d], s%d offen' % (vr(V_H1LD), S_WS, S_WS + 3, S_H1LD + par * 2 + it))
        a('s_mov_b64 exec, s[%d:%d]' % (S_STMASK, S_STMASK + 1))
        for par in range(2):
            a('buffer_store_dword v8, %s, s[%d:%d], s%d offen' % (vr(V_H2ST), S_WS, S_WS + 3, S_H2 + par))
            a('buffer_store_dword v8, %s, s[%d:%d], s%d offen offset:16' % (vr(V_H2ST), S_WS, S_WS + 3, S_H2 + par))
        a('s_mov_b64 exec, 7')
        a('s_lshl_b32 s%d, s%d, 7' % (S_T, S_H))
        a('s_add_u32 s%d, s%d, 0x%x' % (S_T, S_T, FLG_OFF))
        a('v_mov_b32 v9, s%d' % S_T)
        a('s_lshl_b32 s%d, s%d, 8' % (S_T, S_H))
        a('s_add_u32 s%d, s%d, 0x%x' % (S_T, S_T, FLG_OFF + 4096 - 128))
        a('v_lshlrev_b32 v10, 7, %s' % lane)
        a('v_add_u32 v10, s%d, v10' % S_T)
        a('v_cmp_eq_u32 vcc, 0, %s' % lane)
        a('v_cndmask_b32 v9, v10, v9, vcc')
        a('v_mov_b32 v8, 0')
        a('buffer_store_dword v8, v9, s[%d:%d], 0 offen sc1' % (S_WS, S_WS + 3))
        a('s_mov_b64 exec, -1')
        a('s_nop 1')
    a('v_and_b32 v60, 15, v0')
    a('v_lshrrev_b32 v61, 4, v0')
    a('v_lshlrev_b32 v62, 4, v60')
    a('v_lshl_add_u32 v63, v61, 13, v62')
    a('s_lshl_b32 s%d, s%d, 8' % (S_T, S_H))
    a('v_add_u32 v63, s%d, v63' % S_T)
    a('v_lshl_add_u32 v64, v61, 10, v62')
    a('s_lshl_b32 s%d, s%d, 17' % (S_T, S_H))
    a('v_add_u32 v64, s%d, v64' % S_T)
    a('v_lshl_add_u32 v65, v61, 8, v62')
    a('v_add_u32 v65, %d, v65' % L_STG)
    a('v_lshl_add_u32 v3, v2, 3, v5')
    a('v_lshlrev_b32 v3, 8, v3')
    a('v_lshl_add_u32 v3, v6, 3, v3')
    a('s_lshl_b32 s%d, s%d, 6' % (S_T, S_WV))
    a('s_add_u32 s%d, s%d, %d' % (S_T, S_T, L_STG))
    a('v_add_u32 v66, s%d, v3' % S_T)
    a('s_lshl_b32 s%d, s%d, 5' % (S_T, S_WV))
    a('s_add_u32 s%d, s%d, %d' % (S_T, S_T, L_STG))
    a('v_add_u32 v67, s%d, v3' % S_T)
    for i, m in enumerate((2, 3, 4, 5)):
        build_srd(a, 76 + 4 * i, P(m), 4194304)
    build_srd(a, S_W, P(1), 8192)
    chunks = []
    for m in range(3):
        for t in range(8):
            chunks.append((m, t, 0))
    for t2 in range(2):
        for cb in range(4):
            chunks.append((3, t2, cb))
    def issue_loads(ci):
        m, t, cb = chunks[ci]
        base = 8 + (ci % 3) * 16
        for i in range(4):
            if m < 3:
                off = (64 * t + 16 * i) * 8192
                a('s_mov_b32 s%d, 0x%x' % (S_T, off))
                a('buffer_load_dwordx4 %s, v63, s[%d:%d], s%d offen' % (vr(base + 4 * i, 4), 76 + 4 * m, 79 + 4 * m, S_T))
            else:
                off = (64 * t + 16 * i) * 1024 + cb * 256
                a('s_mov_b32 s%d, 0x%x' % (S_T, off))
                a('buffer_load_dwordx4 %s, v64, s[88:91], s%d offen' % (vr(base + 4 * i, 4), S_T))
    issue_loads(0); issue_loads(1)
    for ci, (m, t, cb) in enumerate(chunks):
        if ci + 2 < len(chunks):
            issue_loads(ci + 2)
            a('s_waitcnt vmcnt(8)')
        elif ci + 1 < len(chunks):
            a('s_waitcnt vmcnt(4)')
        else:
            a('s_waitcnt vmcnt(0)')
        base = 8 + (ci % 3) * 16
        sb = (ci % 2) * 16384
        for i in range(4):
            a('ds_write_b128 v65, %s offset:%d' % (vr(base + 4 * i, 4), sb + i * 4096))
        a('s_waitcnt lgkmcnt(0)')
        a('s_barrier')
        for u in range(2):
            if m == 0:
                dst = lambda k: ar((u * 8 + t) * 8 + k, 2)
                colo = 32 * u; addr = 'v66'
            elif m < 3:
                if u == 0:
                    dst = lambda k: ar(64 + 64 * m + t * 8 + k, 2)
                elif m == 1:
                    dst = lambda k: vr(68 + k, 2)
                else:
                    dst = lambda k: vr(WV1 + t * 8 + k, 2)
                colo = 32 * u; addr = 'v66'
            else:
                if cb < 2:
                    dst = lambda k: vr(WO + ((2 * cb + u) * 2 + t) * 8 + k, 2)
                else:
                    dst = lambda k: vr(68 + 8 * u + k, 2)
                colo = 32 * u; addr = 'v66'
            for k, ro in enumerate((0, 4, 32, 36)):
                a('ds_read_b64_tr_b16 %s, %s offset:%d' % (dst(2 * k), addr, sb + ro * 256 + colo))
        if m == 1:
            a('s_waitcnt lgkmcnt(0)')
            for hh in range(2):
                a('ds_write_b128 %s, %s offset:%d' % (vr(V_WVA), vr(68 + 4 * hh, 4), t * 2048 + hh * 1024))
        if m == 3 and cb >= 2:
            a('s_waitcnt lgkmcnt(0)')
            for u in range(2):
                for hh in range(2):
                    a('ds_write_b128 %s, %s offset:%d' % (vr(V_WVA), vr(68 + 8 * u + 4 * hh, 4), (8 + ((2 * (cb - 2) + u) * 2 + t)) * 2048 + hh * 1024))
    a('s_waitcnt lgkmcnt(0)')
    a('s_barrier')
    if stamps:
        a('s_memrealtime s[96:97]')
        a('s_waitcnt lgkmcnt(0)')
        a('v_mov_b32 v3, s96')
        a('s_lshl_b32 s%d, s%d, 2' % (S_T, S_H))
        a('s_add_u32 s%d, s%d, s%d' % (S_T, S_T, S_WV))
        a('s_lshl_b32 s%d, s%d, 2' % (S_T, S_T))
        a('s_add_u32 s%d, s%d, 0x%x' % (S_T, S_T, STAMP_OFF + 0x100000))
        a('v_mov_b32 v4, 0')
        a('s_mov_b64 exec, 1')
        a('buffer_store_dword v3, v4, s[%d:%d], s%d offen' % (S_WS, S_WS + 3, S_T))
        a('s_mov_b64 exec, -1')
    a('s_lshl_b32 s%d, s%d, 13' % (S_KXP, S_H))
    a('s_add_u32 s%d, s%d, 0x%x' % (S_VXP, S_KXP, VX_OFF))
    a('s_lshl_b32 s%d, s%d, 12' % (S_KM, S_H))
    a('s_lshl_b32 s%d, s%d, 10' % (S_T, S_WV))
    a('s_add_u32 s%d, s%d, s%d' % (S_VM, S_KM, S_T))
    a('s_add_u32 s%d, s%d, 0x%x' % (S_VM, S_VM, VM_OFF))
    a('s_add_u32 s%d, s%d, 0x%x' % (S_KM, S_KM, KM_OFF))
    a('s_lshl_b32 s%d, s%d, 11' % (S_T, S_WV))
    a('s_add_u32 s%d, s%d, %d' % (S_M0A, S_T, L_KX))
    a('s_add_u32 s%d, s%d, %d' % (S_M0B, S_T, L_KX + 8192))
    a('s_mov_b32 s%d, 0x%x' % (S_DUMP, DBG_OFF))
    a('s_mov_b32 s%d, 0' % S_STEP)
    def prefetch_ops(par):
        return [
        's_mov_b32 m0, s%d' % (S_M0A if par == 0 else S_M0B),
        's_add_u32 s%d, s%d, 0x40000' % (S_T + 2, S_KXP),
        'buffer_load_dwordx4 %s, s[%d:%d], s%d offen%s lds' % (vr(V_H2LD), S_WS, S_WS + 3, S_KXP, SC),
        'buffer_load_dwordx4 %s, s[%d:%d], s%d offen offset:1024%s lds' % (vr(V_H2LD), S_WS, S_WS + 3, S_KXP, SC),
        'buffer_load_dwordx4 %s, %s, s[%d:%d], s%d offen%s' % (vr(VX + par * 8, 4), vr(V_H2LD), S_WS, S_WS + 3, S_VXP, SC),
        'buffer_load_dwordx4 %s, %s, s[%d:%d], s%d offen offset:1024%s' % (vr(VX + par * 8 + 4, 4), vr(V_H2LD), S_WS, S_WS + 3, S_VXP, SC),
        's_mov_b32 s%d, s%d' % (S_KXP, S_T + 2),
        's_add_u32 s%d, s%d, 0x40000' % (S_VXP, S_VXP)]
    def prefetch(par):
        for o in prefetch_ops(par): a(o)
    def rstamp(k):
        a('s_memrealtime s[96:97]')
        a('s_waitcnt lgkmcnt(0)')
        a('v_mov_b32 %s, s96' % vr(V_T0))
        a('s_lshl_b32 s%d, s%d, 2' % (S_T, S_H))
        a('s_add_u32 s%d, s%d, s%d' % (S_T, S_T, S_WV))
        a('s_lshl_b32 s%d, s%d, 2' % (S_T, S_T))
        a('s_add_u32 s%d, s%d, 0x%x' % (S_T, S_T, STAMP_OFF + 0x100000 + 0x1000 * k))
        a('v_mov_b32 %s, 0' % vr(V_T1))
        a('s_mov_b64 exec, 1')
        a('buffer_store_dword %s, %s, s[%d:%d], s%d offen' % (vr(V_T0), vr(V_T1), S_WS, S_WS + 3, S_T))
        a('s_mov_b64 exec, -1')
    def dbg_wait(tag, word, target):
        a('s_mov_b32 s%d, 0x200000' % S_CNT)
        a('v_mov_b32 %s, %s' % (vr(V_T1), word))
        a('%s_%s:' % (name, tag))
        a('buffer_load_dword %s, %s, s[%d:%d], 0 offen sc1' % (vr(V_BIAS), vr(V_T1), S_DBG, S_DBG + 3))
        a('s_waitcnt vmcnt(0)')
        a('v_readfirstlane_b32 s%d, %s' % (S_T + 3, vr(V_BIAS)))
        a('s_cmp_ge_u32 s%d, %d' % (S_T + 3, target))
        a('s_cbranch_scc1 %s_%s_ok' % (name, tag))
        a('s_sleep 2')
        a('s_sub_u32 s%d, s%d, 1' % (S_CNT, S_CNT))
        a('s_cbranch_scc0 %s_%s' % (name, tag))
        a('%s_%s_ok:' % (name, tag))
    def dbg_add(word):
        a('s_mov_b64 exec, 1')
        a('v_mov_b32 %s, %d' % (vr(V_T1), word * 4))
        a('v_mov_b32 %s, 1' % vr(V_T0))
        a('buffer_atomic_add %s, %s, s[%d:%d], 0 offen' % (vr(V_T0), vr(V_T1), S_DBG, S_DBG + 3))
        a('s_mov_b64 exec, -1')
    if fused:
        a('s_cmp_lg_u32 s%d, 0' % S_WV)
        a('s_cbranch_scc1 %s_noini' % name)
        dbg_add(20)
        a('%s_noini:' % name)
        dbg_wait('wini', '80', 32)
        dbg_wait('wkv0', '96', 64)
        a('v_mov_b32 %s, 0' % vr(V_BIAS))
        if stamps: rstamp(1)
    prefetch(0)
    R2 = VX + 8
    a('v_and_b32 v3, 1, v1')
    a('v_lshl_add_u32 v3, v5, 1, v3')
    a('v_lshlrev_b32 v3, 10, v3')
    a('v_lshl_add_u32 v3, v2, 5, v3')
    a('v_bfe_u32 v4, v1, 1, 1')
    a('v_lshl_add_u32 v3, v4, 2, v3')
    a('s_lshl_b32 s%d, s%d, 8' % (S_T, S_WV))
    a('v_add_u32 v3, s%d, v3' % S_T)
    for tt in range(2):
        for ip in range(4):
            a('buffer_load_dword %s, v3, s[%d:%d], 0 offen offset:%d' % (vr(R2 + tt * 4 + ip), S_W, S_W + 3, tt * 128 + ip * 8))
    for i in range(24):
        a('v_mov_b32 %s, 0' % vr(ACC + i))
    a('s_waitcnt vmcnt(0)')

    def stamp(k):
        if not stamps: return
        a('s_memtime s[%d:%d]' % (76 + 2 * k, 77 + 2 * k))
        if k != 8: return
        a('s_waitcnt lgkmcnt(0)')
        for kk in range(9):
            a('v_writelane_b32 %s, s%d, %d' % (vr(V_T0), 76 + 2 * kk, kk))
        a('s_lshl_b32 s%d, s%d, 2' % (S_T, S_H))
        a('s_add_u32 s%d, s%d, s%d' % (S_T, S_T, S_WV))
        a('s_lshl_b32 s%d, s%d, 6' % (S_T, S_T))
        a('s_add_u32 s%d, s%d, s%d' % (S_T, S_T, S_STEP))
        a('s_lshl_b32 s%d, s%d, 6' % (S_T, S_T))
        a('s_add_u32 s%d, s%d, 0x%x' % (S_T, S_T, STAMP_OFF))
        a('v_lshrrev_b32 %s, 2, %s' % (vr(V_T1), vr(V_L16)))
        a('s_mov_b64 exec, 0x1ff')
        a('buffer_store_dword %s, %s, s[%d:%d], s%d offen' % (vr(V_T0), vr(V_T1), S_WS, S_WS + 3, S_T))
        a('s_mov_b64 exec, -1')

    Q0, Q1, K0, K1, V0, V1 = [ACC + 4 * i for i in range(6)]
    T, T1 = V_T0, V_T1
    lds_n = [0]
    cold = []
    def L(text):
        a(text); lds_n[0] += 1
        return lds_n[0] - 1
    lds_done = [-1]
    def LW(idx):
        if idx <= lds_done[0]:
            return
        n = lds_n[0] - idx - 1
        n = min(n, 14)
        idx = lds_n[0] - n - 1
        a('s_waitcnt lgkmcnt(%d)' % n)
        lds_done[0] = idx
    def poll(tag, R, loads, k=PK):
        a('s_mov_b32 s%d, 0x100000' % S_CNT)
        for _ in range(PD1 if tag.startswith('p1') else PD2):
            a('s_nop 15')
        for i in range(k):
            for o in loads: a(o)
            if i < k - 1:
                a('s_nop 15')
                if PGAP > 1: a('s_nop 15')
        a('%s_%s:' % (name, tag))
        a('s_waitcnt vmcnt(%d)' % (2 * (k - 1)))
        a('v_max3_u32 %s, %s, %s, %s' % (vr(T), vr(R), vr(R + 1), vr(R + 2)))
        a('v_max3_u32 %s, %s, %s, %s' % (vr(T1), vr(R + 3), vr(R + 4), vr(R + 5)))
        a('v_max3_u32 %s, %s, %s, %s' % (vr(T), vr(R + 6), vr(R + 7), vr(T)))
        a('v_max_u32 %s, %s, %s' % (vr(T), vr(T), vr(T1)))
        a('v_cmp_eq_u32 vcc, -1, %s' % vr(T))
        a('s_cbranch_vccz %s_%sdone' % (name, tag))
        if PMASK: a('s_mov_b64 exec, vcc')
        for o in loads: a(o)
        a('s_sub_u32 s%d, s%d, 1' % (S_CNT, S_CNT))
        a('s_cbranch_scc0 %s_%s' % (name, tag))
        a('%s_%sdone:' % (name, tag))
        if PMASK: a('s_mov_b64 exec, -1')
    def step(par, w):
        U = '%d_%d' % (par, w)
        fill = []
        def pop(n):
            for _ in range(n):
                if fill:
                    f = fill.pop(0)
                    if callable(f): f()
                    else: a(f)
        def smf(acc, t, breg):
            a('v_smfmac_f32_16x16x64_bf16 %s, %s, %s, %s' % (vr(acc, 4), vr(AF + 4 * t, 4), breg, vr(V_IDX)))
        frag_id = {}
        order = [0]
        def frag_ops(p):
            slot = WVS + (p % 4) * 8
            n = order[p] if p < 8 else 8 + order[p - 8]
            def r0(): L('ds_read_b128 %s, %s offset:%d' % (vr(slot, 4), vr(V_WVA), n * 2048))
            def r1(): frag_id[p] = L('ds_read_b128 %s, %s offset:%d' % (vr(slot + 4, 4), vr(V_WVA), n * 2048 + 1024))
            return [r0, r1]
        def slot_reg(p): return vr(WVS + (p % 4) * 8, 8)
        qkw_id = [None]
        def post_qk(Qr, Kr, tt):
            ops = []
            ops.append('v_add_f32 %s, %s, %s' % (vr(Kr), vr(Kr), vr(Kr + 2)))
            ops.append('v_add_f32 %s, %s, %s' % (vr(Kr + 1), vr(Kr + 1), vr(Kr + 3)))
            ops.append('v_add_f32 %s, %s, %s' % (vr(Qr), vr(Qr), vr(Qr + 2)))
            ops.append('v_add_f32 %s, %s, %s' % (vr(Qr + 1), vr(Qr + 1), vr(Qr + 3)))
            ops.append('v_cvt_pk_bf16_f32 %s, %s, %s' % (vr(Kr), vr(Kr), vr(Kr + 1)))
            ops.append('v_cvt_pk_bf16_f32 %s, %s, %s' % (vr(Kr + 1), vr(Qr), vr(Qr + 1)))
            def wr(): qkw_id[0] = L('ds_write_b64 %s, %s offset:%d' % (vr(V_QKW), vr(Kr, 2), tt * 512))
            ops.append(wr)
            return ops
        own = [2 * w, 2 * w + 1]
        oth = [t for t in range(8) if t not in own]
        order[:] = own + oth
        RR = AF + 8 * w
        for p in range(4):
            for f in frag_ops(p): f()
        if par == 0:
            a('s_cmp_eq_u32 s%d, 0' % S_STEP)
            a('s_cbranch_scc1 %s_m0_%d' % (name, w))
        poll('p2_%s' % U, RR, [
            'buffer_load_dwordx4 %s, %s, s[%d:%d], s%d offen sc1' % (vr(RR, 4), vr(V_H2LD), S_WS, S_WS + 3, S_H2 + par),
            'buffer_load_dwordx4 %s, %s, s[%d:%d], s%d offen offset:1024 sc1' % (vr(RR + 4, 4), vr(V_H2LD), S_WS, S_WS + 3, S_H2 + par)])
        if par == 0:
            a('%s_m0done_%d:' % (name, w))
            def m0blk():
                a('%s_m0_%d:' % (name, w))
                for i in range(4):
                    a('v_mov_b64 %s, %s' % (vr(RR + 2 * i, 2), vr(VX + 8 + 2 * i, 2)))
                a('s_branch %s_m0done_%d' % (name, w))
            cold.append(m0blk)
        stamp(0)
        L('ds_write_b128 %s, %s offset:%d' % (vr(V_H2LD), vr(RR, 4), L_EX))
        wid = L('ds_write_b128 %s, %s offset:%d' % (vr(V_H2LD), vr(RR + 4, 4), L_EX + 1024))
        if dump:
            a('s_cmp_lg_u32 s%d, 0' % S_H)
            a('s_cbranch_scc1 %s_nodump_%s' % (name, U))
            a('buffer_store_dwordx4 %s, %s, s[%d:%d], s%d offen' % (vr(RR, 4), vr(V_H2LD), S_WS, S_WS + 3, S_DUMP))
            a('buffer_store_dwordx4 %s, %s, s[%d:%d], s%d offen offset:1024' % (vr(RR + 4, 4), vr(V_H2LD), S_WS, S_WS + 3, S_DUMP))
            a('s_waitcnt vmcnt(0)')
            a('%s_nodump_%s:' % (name, U))
            a('s_add_u32 s%d, s%d, 8192' % (S_DUMP, S_DUMP))
        def quad(t, p):
            smf(Q0, t, ar(t * 8, 8))
            smf(K0, t, ar(128 + t * 8, 8))
            smf(Q1, t, ar(64 + t * 8, 8))
            LW(frag_id[p])
            smf(K1, t, slot_reg(p))
            smf(V0, t, ar(192 + t * 8, 8))
            smf(V1, t, vr(WV1 + t * 8, 8))
        quad(own[0], 0)
        LW(wid)
        a('s_barrier')
        af_id = {}
        for t in oth:
            af_id[t] = L('ds_read_b128 %s, %s offset:%d' % (vr(AF + 4 * t, 4), vr(V_L16), L_EX + 1024 * t))
        quad(own[1], 1)
        for p in (4, 5):
            fill.extend(frag_ops(p))
        fill.extend(prefetch_ops(par ^ 1))
        if fused and w == 0:
            fill.append('v_lshlrev_b32 %s, 3, %s' % (vr(V_T1), vr(V_L16)))
            fill.append('v_mov_b32 %s, s%d' % (vr(V_T0), S_STEP))
            def pub():
                a('s_mov_b64 exec, s[%d:%d]' % (S_KMX, S_KMX + 1))
                a('buffer_store_dword %s, %s, s[%d:%d], s%d offen sc1' % (vr(V_T0), vr(V_T1), S_WS, S_WS + 3, S_FLG))
                a('s_mov_b64 exec, -1')
            fill.append(pub)
        for t in oth:
            LW(af_id[t])
            smf(Q0, t, ar(t * 8, 8))
            pop(2)
            smf(K0, t, ar(128 + t * 8, 8))
            pop(2)
        pop(99)
        for i, t in enumerate(oth):
            p = 2 + i
            smf(Q1, t, ar(64 + t * 8, 8))
            if i == 2:
                fill.extend(post_qk(Q0, K0, 0))
            pop(2)
            LW(frag_id[p])
            smf(K1, t, slot_reg(p))
            if p + 4 < 8:
                for f in frag_ops(p + 4): f()
        pop(99)
        stamp(1)
        kx_id = {}
        def kxr(j): kx_id[j] = L('ds_read_b128 %s, %s offset:%d' % (vr(AF + 4 * j, 4), vr(V_L16), L_KX + par * 8192 + 1024 * j))
        def vp(i):
            t = order[i]
            smf(V0, t, ar(192 + t * 8, 8))
            smf(V1, t, vr(WV1 + t * 8, 8))
            kxr(t)
        kxr(own[0]); kxr(own[1])
        vp(2)
        for o in post_qk(Q1, K1, 1):
            if callable(o): o()
            else: a(o)
        vp(3)
        LW(qkw_id[0])
        a('s_barrier')
        F = ACC
        f_id = []
        for es in range(4):
            L('ds_read_b64_tr_b16 %s, %s offset:%d' % (vr(F + 4 * es, 2), vr(V_FTR), es * 1024))
            f_id.append(L('ds_read_b64_tr_b16 %s, %s offset:%d' % (vr(F + 4 * es + 2, 2), vr(V_FTR), es * 1024 + 512)))
        for i in range(4, 8):
            vp(i)
        stamp(2)
        SM, SX0, SX1 = WVS, WVS + 4, WVS + 8
        VM = V0
        started = set()
        def smm(acc, areg, es):
            c = vr(acc, 4) if acc in started else '0'
            started.add(acc)
            a('v_mfma_f32_16x16x32_bf16 %s, %s, %s, %s' % (vr(acc, 4), areg, vr(F + 4 * es, 4), c))
        def exports():
            if os.environ.get('NOEXP'): return
            a('buffer_store_dwordx4 %s, %s, s[%d:%d], s%d offen offset:%d%s' % (vr(F + 4 * w, 4), vr(V_L16), S_WS, S_WS + 3, S_KM, w * 1024, SC))
            a('buffer_store_dwordx4 %s, %s, s[%d:%d], s%d offen%s' % (vr(VM, 4), vr(V_L16), S_WS, S_WS + 3, S_VM, SC))
            a('s_add_u32 s%d, s%d, 0x20000' % (S_KM, S_KM))
            a('s_add_u32 s%d, s%d, 0x20000' % (S_VM, S_VM))
        LW(f_id[3])
        for i, t in enumerate(order):
            if i < 4:
                smm(SM, vr(F + 4 * i, 4), i)
            LW(kx_id[t])
            smm(SX0 if t < 4 else SX1, vr(AF + 4 * t, 4), t % 4)
            if i == 4:
                for k in range(4):
                    a('v_cvt_pk_bf16_f32 %s, %s, %s' % (vr(VM + k), vr(V0 + 2 * k), vr(V0 + 2 * k + 1)))
            if i == 5:
                a('s_cmp_eq_u32 s%d, %d' % (S_STEP, nsteps - 1))
        a('s_cbranch_scc1 %s_last_%s' % (name, U))
        def lastblk():
            a('%s_last_%s:' % (name, U))
            exports()
            a('s_branch %s_done' % name)
        cold.append(lastblk)
        stamp(3)
        a('v_max3_f32 %s, %s, %s, %s' % (vr(T), vr(SX0), vr(SX0 + 1), vr(SX0 + 2)))
        a('v_max3_f32 %s, %s, %s, %s' % (vr(T1), vr(SX0 + 3), vr(SM), vr(SM + 1)))
        a('v_max3_f32 %s, %s, %s, %s' % (vr(T1), vr(SX1), vr(SX1 + 1), vr(T1)))
        a('v_max3_f32 %s, %s, %s, %s' % (vr(T), vr(SX1 + 2), vr(SX1 + 3), vr(T)))
        a('v_max_f32 %s, %s, %s' % (vr(T), vr(T), vr(T1)))
        a('v_mov_b32 %s, %s' % (vr(T1), vr(T)))
        a('v_mov_b64 %s, 0' % vr(AF + 16, 2))
        a('v_mov_b64 %s, 0' % vr(AF + 18, 2))
        a('v_permlane32_swap_b32 %s, %s' % (vr(T), vr(T1)))
        a('v_max_f32 %s, %s, %s' % (vr(T), vr(T), vr(T1)))
        a('v_mov_b32 %s, %s' % (vr(T1), vr(T)))
        a('v_mov_b64 %s, 0' % vr(AF + 20, 2))
        a('v_mov_b64 %s, 0' % vr(AF + 22, 2))
        a('v_permlane16_swap_b32 %s, %s' % (vr(T), vr(T1)))
        a('v_max_f32 %s, %s, %s' % (vr(T), vr(T), vr(T1)))
        a('v_mul_f32 %s, s%d, %s' % (vr(T), S_C, vr(T)))
        PX = WVS + 28; PM = WVS + 2
        LS, O0, O1 = WVS + 16, WVS + 20, WVS + 24
        for i in range(2):
            a('v_fma_f32 %s, %s, s%d, -%s' % (vr(SM + i), vr(SM + i), S_C, vr(T)))
        for i in range(2):
            a('v_exp_f32 %s, %s' % (vr(SM + i), vr(SM + i)))
        for i in range(4, 12):
            a('v_fma_f32 %s, %s, s%d, -%s' % (vr(WVS + i), vr(WVS + i), S_C, vr(T)))
        a('v_cvt_pk_bf16_f32 %s, %s, %s' % (vr(PM), vr(SM), vr(SM + 1)))
        a('v_cvt_pk_bf16_f32 %s, %s, %s' % (vr(PM + 1), vr(SM), vr(SM + 1)))
        a('v_exp_f32 %s, %s' % (vr(WVS + 4), vr(WVS + 4)))
        a('v_exp_f32 %s, %s' % (vr(WVS + 5), vr(WVS + 5)))
        a('v_mfma_f32_16x16x16_bf16 %s, %s, %s, 0' % (vr(LS, 4), vr(PM, 2), vr(V_HONES, 2)))
        a('v_exp_f32 %s, %s' % (vr(WVS + 6), vr(WVS + 6)))
        a('v_exp_f32 %s, %s' % (vr(WVS + 7), vr(WVS + 7)))
        a('v_mfma_f32_16x16x16_bf16 %s, %s, %s, 0' % (vr(O0, 4), vr(PM, 2), vr(VM, 2)))
        a('v_exp_f32 %s, %s' % (vr(WVS + 8), vr(WVS + 8)))
        a('v_exp_f32 %s, %s' % (vr(WVS + 9), vr(WVS + 9)))
        a('v_mfma_f32_16x16x16_bf16 %s, %s, %s, 0' % (vr(O1, 4), vr(PM, 2), vr(VM + 2, 2)))
        a('v_exp_f32 %s, %s' % (vr(WVS + 10), vr(WVS + 10)))
        a('v_exp_f32 %s, %s' % (vr(WVS + 11), vr(WVS + 11)))
        a('v_cvt_pk_bf16_f32 %s, %s, %s' % (vr(PX), vr(SX0), vr(SX0 + 1)))
        a('v_cvt_pk_bf16_f32 %s, %s, %s' % (vr(PX + 1), vr(SX0 + 2), vr(SX0 + 3)))
        a('v_cvt_pk_bf16_f32 %s, %s, %s' % (vr(PX + 2), vr(SX1), vr(SX1 + 1)))
        a('v_cvt_pk_bf16_f32 %s, %s, %s' % (vr(PX + 3), vr(SX1 + 2), vr(SX1 + 3)))
        stamp(4)
        a('v_mov_b64 %s, 0' % vr(AF + 24, 2))
        a('v_mov_b64 %s, 0' % vr(AF + 26, 2))
        a('v_mfma_f32_16x16x32_bf16 %s, %s, %s, %s' % (vr(LS, 4), vr(PX, 4), vr(V_ONES, 4), vr(LS, 4)))
        a('v_mov_b64 %s, 0' % vr(AF + 28, 2))
        a('v_mov_b64 %s, 0' % vr(AF + 30, 2))
        a('v_mfma_f32_16x16x32_bf16 %s, %s, %s, %s' % (vr(O0, 4), vr(PX, 4), vr(VX + par * 8, 4), vr(O0, 4)))
        a('v_mfma_f32_16x16x32_bf16 %s, %s, %s, %s' % (vr(O1, 4), vr(PX, 4), vr(VX + par * 8 + 4, 4), vr(O1, 4)))
        wo_id = {}
        def wor(q):
            slot = WSL[wo_seq.index(q) % 5]
            L('ds_read_b128 %s, %s offset:%d' % (vr(slot, 4), vr(V_WVA), (8 + q) * 2048))
            wo_id[q] = L('ds_read_b128 %s, %s offset:%d' % (vr(slot + 4, 4), vr(V_WVA), (8 + q) * 2048 + 1024))
        WSL = [WVS, WVS + 8, WVS + 16, ACC, ACC + 8]
        wo_seq = [0, 2, 1, 3, 4, 6, 5, 7]
        wor(wo_seq[0]); wor(wo_seq[1])
        for i in range(2, 4):
            a('v_rcp_f32 %s, %s' % (vr(LS + i), vr(LS + i)))
        for tt, O in enumerate((O0, O1)):
            for i in range(2, 4):
                a('v_mul_f32 %s, %s, %s' % (vr(O + i), vr(O + i), vr(LS + i)))
            a('v_cvt_pk_bf16_f32 %s, %s, %s' % (vr(O), vr(O + 2), vr(O + 3)))
            L('ds_write_b32 %s, %s offset:%d' % (vr(V_OW), vr(O), 256 * tt))
        for i in range(4):
            a('v_mov_b64 %s, 0' % vr(AF + 2 * i, 2))
        a('s_waitcnt lgkmcnt(0)')
        a('s_barrier')
        OA = WVS + 24
        oa_id = []
        for t2 in range(2):
            L('ds_read_b64_tr_b16 %s, %s offset:%d' % (vr(OA + 4 * t2, 2), vr(V_OTR), t2 * 1024))
            oa_id.append(L('ds_read_b64_tr_b16 %s, %s offset:%d' % (vr(OA + 4 * t2 + 2, 2), vr(V_OTR), t2 * 1024 + 128)))
        exports()
        for i in range(4, 8):
            a('v_mov_b64 %s, 0' % vr(AF + 2 * i, 2))
        stamp(5)
        def post_wo(u):
            A0 = AF + 8 * u; A1 = A0 + 4
            ops = []
            for A in (A0, A1):
                ops.append('v_add_f32 %s, %s, %s' % (vr(A), vr(A), vr(A + 2)))
                ops.append('v_add_f32 %s, %s, %s' % (vr(A + 1), vr(A + 1), vr(A + 3)))
            ops.append('v_cvt_pk_bf16_f32 %s, %s, %s' % (vr(A0), vr(A0), vr(A0 + 1)))
            ops.append('v_cvt_pk_bf16_f32 %s, %s, %s' % (vr(A0 + 1), vr(A1), vr(A1 + 1)))
            ops.append('buffer_store_dwordx2 %s, %s, s[%d:%d], s%d offen' % (vr(A0, 2), vr(V_H1ST), S_WS, S_WS + 3, S_H1ST + par * 4 + u))
            return ops
        LW(oa_id[0])
        nq = [2]
        for u in range(4):
            for t2 in range(2):
                if u == 0 and t2 == 1: LW(oa_id[1])
                for k in range(2):
                    tt8 = 2 * u + k
                    if u < 2:
                        breg = vr(WO + (tt8 * 2 + t2) * 8, 8)
                    else:
                        q = (tt8 - 4) * 2 + t2
                        LW(wo_id[q])
                        breg = vr(WSL[wo_seq.index(q) % 5], 8)
                    a('v_smfmac_f32_16x16x64_bf16 %s, %s, %s, %s' % (vr(AF + 4 * tt8, 4), vr(OA + 4 * t2, 4), breg, vr(V_IDX)))
                    if u == 0 and nq[0] < 5 and not (t2 == 0 and k == 0):
                        wor(wo_seq[nq[0]]); nq[0] += 1
                    if u >= 2 and nq[0] < 8:
                        wor(wo_seq[nq[0]]); nq[0] += 1
                    if t2 == 1 and k == 0 and u > 0:
                        fill.extend(post_wo(u - 1))
                    if t2 == 1:
                        pop(4)
            pop(99)
        for i in range(8, 12):
            a('v_mov_b64 %s, 0' % vr(ACC + 2 * i, 2))
        for o in post_wo(3): a(o)
        for i in range(0, 8):
            a('v_mov_b64 %s, 0' % vr(ACC + 2 * i, 2))
        R1 = WVS
        stamp(6)
        poll('p1_%s' % U, R1, [
            'buffer_load_dwordx4 %s, %s, s[%d:%d], s%d offen sc1' % (vr(R1 + 4 * it, 4), vr(V_H1LD), S_WS, S_WS + 3, S_H1LD + par * 2 + it) for it in range(2)])
        stamp(7)
        RA = WVS + 8; RB = WVS + 12; SN = WVS + 16
        a('v_mfma_f32_16x16x32_bf16 %s, %s, %s, 0' % (vr(RA, 4), vr(V_SEL, 4), vr(R1, 4)))
        a('v_mfma_f32_16x16x32_bf16 %s, %s, %s, %s' % (vr(RA, 4), vr(V_SEL, 4), vr(R1 + 4, 4), vr(RA, 4)))
        a('v_mov_b64 %s, -1' % vr(SN, 2))
        a('v_mov_b64 %s, -1' % vr(SN + 2, 2))
        a('s_add_u32 s%d, s%d, 1' % (S_STEP, S_STEP))
        for i in range(4):
            a('v_add_f32_dpp %s, %s, %s row_ror:4 row_mask:0xf bank_mask:0xf' % (vr(RB + i), vr(RA + i), vr(RA + i)))
        for i in range(4):
            a('v_add_f32_dpp %s, %s, %s row_ror:8 row_mask:0xf bank_mask:0xf' % (vr(RA + i), vr(RB + i), vr(RB + i)))
        a('s_mov_b64 exec, s[%d:%d]' % (S_STMASK, S_STMASK + 1))
        a('v_cvt_pk_bf16_f32 %s, %s, %s' % (vr(RA), vr(RA), vr(RA + 1)))
        a('v_cvt_pk_bf16_f32 %s, %s, %s' % (vr(RA + 1), vr(RA + 2), vr(RA + 3)))
        a('buffer_store_dword %s, %s, s[%d:%d], s%d offen' % (vr(RA), vr(V_H2ST), S_WS, S_WS + 3, S_H2 + (par ^ 1)))
        a('buffer_store_dword %s, %s, s[%d:%d], s%d offen offset:16' % (vr(RA + 1), vr(V_H2ST), S_WS, S_WS + 3, S_H2 + (par ^ 1)))
        a('buffer_store_dword %s, %s, s[%d:%d], s%d offen' % (vr(SN), vr(V_H2ST), S_WS, S_WS + 3, S_H2 + par))
        a('buffer_store_dword %s, %s, s[%d:%d], s%d offen offset:16' % (vr(SN), vr(V_H2ST), S_WS, S_WS + 3, S_H2 + par))
        a('s_mov_b64 exec, -1')
        for it in range(2):
            a('buffer_store_dwordx4 %s, %s, s[%d:%d], s%d offen' % (vr(SN, 4), vr(V_H1LD), S_WS, S_WS + 3, S_H1LD + par * 2 + it))
        if fused:
            a('s_and_b32 s%d, s%d, 7' % (S_T, S_STEP))
            a('s_cmp_lg_u32 s%d, %d' % (S_T, 0 if par == 1 else 1))
            a('s_cbranch_scc1 %s_nokv%s' % (name, U))
            a('s_add_u32 s%d, s%d, %d' % (S_T, S_STEP, 8 if par == 1 else 7))
            a('s_lshr_b32 s%d, s%d, 3' % (S_T, S_T))
            a('s_lshl_b32 s%d, s%d, 2' % (S_T, S_T))
            a('s_add_u32 s%d, s%d, 96' % (S_T, S_T))
            if par == 1:
                a('v_mov_b32 %s, s%d' % (vr(V_T1), S_T))
                a('buffer_load_dword %s, %s, s[%d:%d], 0 offen sc1' % (vr(V_BIAS), vr(V_T1), S_DBG, S_DBG + 3))
            else:
                a('v_readfirstlane_b32 s%d, %s' % (S_T + 3, vr(V_BIAS)))
                a('s_cmp_ge_u32 s%d, 64' % (S_T + 3))
                a('s_cbranch_scc1 %s_nokv%s' % (name, U))
                dbg_wait('wkvn%d' % w, 's%d' % S_T, 64)
            a('%s_nokv%s:' % (name, U))
        if stamps:
            a('s_sub_u32 s%d, s%d, 1' % (S_STEP, S_STEP))
            stamp(8)
            a('s_add_u32 s%d, s%d, 1' % (S_STEP, S_STEP))
    for w in range(1, 4):
        a('s_cmp_eq_u32 s%d, %d' % (S_WV, w))
        a('s_cbranch_scc1 %s_wl%d' % (name, w))
    for w in range(4):
        a('%s_wl%d:' % (name, w))
        step(0, w)
        step(1, w)
        a('s_branch %s_wl%d' % (name, w))
    for c in cold: c()
    a('%s_done:' % name)
    a('s_waitcnt vmcnt(0)')
    if stamps: rstamp(2)
    if fused:
        a('s_barrier')
        a('s_cmp_lg_u32 s%d, 0' % S_WV)
        a('s_cbranch_scc1 %s_fin' % name)
        dbg_add(21)
        a('%s_fin:' % name)

def kernel_header(a, name):
    a.out.append('.globl %s' % name)
    a.out.append('.p2align 8')
    a.out.append('.type %s,@function' % name)
    a.out.append('%s:' % name)

def kernel_desc(name, vgpr=512, sgpr=102, accum=256):
    return '''.amdhsa_kernel %s
  .amdhsa_next_free_vgpr %d
  .amdhsa_next_free_sgpr %d
  .amdhsa_accum_offset %d
  .amdhsa_group_segment_fixed_size 0
  .amdhsa_kernarg_size 160
  .amdhsa_user_sgpr_count 2
  .amdhsa_user_sgpr_kernarg_segment_ptr 1
  .amdhsa_system_sgpr_workgroup_id_x 1
.end_amdhsa_kernel
''' % (name, vgpr, sgpr, accum)

def gen_init(a, name):
    kernel_header(a, name)
    a('s_cmp_ge_u32 s2, 33')
    a('s_cbranch_scc1 %s_end' % name)
    a('s_load_dwordx2 s[8:9], s[0:1], 152')
    a('s_waitcnt lgkmcnt(0)')
    build_srd(a, 4, 8, WS_BYTES)
    a('s_lshl_b32 s3, s2, 14')
    a('s_add_u32 s3, s3, 0x%x' % H1_OFF)
    a('v_lshlrev_b32 v1, 4, v0')
    for i in range(4):
        a('v_mov_b32 v%d, -1' % (4 + i))
    for i in range(4):
        a('s_add_u32 s10, s3, %d' % (i * 4096))
        a('buffer_store_dwordx4 v[4:7], v1, s[4:7], s10 offen')
    a('%s_end:' % name)
    a('s_endpgm')

def gen_chain_kernel(a, name, **kw):
    kernel_header(a, name)
    gen_role(a, name)
    a('s_cmp_gt_u32 s%d, 31' % S_H)
    a('s_cbranch_scc1 %s_exit' % name)
    gen_chain_body(a, name, **kw)
    a('%s_exit:' % name)
    a('s_endpgm')

if __name__ == '__main__':
    import sys
    a = Asm()
    hdr = '''; @launch kernel=init_kernel grid=(33,1,1) block=(256,1,1) lds=0
; @launch kernel=chain_kernel grid=(256,1,1) block=(256,1,1) lds=163840
.amdgcn_target "amdgcn-amd-amdhsa--gfx950"
.text
'''
    gen_init(a, 'init_kernel')
    gen_chain_kernel(a, 'chain_kernel', dump=('dump' in sys.argv), stamps=('stamps' in sys.argv))
    txt = hdr + a.text() + '.section .rodata,"a"\n.p2align 6\n' + kernel_desc('init_kernel', 16, 16, 16) + '.p2align 6\n' + kernel_desc('chain_kernel')
    open(sys.argv[1], 'w').write(txt)
    print('nops inserted', a.nops_inserted, 'lines', len(a.out))
```

```python
import os
from asmgen import Asm, vr, ar, sr
from layout import *
from gen_chain import build_srd, f32bits, SCALE_LOG2E, S_DBG

def static_poll(a, tag, s_blk=None, need_all=True):
    a('s_cmp_lg_u32 s48, 0')
    a('s_cbranch_scc1 %s_ok' % tag)
    a('s_cmp_eq_u32 s97, 1')
    a('s_cbranch_scc1 %s_ok' % tag)
    a('v_mbcnt_lo_u32_b32 v250, -1, 0')
    a('v_mbcnt_hi_u32_b32 v250, -1, v250')
    a('v_lshlrev_b32 v250, 2, v250')
    a('s_mov_b32 s21, 0x40000')
    a('%s:' % tag)
    a('buffer_load_dword v251, v250, s[%d:%d], 0 offen sc1' % (S_DBG, S_DBG + 3))
    a('s_waitcnt vmcnt(0)')
    a('v_mov_b32 v249, 0')
    a('v_lshrrev_b32 v248, 2, v250')
    for lo, hi, tg in ((18, 18, 128), (19, 19, 256), (20, 20, 32), (24, 33, 64), (34, 43, 32)):
        a('v_cmp_le_u32 vcc, %d, v248' % lo)
        a('v_cmp_ge_u32 s[22:23], %d, v248' % hi)
        a('s_and_b64 vcc, vcc, s[22:23]')
        a('v_mov_b32 v247, %d' % tg)
        a('v_cndmask_b32 v249, v249, v247, vcc')
    a('v_cmp_lt_u32 vcc, v251, v249')
    a('s_cmp_eq_u64 vcc, 0')
    a('s_cselect_b32 s97, 1, 0')
    a('s_cbranch_scc1 %s_ok' % tag)
    a('s_mov_b32 s27, 1')
    conds = [('20', '32')]
    if need_all: conds += [('18', '128'), ('19', '256')]
    if s_blk is not None:
        a('s_add_u32 s24, s%d, 24' % s_blk)
        a('s_add_u32 s25, s%d, 34' % s_blk)
        conds += [('s24', '64'), ('s25', '32')]
    for ln, tg in conds:
        a('v_readlane_b32 s22, v251, %s' % ln)
        a('s_cmp_ge_u32 s22, %s' % tg)
        a('s_cselect_b32 s27, s27, 0')
    a('s_cmp_eq_u32 s27, 1')
    a('s_cbranch_scc1 %s_ok' % tag)
    a('s_sleep 40')
    a('s_sub_u32 s21, s21, 1')
    a('s_cbranch_scc0 %s' % tag)
    a('%s_ok:' % tag)
    a('s_barrier')

def prog_poll(a, tag, s_seg, acnt=False, sleep=int(os.environ.get('PSLEEP', '10'))):
    a('s_cmp_lg_u32 s48, 0')
    a('s_cbranch_scc1 %s_ok' % tag)
    a('s_mov_b64 exec, 1')
    a('s_and_b32 s22, s2, 31')
    a('s_lshl_b32 s22, s22, 7')
    a('s_add_u32 s22, s22, 0x%x' % FLG_OFF)
    a('v_mov_b32 v250, s22')
    a('s_lshl_b32 s22, s%d, 7' % s_seg)
    a('s_add_u32 s22, s22, 0x%x' % (FLG_OFF + 4096))
    a('v_mov_b32 v249, s22')
    a('v_mov_b32 v248, 84')
    a('s_mov_b32 s21, 0x40000')
    a('s_add_u32 s23, s%d, 1' % s_seg)
    a('s_min_u32 s24, s23, 63')
    a('%s_p:' % tag)
    a('s_cmp_ge_u32 s96, s24')
    a('s_cbranch_scc1 %s_p2' % tag)
    a('buffer_load_dword v251, v250, s[4:7], 0 offen sc1')
    a('s_waitcnt vmcnt(0)')
    a('v_readfirstlane_b32 s96, v251')
    a('s_cmp_ge_u32 s96, s24')
    a('s_cbranch_scc1 %s_p2' % tag)
    a('s_sub_u32 s22, s24, s96')
    a('%s_bk:' % tag)
    a('s_cmp_lt_u32 s22, 2')
    a('s_cbranch_scc1 %s_bke' % tag)
    a('s_sleep 56')
    a('s_sub_u32 s22, s22, 1')
    a('s_branch %s_bk' % tag)
    a('%s_bke:' % tag)
    a('s_sleep %d' % sleep)
    a('s_sub_u32 s21, s21, 1')
    a('s_cbranch_scc0 %s_p' % tag)
    a('%s_p2:' % tag)
    if acnt:
        a('buffer_load_dword v251, v249, s[4:7], 0 offen sc1')
        a('s_waitcnt vmcnt(0)')
        a('v_readfirstlane_b32 s22, v251')
        a('s_cmp_ge_u32 s22, 8')
        a('s_cbranch_scc1 %s_done' % tag)
    else:
        a('s_cmp_lt_u32 s%d, 63' % s_seg)
        a('s_cbranch_scc1 %s_done' % tag)
        a('buffer_load_dword v251, v248, s[%d:%d], 0 offen sc1' % (S_DBG, S_DBG + 3))
        a('s_waitcnt vmcnt(0)')
        a('v_readfirstlane_b32 s22, v251')
        a('s_cmp_ge_u32 s22, 32')
        a('s_cbranch_scc1 %s_done' % tag)
    a('s_sleep %d' % sleep)
    a('s_sub_u32 s21, s21, 1')
    a('s_cbranch_scc0 %s_p2' % tag)
    a('%s_done:' % tag)
    a('s_mov_b64 exec, -1')
    a('%s_ok:' % tag)
    a('s_barrier')

def seg_block(a, dst, s_seg):
    a('s_lshr_b32 s%d, s%d, 3' % (dst, s_seg))
    a('s_add_u32 s%d, s%d, 2' % (dst, dst))
    a('s_cmp_lt_u32 s%d, 4' % s_seg)
    a('s_cselect_b32 s%d, 1, s%d' % (dst, dst))
    a('s_cmp_lt_u32 s%d, 2' % s_seg)
    a('s_cselect_b32 s%d, 0, s%d' % (dst, dst))

def gen_attnA(a, name, s_seg, s_hg, s_wave):
    N = name
    SA = 64; PXr = 76; PMr = 80; OAc = 84; OF = 116
    MB_ = 148; VL16 = 152; T = 153; T1 = 154; LSUM = 155
    AQ = 128; AK = 160; AKM = 192; AV = 208; AVM = 240
    a('v_and_b32 v2, 63, v0')
    a('v_lshlrev_b32 %s, 4, v2' % vr(VL16))
    seg_block(a, 18, s_seg)
    static_poll(a, N + '_d0', s_blk=18, need_all=False)
    a('s_lshl_b32 s16, s%d, 5' % s_seg)
    a('s_lshl_b32 s17, s%d, 2' % s_hg)
    a('s_add_u32 s16, s16, s17')
    a('s_add_u32 s16, s16, s%d' % s_wave)
    a('s_lshl_b32 s36, s16, 13')
    a('s_add_u32 s37, s36, 0x%x' % VX_OFF)
    a('s_add_u32 s38, s36, 0x%x' % QX_OFF)
    a('s_add_u32 s41, s36, 0x%x' % OF_OFF)
    a('s_lshl_b32 s39, s16, 12')
    a('s_add_u32 s40, s39, 0x%x' % VM_OFF)
    a('s_add_u32 s39, s39, 0x%x' % KM_OFF)
    def ld(dst, soff, off):
        if off >= 4096:
            a('s_add_u32 s17, s%d, %d' % (soff, off & ~4095)); so = 17
        else:
            so = soff
        a('buffer_load_dwordx4 %s, %s, s[4:7], s%d offen offset:%d' % (dst, vr(VL16), so, off & 4095))
    for j in range(8): ld(ar(AQ + 4 * j, 4), 38, j * 1024)
    for j in range(8): ld(ar(AK + 4 * j, 4), 36, j * 1024)
    for j in range(8): ld(ar(AV + 4 * j, 4), 37, j * 1024)
    a('v_and_b32 v3, 15, v2')
    a('v_lshrrev_b32 v4, 4, v2')
    a('v_lshlrev_b32 v4, 2, v4')
    a('v_mov_b32 v5, 0xff800000')
    a('v_mov_b32 v6, 0')
    for i in range(4):
        a('v_add_u32 v7, %d, v4' % i)
        a('v_cmp_le_u32 vcc, v7, v3')
        a('v_cndmask_b32 %s, v5, v6, vcc' % vr(MB_ + i))
    prog_poll(a, N + '_d1', s_seg)
    for j in range(4): ld(ar(AKM + 4 * j, 4), 39, j * 1024)
    for j in range(4): ld(ar(AVM + 4 * j, 4), 40, j * 1024)
    a('s_mov_b32 s27, 0x%x' % f32bits(SCALE_LOG2E))
    a('s_waitcnt vmcnt(8)')
    SM, SX0, SX1 = SA, SA + 4, SA + 8
    def mm(acc, A_, B_, first):
        a('v_mfma_f32_16x16x32_bf16 %s, %s, %s, %s' % (vr(acc, 4), A_, B_, '0' if first else vr(acc, 4)))
    for tt in range(2):
        for es in range(4):
            q = ar(AQ + (tt * 4 + es) * 4, 4)
            mm(SX0, ar(AK + 4 * es, 4), q, es == 0)
            if tt == 1:
                mm(SX1, ar(AK + 16 + 4 * es, 4), q, es == 0)
        if tt == 0: a('s_waitcnt vmcnt(4)')
        for es in range(4):
            mm(SM, ar(AKM + 4 * es, 4), ar(AQ + (tt * 4 + es) * 4, 4), es == 0)
        DG = SX0 if tt == 0 else SX1
        for j in range(4):
            a('v_add_f32 %s, %s, %s' % (vr(DG + j), vr(DG + j), vr(MB_ + j)))
        a('v_max3_f32 %s, %s, %s, %s' % (vr(T), vr(SX0), vr(SX0 + 1), vr(SX0 + 2)))
        if tt == 1:
            a('v_max3_f32 %s, %s, %s, %s' % (vr(T), vr(SX1), vr(SX1 + 1), vr(T)))
            a('v_max3_f32 %s, %s, %s, %s' % (vr(T), vr(SX1 + 2), vr(SX1 + 3), vr(T)))
        a('v_max3_f32 %s, %s, %s, %s' % (vr(T1), vr(SX0 + 3), vr(SM), vr(SM + 1)))
        a('v_max_f32 %s, %s, %s' % (vr(T), vr(T), vr(T1)))
        a('v_mov_b32 %s, %s' % (vr(T1), vr(T)))
        a('v_permlane32_swap_b32 %s, %s' % (vr(T), vr(T1)))
        a('v_max_f32 %s, %s, %s' % (vr(T), vr(T), vr(T1)))
        a('v_mov_b32 %s, %s' % (vr(T1), vr(T)))
        a('v_permlane16_swap_b32 %s, %s' % (vr(T), vr(T1)))
        a('v_max_f32 %s, %s, %s' % (vr(T), vr(T), vr(T1)))
        a('v_mul_f32 %s, s27, %s' % (vr(T), vr(T)))
        regs = [SM, SM + 1] + [SX0 + j for j in range(4)] + ([SX1 + j for j in range(4)] if tt == 1 else [])
        for r in regs:
            a('v_fma_f32 %s, %s, s27, -%s' % (vr(r), vr(r), vr(T)))
        for r in regs:
            a('v_exp_f32 %s, %s' % (vr(r), vr(r)))
        a('v_add_f32 %s, %s, %s' % (vr(LSUM), vr(regs[0]), vr(regs[1])))
        for r in regs[2:]:
            a('v_add_f32 %s, %s, %s' % (vr(LSUM), vr(LSUM), vr(r)))
        a('v_cvt_pk_bf16_f32 %s, %s, %s' % (vr(PMr), vr(SM), vr(SM + 1)))
        a('v_cvt_pk_bf16_f32 %s, %s, %s' % (vr(PMr + 1), vr(SM), vr(SM + 1)))
        a('v_cvt_pk_bf16_f32 %s, %s, %s' % (vr(PXr), vr(SX0), vr(SX0 + 1)))
        a('v_cvt_pk_bf16_f32 %s, %s, %s' % (vr(PXr + 1), vr(SX0 + 2), vr(SX0 + 3)))
        if tt == 1:
            a('v_cvt_pk_bf16_f32 %s, %s, %s' % (vr(PXr + 2), vr(SX1), vr(SX1 + 1)))
            a('v_cvt_pk_bf16_f32 %s, %s, %s' % (vr(PXr + 3), vr(SX1 + 2), vr(SX1 + 3)))
        else:
            a('v_mov_b64 %s, 0' % vr(PXr + 2, 2))
        a('v_mov_b32 %s, %s' % (vr(T1), vr(LSUM)))
        if tt == 0:
            a('s_waitcnt vmcnt(0)')
        for et in range(8):
            a('v_mfma_f32_16x16x16_bf16 %s, %s, %s, 0' % (vr(OAc + 4 * et, 4), ar(AVM + 2 * et, 2), vr(PMr, 2)))
            if et == 0:
                a('v_permlane32_swap_b32 %s, %s' % (vr(LSUM), vr(T1)))
                a('v_add_f32 %s, %s, %s' % (vr(LSUM), vr(LSUM), vr(T1)))
                a('v_mov_b32 %s, %s' % (vr(T1), vr(LSUM)))
            if et == 2:
                a('v_permlane16_swap_b32 %s, %s' % (vr(LSUM), vr(T1)))
                a('v_add_f32 %s, %s, %s' % (vr(LSUM), vr(LSUM), vr(T1)))
                a('v_rcp_f32 %s, %s' % (vr(LSUM), vr(LSUM)))
        for et in range(8):
            a('v_mfma_f32_16x16x32_bf16 %s, %s, %s, %s' % (vr(OAc + 4 * et, 4), ar(AV + 4 * et, 4), vr(PXr, 4), vr(OAc + 4 * et, 4)))
        for et in range(8):
            o = OAc + 4 * et
            for j in range(4):
                a('v_mul_f32 %s, %s, %s' % (vr(o + j), vr(o + j), vr(LSUM)))
            a('v_cvt_pk_bf16_f32 %s, %s, %s' % (vr(OF + tt * 16 + 2 * et), vr(o), vr(o + 1)))
            a('v_cvt_pk_bf16_f32 %s, %s, %s' % (vr(OF + tt * 16 + 2 * et + 1), vr(o + 2), vr(o + 3)))
            if et % 2 == 1:
                es = et // 2
                a('buffer_store_dwordx4 %s, %s, s[4:7], s41 offen offset:%d sc1' % (vr(OF + tt * 16 + 4 * es, 4), vr(VL16), es * 1024))
        a('s_add_u32 s41, s41, 4096')

def gen_attnB(a, name, s_seg, s_c16, s_wave):
    N = name
    VL16 = 4; T = 5
    S_T = 16
    a('v_and_b32 v2, 63, v0')
    a('v_lshlrev_b32 %s, 4, v2' % vr(VL16))
    a('s_load_dwordx2 s[28:29], s[0:1], 128')
    a('s_load_dwordx2 s[30:31], s[0:1], 136')
    build_srd(a, 8, 52, 2097152)
    a('s_waitcnt lgkmcnt(0)')
    build_srd(a, 36, 28, 1024)
    build_srd(a, 32, 30, 2097152)
    static_poll(a, N + '_d0')
    a('s_lshl_b32 s41, s%d, 20' % s_wave)
    a('s_lshl_b32 s%d, s%d, 11' % (S_T, s_c16))
    a('s_add_u32 s41, s41, s%d' % S_T)
    a('s_add_u32 s41, s41, 0x%x' % WOF_OFF)
    for k in range(32):
        for u in range(2):
            a('buffer_load_dwordx4 %s, %s, s[4:7], s41 offen offset:%d' % (ar((k * 2 + u) * 4, 4), vr(VL16), u * 1024))
        a('s_add_u32 s41, s41, 0x8000')
    a('s_barrier')
    a('buffer_load_dwordx4 v[8:11], %s, s[36:39], 0 offen' % vr(VL16))
    a('s_lshl_b32 s%d, s%d, 5' % (S_T, s_seg))
    a('s_lshl_b32 s%d, s%d, 3' % (S_T + 1, s_wave))
    a('s_add_u32 s%d, s%d, s%d' % (S_T, S_T, S_T + 1))
    a('s_lshl_b32 s%d, s%d, 10' % (S_T + 1, S_T))
    a('s_add_u32 s%d, s%d, 4096' % (S_T + 2, S_T + 1))
    for k in range(8):
        a('buffer_load_dwordx4 %s, %s, s[8:11], s%d offen offset:%d' % (vr(24 + 4 * k, 4), vr(VL16), S_T + 1 + k // 4, (k % 4) * 1024))
    a('v_and_b32 v64, 15, v2')
    a('v_lshrrev_b32 v65, 4, v2')
    a('v_lshlrev_b32 v66, 14, v65')
    a('v_lshl_add_u32 v66, v64, 1, v66')
    a('s_lshl_b32 s42, s%d, 17' % s_c16)
    a('s_lshr_b32 s%d, s%d, 1' % (S_T, s_wave))
    a('s_lshl_b32 s%d, s%d, 16' % (S_T, S_T))
    a('s_add_u32 s42, s42, s%d' % S_T)
    a('s_lshl_b32 s%d, s%d, 6' % (S_T, s_seg))
    a('s_add_u32 s42, s42, s%d' % S_T)
    a('s_and_b32 s%d, s%d, 1' % (S_T, s_wave))
    a('s_lshl_b32 s%d, s%d, 5' % (S_T, S_T))
    a('s_add_u32 s42, s42, s%d' % S_T)
    a('s_add_u32 s42, s42, 0x%x' % BOUT_OFF)
    for j in range(4):
        a('buffer_load_ushort %s, v66, s[4:7], s42 offen' % vr(68 + j))
        a('s_add_u32 s42, s42, 4096')
    a('s_waitcnt vmcnt(12)')
    for j in range(4):
        a('v_lshlrev_b32 %s, 16, %s' % (vr(12 + 2 * j), vr(8 + j)))
        a('v_and_b32 %s, 0xffff0000, %s' % (vr(13 + 2 * j), vr(8 + j)))
    a('s_mov_b32 s26, 0x3f803f80')
    for k in range(8):
        a('s_waitcnt vmcnt(%d)' % (11 - k))
        b = 24 + 4 * k
        for j in range(4):
            a('v_lshlrev_b32 v20, 16, %s' % vr(b + j))
            a('v_and_b32 v21, 0xffff0000, %s' % vr(b + j))
            a('v_mul_f32 v20, v20, %s' % vr(12 + 2 * j))
            a('v_mul_f32 v21, v21, %s' % vr(13 + 2 * j))
            a('v_cvt_pk_bf16_f32 v20, v20, v21')
            a('v_dot2_f32_bf16 %s, v20, s26, %s' % (vr(56 + k), '0' if j == 0 else vr(56 + k)))
    for k in range(8):
        for sh in (1, 2, 4, 8):
            a('v_mov_b32_dpp v20, %s row_ror:%d row_mask:0xf bank_mask:0xf' % (vr(56 + k), sh))
            a('v_add_f32 %s, %s, v20' % (vr(56 + k), vr(56 + k)))
        a('v_mov_b32 v20, %s' % vr(56 + k))
        a('v_permlane32_swap_b32 %s, v20' % vr(56 + k))
        a('v_add_f32 %s, %s, v20' % (vr(56 + k), vr(56 + k)))
        a('v_mov_b32 v20, %s' % vr(56 + k))
        a('v_permlane16_swap_b32 %s, v20' % vr(56 + k))
        a('v_add_f32 %s, %s, v20' % (vr(56 + k), vr(56 + k)))
    a('v_mov_b32 v22, v56')
    for k in range(1, 8):
        a('v_cmp_eq_u32 vcc, %d, v2' % k)
        a('v_cndmask_b32 v22, v22, %s, vcc' % vr(56 + k))
    a('v_cvt_pk_bf16_f32 v22, v22, v22')
    a('v_and_b32 v22, 0xffff0000, v22')
    a('v_mul_f32 v22, 0xbfb8aa3b, v22')
    a('v_exp_f32 v22, v22')
    a('v_add_f32 v22, 1.0, v22')
    a('v_rcp_f32 v22, v22')
    a('v_cvt_pk_bf16_f32 v22, v22, v22')
    a('v_and_b32 v22, 0xffff0000, v22')
    a('s_lshl_b32 s%d, s%d, 5' % (S_T, s_wave))
    a('s_add_u32 s%d, s%d, 16384' % (S_T, S_T))
    a('v_lshlrev_b32 v23, 2, v2')
    a('v_add_u32 v23, s%d, v23' % S_T)
    a('s_mov_b64 exec, 0xff')
    a('ds_write_b32 v23, v22')
    a('s_mov_b64 exec, -1')
    a('v_lshlrev_b32 v67, 10, v64')
    a('v_lshl_add_u32 v67, v65, 3, v67')
    a('s_lshl_b32 s24, s%d, 15' % s_seg)
    a('s_and_b32 s%d, s%d, 1' % (S_T, s_wave))
    a('s_lshl_b32 s%d, s%d, 14' % (S_T, S_T))
    a('s_add_u32 s24, s24, s%d' % S_T)
    a('s_lshl_b32 s%d, s%d, 6' % (S_T, s_c16))
    a('s_add_u32 s24, s24, s%d' % S_T)
    a('s_lshr_b32 s%d, s%d, 1' % (S_T, s_wave))
    a('s_lshl_b32 s%d, s%d, 5' % (S_T, S_T))
    a('s_add_u32 s43, s24, s%d' % S_T)
    prog_poll(a, N + '_d1', s_seg, acnt=True)
    a('s_lshl_b32 s40, s%d, 5' % s_seg)
    a('s_lshl_b32 s%d, s%d, 3' % (S_T, s_wave))
    a('s_add_u32 s40, s40, s%d' % S_T)
    a('s_lshl_b32 s40, s40, 13')
    a('s_add_u32 s40, s40, 0x%x' % OF_OFF)
    OB = [96, 128, 160, 192]
    def ldo(i):
        for k in range(8):
            if k == 4: a('s_add_u32 s40, s40, 4096')
            a('buffer_load_dwordx4 %s, %s, s[4:7], s40 offen offset:%d' % (vr(OB[i % 4] + 4 * k, 4), vr(VL16), (k % 4) * 1024))
        a('s_add_u32 s40, s40, 4096')
    for i in range(4): ldo(i)
    YA = 72
    for i in range(8):
        rem = min(3, 7 - i)
        a('s_waitcnt vmcnt(%d)' % (8 * rem))
        for es in range(4):
            for u in range(2):
                for tt in range(2):
                    y = vr(YA + (u * 2 + tt) * 4, 4)
                    first = (i == 0 and es == 0)
                    a('v_mfma_f32_16x16x32_bf16 %s, %s, %s, %s' % (y, ar(((i * 4 + es) * 2 + u) * 4, 4), vr(OB[i % 4] + (tt * 4 + es) * 4, 4), '0' if first else y))
        if i + 4 < 8: ldo(i + 4)
    a('s_lshl_b32 s%d, s%d, 12' % (S_T, s_wave))
    a('v_add_u32 %s, s%d, %s' % (vr(T), S_T, vr(VL16)))
    for k in range(4):
        a('ds_write_b128 %s, %s offset:%d' % (vr(T), vr(YA + 4 * k, 4), k * 1024))
    a('s_lshl_b32 s%d, s%d, 10' % (S_T, s_wave))
    a('v_add_u32 %s, s%d, %s' % (vr(T), S_T, vr(VL16)))
    a('s_and_b32 s%d, s%d, 1' % (S_T, s_wave))
    a('s_lshl_b32 s%d, s%d, 6' % (S_T, S_T))
    a('s_add_u32 s%d, s%d, 16384' % (S_T, S_T))
    a('v_lshlrev_b32 v90, 2, v64')
    a('v_add_u32 v90, s%d, v90' % S_T)
    a('s_waitcnt lgkmcnt(0)')
    a('s_barrier')
    for p in range(4):
        a('ds_read_b128 %s, %s offset:%d' % (vr(8 + 4 * p, 4), vr(T), p * 4096))
    a('ds_read_b32 v76, v90')
    a('v_lshl_or_b32 v68, v69, 16, v68')
    a('v_lshl_or_b32 v69, v71, 16, v70')
    a('s_waitcnt lgkmcnt(0)')
    a('v_sub_f32 v78, 1.0, v76')
    a('v_cvt_pk_bf16_f32 v78, v78, v78')
    a('v_and_b32 v78, 0xffff0000, v78')
    for j in range(4):
        a('v_add_f32 %s, %s, %s' % (vr(8 + j), vr(8 + j), vr(12 + j)))
        a('v_add_f32 %s, %s, %s' % (vr(16 + j), vr(16 + j), vr(20 + j)))
    for j in range(4):
        a('v_add_f32 %s, %s, %s' % (vr(8 + j), vr(8 + j), vr(16 + j)))
    a('v_cvt_pk_bf16_f32 v80, v8, v9')
    a('v_cvt_pk_bf16_f32 v81, v10, v11')
    for h2 in range(2):
        a('v_lshlrev_b32 v82, 16, %s' % vr(80 + h2))
        a('v_and_b32 v83, 0xffff0000, %s' % vr(80 + h2))
        a('v_mul_f32 v82, v82, v76')
        a('v_mul_f32 v83, v83, v76')
        a('v_cvt_pk_bf16_f32 v82, v82, v83')
        a('v_lshlrev_b32 v84, 16, %s' % vr(68 + h2))
        a('v_and_b32 v85, 0xffff0000, %s' % vr(68 + h2))
        a('v_mul_f32 v84, v84, v78')
        a('v_mul_f32 v85, v85, v78')
        a('v_cvt_pk_bf16_f32 v84, v84, v85')
        a('v_lshlrev_b32 v83, 16, v82')
        a('v_and_b32 v82, 0xffff0000, v82')
        a('v_lshlrev_b32 v85, 16, v84')
        a('v_and_b32 v84, 0xffff0000, v84')
        a('v_add_f32 v83, v83, v85')
        a('v_add_f32 v82, v82, v84')
        a('v_cvt_pk_bf16_f32 %s, v83, v82' % vr(86 + h2))
    a('buffer_store_dwordx2 v[86:87], v67, s[32:35], s43 offen')
```

```python
from asmgen import Asm, vr, ar, sr
from layout import *

L_WV = 32768
L_KX = 0
L_EX = L_KX + 16384
L_QK = L_EX + 8192
L_O = L_QK + 4096
L_MISC = L_O + 2048
LDS_BYTES = 163840
L_STG = 0

AF = 0
ACC = 32
WVS = 56
VX = 88
V_IDX = 104
V_T0 = 105
V_ONES = 106
V_HONES = 110
V_SEL = 112
V_L16 = 116
V_WVA = 117
V_QKW = 118
V_FTR = 119
V_OW = 120
V_OTR = 121
V_H1ST = 122
V_H1LD = 123
V_H2LD = 124
V_H2ST = 125
V_BIAS = 126
V_T1 = 127
V_LANE = 7
WV1 = 128
WO = 192

S_WS = 4
S_W = 8
S_H = 12
S_WV = 13
S_STEP = 14
S_T = 15
S_H1ST = 20
S_H1LD = 28
S_H2 = 32
S_KXP = 34
S_VXP = 35
S_KM = 36
S_VM = 37
S_ONELO = 38
S_ONEHI = 39
S_STMASK = 40
S_C = 42
S_CNT = 43
S_DBG = 44
S_HI32 = 48
S_PTR = 50
S_DUMP = 66
S_M0A = 67
S_M0B = 68
S_TS = 70
S_KMX = 72
S_FLG = 74
S_NB = 75
S_NBW = 69

import os
PK = int(os.environ.get('PK', '1')); PGAP = int(os.environ.get('PGAP', '1')); PMASK = int(os.environ.get('PMASK', '1'))
PD1 = int(os.environ.get('PD1', '0')); PD2 = int(os.environ.get('PD2', '0'))
SCALE_LOG2E = 0.08838834764831845 * 1.4426950408889634

def f32bits(x):
    import struct
    return struct.unpack('<I', struct.pack('<f', x))[0]

def build_srd(a, d, ptr_lo, nbytes):
    a('s_mov_b32 s%d, s%d' % (d, ptr_lo))
    a('s_and_b32 s%d, s%d, 0xffff' % (d + 1, ptr_lo + 1))
    a('s_mov_b32 s%d, 0x%x' % (d + 2, nbytes))
    a('s_mov_b32 s%d, 0x00020000' % (d + 3))

def gen_role(a, name):
    a('s_load_dwordx2 s[%d:%d], s[0:1], 144' % (S_T + 1, S_T + 2))
    a('s_getreg_b32 s%d, hwreg(HW_REG_XCC_ID)' % S_T)
    a('s_and_b32 s%d, s%d, 15' % (S_T, S_T))
    a('s_waitcnt lgkmcnt(0)')
    build_srd(a, S_DBG, S_T + 1, 256)
    a('v_lshrrev_b32 v1, 6, v0')
    a('v_readfirstlane_b32 s%d, v1' % S_WV)
    a('v_and_b32 %s, 63, v0' % vr(V_LANE))
    a('s_cmp_lg_u32 s%d, 0' % S_WV)
    a('s_cbranch_scc1 %s_role_wait' % name)
    a('s_mov_b64 exec, 1')
    a('s_lshl_b32 s%d, s%d, 2' % (S_T + 3, S_T))
    a('v_mov_b32 v2, s%d' % (S_T + 3))
    a('v_mov_b32 v3, 1')
    a('buffer_atomic_add v3, v2, s[%d:%d], 0 offen sc0' % (S_DBG, S_DBG + 3))
    a('s_waitcnt vmcnt(0)')
    a('v_readfirstlane_b32 s%d, v3' % (S_T + 3))
    a('s_mov_b32 s%d, 99' % S_H)
    a('s_cmp_gt_u32 s%d, 31' % (S_T + 3))
    a('s_cbranch_scc1 %s_role_pub' % name)
    a('s_cmp_lg_u32 s%d, 31' % (S_T + 3))
    a('s_cbranch_scc1 %s_role_poll' % name)
    a('s_add_u32 s%d, s%d, 1' % (S_T + 4, S_T))
    a('v_mov_b32 v4, s%d' % (S_T + 4))
    a('v_mov_b32 v5, 0')
    a('v_mov_b32 v2, 64')
    a('buffer_atomic_cmpswap v[4:5], v2, s[%d:%d], 0 offen' % (S_DBG, S_DBG + 3))
    a('s_waitcnt vmcnt(0)')
    a('%s_role_poll:' % name)
    a('s_mov_b32 s%d, 0x400000' % S_CNT)
    a('v_mov_b32 v2, 64')
    a('%s_role_poll_loop:' % name)
    a('buffer_load_dword v4, v2, s[%d:%d], 0 offen sc1' % (S_DBG, S_DBG + 3))
    a('s_waitcnt vmcnt(0)')
    a('v_readfirstlane_b32 s%d, v4' % (S_T + 4))
    a('s_sub_u32 s%d, s%d, 1' % (S_CNT, S_CNT))
    a('s_cmp_eq_u32 s%d, 0' % S_CNT)
    a('s_cbranch_scc1 %s_role_pub' % name)
    a('s_cmp_eq_u32 s%d, 0' % (S_T + 4))
    a('s_cbranch_scc1 %s_role_poll_loop' % name)
    a('s_sub_u32 s%d, s%d, 1' % (S_T + 4, S_T + 4))
    a('s_cmp_lg_u32 s%d, s%d' % (S_T + 4, S_T))
    a('s_cbranch_scc1 %s_role_pub' % name)
    a('s_mov_b32 s%d, s%d' % (S_H, S_T + 3))
    a('%s_role_pub:' % name)
    a('v_mov_b32 v2, %d' % L_MISC)
    a('v_mov_b32 v3, s%d' % S_H)
    a('ds_write_b32 v2, v3')
    a('s_waitcnt lgkmcnt(0)')
    a('s_mov_b64 exec, -1')
    a('%s_role_wait:' % name)
    a('s_barrier')
    a('v_mov_b32 v2, %d' % L_MISC)
    a('ds_read_b32 v3, v2')
    a('s_waitcnt lgkmcnt(0)')
    a('v_readfirstlane_b32 s%d, v3' % S_H)
    a('s_barrier')

def gen_chain_body(a, name, nsteps=64, dump=False, stamps=False, fused=False):
    SC = ' sc1' if fused else ''
    lane = vr(V_LANE)
    if stamps: a('s_memrealtime s[94:95]')
    a('s_load_dwordx16 s[%d:%d], s[0:1], 0' % (S_PTR + 2, S_PTR + 17))
    a('s_load_dwordx2 s[%d:%d], s[0:1], 152' % (S_PTR, S_PTR + 1))
    a('s_waitcnt lgkmcnt(0)')
    P = lambda i: S_PTR + 2 + 2 * i
    build_srd(a, S_WS, S_PTR, WS_BYTES)
    a('v_and_b32 v1, 15, %s' % lane)
    a('v_lshrrev_b32 v2, 4, %s' % lane)
    a('v_lshlrev_b32 %s, 4, %s' % (vr(V_L16), lane))
    a('v_and_b32 v3, 2, v1')
    a('v_cmp_eq_u32 vcc, 0, v3')
    a('v_mov_b32 v3, 0xeeee')
    a('v_mov_b32 v4, 0x4444')
    a('v_cndmask_b32 %s, v3, v4, vcc' % vr(V_IDX))
    for i in range(4):
        a('v_mov_b32 %s, 0x3f803f80' % vr(V_ONES + i))
    a('v_cmp_gt_u32 vcc, 32, %s' % lane)
    a('v_mov_b32 v3, 0xff800000')
    a('v_mov_b32 v4, 0')
    a('v_cndmask_b32 %s, v3, v4, vcc' % vr(V_BIAS))
    a('s_lshl_b32 s%d, s%d, 15' % (S_T, S_WV))
    a('s_add_u32 s%d, s%d, %d' % (S_T, S_T, L_WV))
    a('v_add_u32 %s, s%d, %s' % (vr(V_WVA), S_T, vr(V_L16)))
    a('s_lshl_b32 s%d, s%d, 10' % (S_T, S_WV))
    a('s_add_u32 s%d, s%d, %d' % (S_T, S_T, L_QK))
    a('v_lshlrev_b32 v3, 5, v1')
    a('v_lshl_add_u32 v3, v2, 3, v3')
    a('v_add_u32 %s, s%d, v3' % (vr(V_QKW), S_T))
    a('v_lshrrev_b32 v5, 2, v1')
    a('v_and_b32 v6, 3, v1')
    a('v_lshl_add_u32 v3, v2, 2, v5')
    a('v_lshlrev_b32 v3, 5, v3')
    a('v_lshl_add_u32 v3, v6, 3, v3')
    a('v_add_u32 %s, %d, v3' % (vr(V_FTR), L_QK))
    a('v_lshl_add_u32 v3, v2, 3, v5')
    a('v_lshlrev_b32 v3, 5, v3')
    a('v_lshl_add_u32 v3, v6, 3, v3')
    a('v_add_u32 %s, %d, v3' % (vr(V_OTR), L_O))
    a('v_and_b32 v3, 1, v1')
    a('v_lshl_add_u32 v3, v5, 1, v3')
    a('v_lshlrev_b32 v3, 5, v3')
    a('v_bfe_u32 v4, v1, 1, 1')
    a('v_lshl_add_u32 v3, v4, 2, v3')
    a('v_lshl_add_u32 v3, v2, 3, v3')
    a('s_lshl_b32 s%d, s%d, 9' % (S_T, S_WV))
    a('s_add_u32 s%d, s%d, %d' % (S_T, S_T, L_O))
    a('v_add_u32 %s, s%d, v3' % (vr(V_OW), S_T))
    a('v_lshrrev_b32 v3, 5, %s' % lane)
    a('v_lshlrev_b32 v3, 13, v3')
    a('v_and_b32 v4, 1, v2')
    a('v_lshl_add_u32 v3, v4, 7, v3')
    a('v_lshl_add_u32 v3, v1, 3, v3')
    a('s_lshl_b32 s%d, s%d, 14' % (S_T, S_WV))
    a('s_lshl_b32 s%d, s%d, 8' % (S_T + 1, S_H))
    a('s_add_u32 s%d, s%d, s%d' % (S_T, S_T, S_T + 1))
    a('v_add_u32 %s, s%d, v3' % (vr(V_H1ST), S_T))
    a('v_lshrrev_b32 v3, 2, %s' % lane)
    a('v_lshlrev_b32 v3, 8, v3')
    a('v_lshl_add_u32 v3, v6, 4, v3')
    a('s_lshl_b32 s%d, s%d, 13' % (S_T, S_H))
    a('s_lshl_b32 s%d, s%d, 6' % (S_T + 1, S_WV))
    a('s_add_u32 s%d, s%d, s%d' % (S_T, S_T, S_T + 1))
    a('v_add_u32 %s, s%d, v3' % (vr(V_H1LD), S_T))
    a('s_lshl_b32 s%d, s%d, 11' % (S_T, S_WV))
    a('v_add_u32 %s, s%d, %s' % (vr(V_H2LD), S_T, vr(V_L16)))
    a('v_lshlrev_b32 v3, 8, v2')
    a('v_and_b32 v4, 1, %s' % lane)
    a('v_lshl_add_u32 v3, v4, 5, v3')
    a('v_bfe_u32 v4, %s, 1, 1' % lane)
    a('v_lshl_add_u32 v3, v4, 2, v3')
    a('s_lshr_b32 s%d, s%d, 1' % (S_T, S_H))
    a('s_lshl_b32 s%d, s%d, 9' % (S_T, S_T))
    a('s_and_b32 s%d, s%d, 1' % (S_T + 1, S_H))
    a('s_lshl_b32 s%d, s%d, 7' % (S_T + 1, S_T + 1))
    a('s_add_u32 s%d, s%d, s%d' % (S_T, S_T, S_T + 1))
    a('s_lshr_b32 s%d, s%d, 1' % (S_T + 1, S_WV))
    a('s_lshl_b32 s%d, s%d, 6' % (S_T + 1, S_T + 1))
    a('s_add_u32 s%d, s%d, s%d' % (S_T, S_T, S_T + 1))
    a('s_and_b32 s%d, s%d, 1' % (S_T + 1, S_WV))
    a('s_lshl_b32 s%d, s%d, 3' % (S_T + 1, S_T + 1))
    a('s_add_u32 s%d, s%d, s%d' % (S_T, S_T, S_T + 1))
    a('v_add_u32 %s, s%d, v3' % (vr(V_H2ST), S_T))
    a('v_mov_b32 %s, 0x3f803f80' % vr(V_HONES))
    a('v_mov_b32 %s, 0' % vr(V_HONES + 1))
    a('v_and_b32 v3, 1, v1')
    a('v_lshlrev_b32 v3, 2, v3')
    a('v_lshl_add_u32 v3, v5, 1, v3')
    a('v_bfe_u32 v4, v1, 1, 1')
    a('v_add_u32 v3, v3, v4')
    a('v_cmp_gt_u32 vcc, 8, v1')
    a('v_mov_b32 v4, 99')
    a('v_cndmask_b32 v3, v4, v3, vcc')
    a('v_mov_b32 v8, 0x3f80')
    a('v_mov_b32 v9, 0x3f800000')
    a('v_mov_b32 v10, 0')
    for k in range(4):
        a('v_cmp_eq_u32 vcc, %d, v3' % (2 * k))
        a('v_cndmask_b32 v4, v10, v8, vcc')
        a('v_cmp_eq_u32 vcc, %d, v3' % (2 * k + 1))
        a('v_cndmask_b32 %s, v4, v9, vcc' % vr(V_SEL + k))
    a('s_mov_b32 s%d, 0' % (S_KMX + 1))
    a('s_cmp_eq_u32 s%d, 0' % S_H)
    a('s_cselect_b32 s%d, -1, 1' % S_KMX)
    a('s_lshl_b32 s%d, s%d, 7' % (S_T, S_H))
    a('s_add_u32 s%d, s%d, 0x%x' % (S_T, S_T, FLG_OFF + 16384))
    a('s_cmp_eq_u32 s%d, 0' % S_H)
    a('s_cselect_b32 s%d, 0x%x, s%d' % (S_FLG, FLG_OFF, S_T))
    for par in range(2):
        for u in range(4):
            a('s_mov_b32 s%d, 0x%x' % (S_H1ST + par * 4 + u, H1_OFF + par * 262144 + u * 65536))
        for it in range(2):
            a('s_mov_b32 s%d, 0x%x' % (S_H1LD + par * 2 + it, H1_OFF + par * 262144 + it * 4096))
        a('s_mov_b32 s%d, 0x%x' % (S_H2 + par, H2_OFF + par * 8192))
    a('s_mov_b32 s%d, 0x00003f80' % S_ONELO)
    a('s_mov_b32 s%d, 0x3f800000' % S_ONEHI)
    a('s_mov_b32 s%d, 0x000f000f' % S_STMASK)
    a('s_mov_b32 s%d, 0' % (S_STMASK + 1))
    a('s_mov_b32 s%d, 0x%x' % (S_C, f32bits(SCALE_LOG2E)))
    a('s_mov_b32 s%d, 0' % S_HI32)
    a('s_mov_b32 s%d, -1' % (S_HI32 + 1))
    if fused:
        a('v_mov_b64 v[8:9], -1')
        a('v_mov_b64 v[10:11], -1')
        for par in range(2):
            for it in range(2):
                a('buffer_store_dwordx4 v[8:11], %s, s[%d:%d], s%d offen' % (vr(V_H1LD), S_WS, S_WS + 3, S_H1LD + par * 2 + it))
        a('s_mov_b64 exec, s[%d:%d]' % (S_STMASK, S_STMASK + 1))
        for par in range(2):
            a('buffer_store_dword v8, %s, s[%d:%d], s%d offen' % (vr(V_H2ST), S_WS, S_WS + 3, S_H2 + par))
            a('buffer_store_dword v8, %s, s[%d:%d], s%d offen offset:16' % (vr(V_H2ST), S_WS, S_WS + 3, S_H2 + par))
        a('s_mov_b64 exec, 7')
        a('s_lshl_b32 s%d, s%d, 7' % (S_T, S_H))
        a('s_add_u32 s%d, s%d, 0x%x' % (S_T, S_T, FLG_OFF))
        a('v_mov_b32 v9, s%d' % S_T)
        a('s_lshl_b32 s%d, s%d, 8' % (S_T, S_H))
        a('s_add_u32 s%d, s%d, 0x%x' % (S_T, S_T, FLG_OFF + 4096 - 128))
        a('v_lshlrev_b32 v10, 7, %s' % lane)
        a('v_add_u32 v10, s%d, v10' % S_T)
        a('v_cmp_eq_u32 vcc, 0, %s' % lane)
        a('v_cndmask_b32 v9, v10, v9, vcc')
        a('v_mov_b32 v8, 0')
        a('buffer_store_dword v8, v9, s[%d:%d], 0 offen sc1' % (S_WS, S_WS + 3))
        a('s_mov_b64 exec, -1')
        a('s_nop 1')
    a('v_and_b32 v60, 15, v0')
    a('v_lshrrev_b32 v61, 4, v0')
    a('v_lshlrev_b32 v62, 4, v60')
    a('v_lshl_add_u32 v63, v61, 13, v62')
    a('s_lshl_b32 s%d, s%d, 8' % (S_T, S_H))
    a('v_add_u32 v63, s%d, v63' % S_T)
    a('v_lshl_add_u32 v64, v61, 10, v62')
    a('s_lshl_b32 s%d, s%d, 17' % (S_T, S_H))
    a('v_add_u32 v64, s%d, v64' % S_T)
    a('v_lshl_add_u32 v65, v61, 8, v62')
    a('v_add_u32 v65, %d, v65' % L_STG)
    a('v_lshl_add_u32 v3, v2, 3, v5')
    a('v_lshlrev_b32 v3, 8, v3')
    a('v_lshl_add_u32 v3, v6, 3, v3')
    a('s_lshl_b32 s%d, s%d, 6' % (S_T, S_WV))
    a('s_add_u32 s%d, s%d, %d' % (S_T, S_T, L_STG))
    a('v_add_u32 v66, s%d, v3' % S_T)
    a('s_lshl_b32 s%d, s%d, 5' % (S_T, S_WV))
    a('s_add_u32 s%d, s%d, %d' % (S_T, S_T, L_STG))
    a('v_add_u32 v67, s%d, v3' % S_T)
    for i, m in enumerate((2, 3, 4, 5)):
        build_srd(a, 76 + 4 * i, P(m), 4194304)
    build_srd(a, S_W, P(1), 8192)
    chunks = []
    for m in range(3):
        for t in range(8):
            chunks.append((m, t, 0))
    for t2 in range(2):
        for cb in range(4):
            chunks.append((3, t2, cb))
    def issue_loads(ci):
        m, t, cb = chunks[ci]
        base = 8 + (ci % 3) * 16
        for i in range(4):
            if m < 3:
                off = (64 * t + 16 * i) * 8192
                a('s_mov_b32 s%d, 0x%x' % (S_T, off))
                a('buffer_load_dwordx4 %s, v63, s[%d:%d], s%d offen' % (vr(base + 4 * i, 4), 76 + 4 * m, 79 + 4 * m, S_T))
            else:
                off = (64 * t + 16 * i) * 1024 + cb * 256
                a('s_mov_b32 s%d, 0x%x' % (S_T, off))
                a('buffer_load_dwordx4 %s, v64, s[88:91], s%d offen' % (vr(base + 4 * i, 4), S_T))
    def early_sig():
        a('s_cmp_lg_u32 s%d, 0' % S_WV)
        a('s_cbranch_scc1 %s_noini' % name)
        a('s_mov_b64 exec, 1')
        a('v_mov_b32 v84, 80')
        a('v_mov_b32 v85, 1')
        a('buffer_atomic_add v85, v84, s[%d:%d], 0 offen' % (S_DBG, S_DBG + 3))
        a('s_mov_b64 exec, -1')
        a('%s_noini:' % name)
    issue_loads(0); issue_loads(1)
    for ci, (m, t, cb) in enumerate(chunks):
        if ci + 2 < len(chunks):
            issue_loads(ci + 2)
            a('s_waitcnt vmcnt(8)')
        elif ci + 1 < len(chunks):
            a('s_waitcnt vmcnt(4)')
        else:
            a('s_waitcnt vmcnt(0)')
        base = 8 + (ci % 3) * 16
        sb = (ci % 2) * 16384
        for i in range(4):
            a('ds_write_b128 v65, %s offset:%d' % (vr(base + 4 * i, 4), sb + i * 4096))
        a('s_waitcnt lgkmcnt(0)')
        a('s_barrier')
        if fused and ci == 1:
            early_sig()
        for u in range(2):
            if m == 0:
                dst = lambda k: ar((u * 8 + t) * 8 + k, 2)
                colo = 32 * u; addr = 'v66'
            elif m < 3:
                if u == 0:
                    dst = lambda k: ar(64 + 64 * m + t * 8 + k, 2)
                elif m == 1:
                    dst = lambda k: vr(68 + k, 2)
                else:
                    dst = lambda k: vr(WV1 + t * 8 + k, 2)
                colo = 32 * u; addr = 'v66'
            else:
                if cb < 2:
                    dst = lambda k: vr(WO + ((2 * cb + u) * 2 + t) * 8 + k, 2)
                else:
                    dst = lambda k: vr(68 + 8 * u + k, 2)
                colo = 32 * u; addr = 'v66'
            for k, ro in enumerate((0, 4, 32, 36)):
                a('ds_read_b64_tr_b16 %s, %s offset:%d' % (dst(2 * k), addr, sb + ro * 256 + colo))
        if m == 1:
            a('s_waitcnt lgkmcnt(0)')
            for hh in range(2):
                a('ds_write_b128 %s, %s offset:%d' % (vr(V_WVA), vr(68 + 4 * hh, 4), t * 2048 + hh * 1024))
        if m == 3 and cb >= 2:
            a('s_waitcnt lgkmcnt(0)')
            for u in range(2):
                for hh in range(2):
                    a('ds_write_b128 %s, %s offset:%d' % (vr(V_WVA), vr(68 + 8 * u + 4 * hh, 4), (8 + ((2 * (cb - 2) + u) * 2 + t)) * 2048 + hh * 1024))
    a('s_waitcnt lgkmcnt(0)')
    a('s_barrier')
    if stamps:
        a('s_memrealtime s[96:97]')
        a('s_waitcnt lgkmcnt(0)')
        a('v_mov_b32 v3, s96')
        a('s_lshl_b32 s%d, s%d, 2' % (S_T, S_H))
        a('s_add_u32 s%d, s%d, s%d' % (S_T, S_T, S_WV))
        a('s_lshl_b32 s%d, s%d, 2' % (S_T, S_T))
        a('s_add_u32 s%d, s%d, 0x%x' % (S_T, S_T, STAMP_OFF + 0x100000))
        a('v_mov_b32 v4, 0')
        a('s_mov_b64 exec, 1')
        a('buffer_store_dword v3, v4, s[%d:%d], s%d offen' % (S_WS, S_WS + 3, S_T))
        a('s_mov_b64 exec, -1')
    a('s_lshl_b32 s%d, s%d, 13' % (S_KXP, S_H))
    a('s_add_u32 s%d, s%d, 0x%x' % (S_VXP, S_KXP, VX_OFF))
    a('s_lshl_b32 s%d, s%d, 12' % (S_KM, S_H))
    a('s_lshl_b32 s%d, s%d, 10' % (S_T, S_WV))
    a('s_add_u32 s%d, s%d, s%d' % (S_VM, S_KM, S_T))
    a('s_add_u32 s%d, s%d, 0x%x' % (S_VM, S_VM, VM_OFF))
    a('s_add_u32 s%d, s%d, 0x%x' % (S_KM, S_KM, KM_OFF))
    a('s_lshl_b32 s%d, s%d, 11' % (S_T, S_WV))
    a('s_add_u32 s%d, s%d, %d' % (S_M0A, S_T, L_KX))
    a('s_add_u32 s%d, s%d, %d' % (S_M0B, S_T, L_KX + 8192))
    a('s_mov_b32 s%d, 0x%x' % (S_DUMP, DBG_OFF))
    a('s_mov_b32 s%d, 0' % S_STEP)
    def prefetch_ops(par):
        return [
        's_mov_b32 m0, s%d' % (S_M0A if par == 0 else S_M0B),
        's_add_u32 s%d, s%d, 0x40000' % (S_T + 2, S_KXP),
        'buffer_load_dwordx4 %s, s[%d:%d], s%d offen%s lds' % (vr(V_H2LD), S_WS, S_WS + 3, S_KXP, SC),
        'buffer_load_dwordx4 %s, s[%d:%d], s%d offen offset:1024%s lds' % (vr(V_H2LD), S_WS, S_WS + 3, S_KXP, SC),
        'buffer_load_dwordx4 %s, %s, s[%d:%d], s%d offen%s' % (vr(VX + par * 8, 4), vr(V_H2LD), S_WS, S_WS + 3, S_VXP, SC),
        'buffer_load_dwordx4 %s, %s, s[%d:%d], s%d offen offset:1024%s' % (vr(VX + par * 8 + 4, 4), vr(V_H2LD), S_WS, S_WS + 3, S_VXP, SC),
        's_mov_b32 s%d, s%d' % (S_KXP, S_T + 2),
        's_add_u32 s%d, s%d, 0x40000' % (S_VXP, S_VXP)]
    def prefetch(par):
        for o in prefetch_ops(par): a(o)
    def rstamp(k):
        a('s_memrealtime s[96:97]')
        a('s_waitcnt lgkmcnt(0)')
        a('v_mov_b32 %s, s96' % vr(V_T0))
        a('s_lshl_b32 s%d, s%d, 2' % (S_T, S_H))
        a('s_add_u32 s%d, s%d, s%d' % (S_T, S_T, S_WV))
        a('s_lshl_b32 s%d, s%d, 2' % (S_T, S_T))
        a('s_add_u32 s%d, s%d, 0x%x' % (S_T, S_T, STAMP_OFF + 0x100000 + 0x1000 * k))
        a('v_mov_b32 %s, 0' % vr(V_T1))
        a('s_mov_b64 exec, 1')
        a('buffer_store_dword %s, %s, s[%d:%d], s%d offen' % (vr(V_T0), vr(V_T1), S_WS, S_WS + 3, S_T))
        a('s_mov_b64 exec, -1')
    def dbg_wait(tag, word, target):
        a('s_mov_b32 s%d, 0x200000' % S_CNT)
        a('v_mov_b32 %s, %s' % (vr(V_T1), word))
        a('%s_%s:' % (name, tag))
        a('buffer_load_dword %s, %s, s[%d:%d], 0 offen sc1' % (vr(V_BIAS), vr(V_T1), S_DBG, S_DBG + 3))
        a('s_waitcnt vmcnt(0)')
        a('v_readfirstlane_b32 s%d, %s' % (S_T + 3, vr(V_BIAS)))
        a('s_cmp_ge_u32 s%d, %d' % (S_T + 3, target))
        a('s_cbranch_scc1 %s_%s_ok' % (name, tag))
        a('s_sleep 2')
        a('s_sub_u32 s%d, s%d, 1' % (S_CNT, S_CNT))
        a('s_cbranch_scc0 %s_%s' % (name, tag))
        a('%s_%s_ok:' % (name, tag))
    def dbg_add(word):
        a('s_mov_b64 exec, 1')
        a('v_mov_b32 %s, %d' % (vr(V_T1), word * 4))
        a('v_mov_b32 %s, 1' % vr(V_T0))
        a('buffer_atomic_add %s, %s, s[%d:%d], 0 offen' % (vr(V_T0), vr(V_T1), S_DBG, S_DBG + 3))
        a('s_mov_b64 exec, -1')
    if fused:
        a('s_mov_b32 s%d, 0x200000' % S_CNT)
        a('v_lshrrev_b32 %s, 2, %s' % (vr(V_T1), vr(V_L16)))
        a('%s_w0:' % name)
        a('buffer_load_dword %s, %s, s[%d:%d], 0 offen sc1' % (vr(V_BIAS), vr(V_T1), S_DBG, S_DBG + 3))
        a('s_waitcnt vmcnt(0)')
        a('v_readlane_b32 s%d, %s, 20' % (S_T + 3, vr(V_BIAS)))
        a('v_readlane_b32 s%d, %s, 24' % (S_T + 4, vr(V_BIAS)))
        a('s_lshl_b32 s%d, s%d, 1' % (S_T + 3, S_T + 3))
        a('s_min_u32 s%d, s%d, s%d' % (S_T + 3, S_T + 3, S_T + 4))
        a('s_cmp_ge_u32 s%d, 64' % (S_T + 3))
        a('s_cbranch_scc1 %s_w0ok' % name)
        a('s_sleep 4')
        a('s_sub_u32 s%d, s%d, 1' % (S_CNT, S_CNT))
        a('s_cbranch_scc0 %s_w0' % name)
        a('%s_w0ok:' % name)
        a('v_mov_b32 %s, 0' % vr(V_BIAS))
        a('s_mov_b32 s%d, 2' % S_NB)
        a('s_mov_b32 s%d, 100' % S_NBW)
        if stamps: rstamp(1)
    prefetch(0)
    R2 = VX + 8
    a('v_and_b32 v3, 1, v1')
    a('v_lshl_add_u32 v3, v5, 1, v3')
    a('v_lshlrev_b32 v3, 10, v3')
    a('v_lshl_add_u32 v3, v2, 5, v3')
    a('v_bfe_u32 v4, v1, 1, 1')
    a('v_lshl_add_u32 v3, v4, 2, v3')
    a('s_lshl_b32 s%d, s%d, 8' % (S_T, S_WV))
    a('v_add_u32 v3, s%d, v3' % S_T)
    for tt in range(2):
        for ip in range(4):
            a('buffer_load_dword %s, v3, s[%d:%d], 0 offen offset:%d' % (vr(R2 + tt * 4 + ip), S_W, S_W + 3, tt * 128 + ip * 8))
    for i in range(24):
        a('v_mov_b32 %s, 0' % vr(ACC + i))
    a('s_waitcnt vmcnt(0)')

    def stamp(k):
        if not stamps: return
        a('s_memtime s[%d:%d]' % (76 + 2 * k, 77 + 2 * k))
        if k != 8: return
        a('s_waitcnt lgkmcnt(0)')
        for kk in range(9):
            a('v_writelane_b32 %s, s%d, %d' % (vr(V_T0), 76 + 2 * kk, kk))
        a('s_lshl_b32 s%d, s%d, 2' % (S_T, S_H))
        a('s_add_u32 s%d, s%d, s%d' % (S_T, S_T, S_WV))
        a('s_lshl_b32 s%d, s%d, 6' % (S_T, S_T))
        a('s_add_u32 s%d, s%d, s%d' % (S_T, S_T, S_STEP))
        a('s_lshl_b32 s%d, s%d, 6' % (S_T, S_T))
        a('s_add_u32 s%d, s%d, 0x%x' % (S_T, S_T, STAMP_OFF))
        a('v_lshrrev_b32 %s, 2, %s' % (vr(V_T1), vr(V_L16)))
        a('s_mov_b64 exec, 0x1ff')
        a('buffer_store_dword %s, %s, s[%d:%d], s%d offen' % (vr(V_T0), vr(V_T1), S_WS, S_WS + 3, S_T))
        a('s_mov_b64 exec, -1')

    Q0, Q1, K0, K1, V0, V1 = [ACC + 4 * i for i in range(6)]
    T, T1 = V_T0, V_T1
    lds_n = [0]
    cold = []
    def L(text):
        a(text); lds_n[0] += 1
        return lds_n[0] - 1
    lds_done = [-1]
    def LW(idx):
        if idx <= lds_done[0]:
            return
        n = lds_n[0] - idx - 1
        n = min(n, 14)
        idx = lds_n[0] - n - 1
        a('s_waitcnt lgkmcnt(%d)' % n)
        lds_done[0] = idx
    def poll(tag, R, loads, k=PK):
        a('s_mov_b32 s%d, 0x100000' % S_CNT)
        for _ in range(PD1 if tag.startswith('p1') else PD2):
            a('s_nop 15')
        for i in range(k):
            for o in loads: a(o)
            if i < k - 1:
                a('s_nop 15')
                if PGAP > 1: a('s_nop 15')
        a('%s_%s:' % (name, tag))
        a('s_waitcnt vmcnt(%d)' % (2 * (k - 1)))
        a('v_max3_u32 %s, %s, %s, %s' % (vr(T), vr(R), vr(R + 1), vr(R + 2)))
        a('v_max3_u32 %s, %s, %s, %s' % (vr(T1), vr(R + 3), vr(R + 4), vr(R + 5)))
        a('v_max3_u32 %s, %s, %s, %s' % (vr(T), vr(R + 6), vr(R + 7), vr(T)))
        a('v_max_u32 %s, %s, %s' % (vr(T), vr(T), vr(T1)))
        a('v_cmp_eq_u32 vcc, -1, %s' % vr(T))
        a('s_cbranch_vccz %s_%sdone' % (name, tag))
        if PMASK: a('s_mov_b64 exec, vcc')
        for o in loads: a(o)
        a('s_sub_u32 s%d, s%d, 1' % (S_CNT, S_CNT))
        a('s_cbranch_scc0 %s_%s' % (name, tag))
        a('%s_%sdone:' % (name, tag))
        if PMASK: a('s_mov_b64 exec, -1')
    def step(par, w):
        U = '%d_%d' % (par, w)
        fill = []
        def pop(n):
            for _ in range(n):
                if fill:
                    f = fill.pop(0)
                    if callable(f): f()
                    else: a(f)
        def smf(acc, t, breg):
            a('v_smfmac_f32_16x16x64_bf16 %s, %s, %s, %s' % (vr(acc, 4), vr(AF + 4 * t, 4), breg, vr(V_IDX)))
        frag_id = {}
        order = [0]
        def frag_ops(p):
            slot = WVS + (p % 4) * 8
            n = order[p] if p < 8 else 8 + order[p - 8]
            def r0(): L('ds_read_b128 %s, %s offset:%d' % (vr(slot, 4), vr(V_WVA), n * 2048))
            def r1(): frag_id[p] = L('ds_read_b128 %s, %s offset:%d' % (vr(slot + 4, 4), vr(V_WVA), n * 2048 + 1024))
            return [r0, r1]
        def slot_reg(p): return vr(WVS + (p % 4) * 8, 8)
        qkw_id = [None]
        def post_qk(Qr, Kr, tt):
            ops = []
            ops.append('v_add_f32 %s, %s, %s' % (vr(Kr), vr(Kr), vr(Kr + 2)))
            ops.append('v_add_f32 %s, %s, %s' % (vr(Kr + 1), vr(Kr + 1), vr(Kr + 3)))
            ops.append('v_add_f32 %s, %s, %s' % (vr(Qr), vr(Qr), vr(Qr + 2)))
            ops.append('v_add_f32 %s, %s, %s' % (vr(Qr + 1), vr(Qr + 1), vr(Qr + 3)))
            ops.append('v_cvt_pk_bf16_f32 %s, %s, %s' % (vr(Kr), vr(Kr), vr(Kr + 1)))
            ops.append('v_cvt_pk_bf16_f32 %s, %s, %s' % (vr(Kr + 1), vr(Qr), vr(Qr + 1)))
            def wr(): qkw_id[0] = L('ds_write_b64 %s, %s offset:%d' % (vr(V_QKW), vr(Kr, 2), tt * 512))
            ops.append(wr)
            return ops
        own = [2 * w, 2 * w + 1]
        oth = [t for t in range(8) if t not in own]
        order[:] = own + oth
        RR = AF + 8 * w
        for p in range(4):
            for f in frag_ops(p): f()
        if par == 0:
            a('s_cmp_eq_u32 s%d, 0' % S_STEP)
            a('s_cbranch_scc1 %s_m0_%d' % (name, w))
        poll('p2_%s' % U, RR, [
            'buffer_load_dwordx4 %s, %s, s[%d:%d], s%d offen sc1' % (vr(RR, 4), vr(V_H2LD), S_WS, S_WS + 3, S_H2 + par),
            'buffer_load_dwordx4 %s, %s, s[%d:%d], s%d offen offset:1024 sc1' % (vr(RR + 4, 4), vr(V_H2LD), S_WS, S_WS + 3, S_H2 + par)])
        if par == 0:
            a('%s_m0done_%d:' % (name, w))
            def m0blk():
                a('%s_m0_%d:' % (name, w))
                for i in range(4):
                    a('v_mov_b64 %s, %s' % (vr(RR + 2 * i, 2), vr(VX + 8 + 2 * i, 2)))
                a('s_branch %s_m0done_%d' % (name, w))
            cold.append(m0blk)
        stamp(0)
        L('ds_write_b128 %s, %s offset:%d' % (vr(V_H2LD), vr(RR, 4), L_EX))
        wid = L('ds_write_b128 %s, %s offset:%d' % (vr(V_H2LD), vr(RR + 4, 4), L_EX + 1024))
        if dump:
            a('s_cmp_lg_u32 s%d, 0' % S_H)
            a('s_cbranch_scc1 %s_nodump_%s' % (name, U))
            a('buffer_store_dwordx4 %s, %s, s[%d:%d], s%d offen' % (vr(RR, 4), vr(V_H2LD), S_WS, S_WS + 3, S_DUMP))
            a('buffer_store_dwordx4 %s, %s, s[%d:%d], s%d offen offset:1024' % (vr(RR + 4, 4), vr(V_H2LD), S_WS, S_WS + 3, S_DUMP))
            a('s_waitcnt vmcnt(0)')
            a('%s_nodump_%s:' % (name, U))
            a('s_add_u32 s%d, s%d, 8192' % (S_DUMP, S_DUMP))
        def quad(t, p):
            smf(Q0, t, ar(t * 8, 8))
            smf(K0, t, ar(128 + t * 8, 8))
            smf(Q1, t, ar(64 + t * 8, 8))
            LW(frag_id[p])
            smf(K1, t, slot_reg(p))
            smf(V0, t, ar(192 + t * 8, 8))
            smf(V1, t, vr(WV1 + t * 8, 8))
        quad(own[0], 0)
        LW(wid)
        a('s_barrier')
        af_id = {}
        for t in oth:
            af_id[t] = L('ds_read_b128 %s, %s offset:%d' % (vr(AF + 4 * t, 4), vr(V_L16), L_EX + 1024 * t))
        quad(own[1], 1)
        for p in (4, 5):
            fill.extend(frag_ops(p))
        fill.extend(prefetch_ops(par ^ 1))
        if fused and w == 0:
            fill.append('v_lshlrev_b32 %s, 3, %s' % (vr(V_T1), vr(V_L16)))
            fill.append('v_mov_b32 %s, s%d' % (vr(V_T0), S_STEP))
            def pub():
                a('s_mov_b64 exec, s[%d:%d]' % (S_KMX, S_KMX + 1))
                a('buffer_store_dword %s, %s, s[%d:%d], s%d offen sc1' % (vr(V_T0), vr(V_T1), S_WS, S_WS + 3, S_FLG))
                a('s_mov_b64 exec, -1')
            fill.append(pub)
        for t in oth:
            LW(af_id[t])
            smf(Q0, t, ar(t * 8, 8))
            pop(2)
            smf(K0, t, ar(128 + t * 8, 8))
            pop(2)
        pop(99)
        for i, t in enumerate(oth):
            p = 2 + i
            smf(Q1, t, ar(64 + t * 8, 8))
            if i == 2:
                fill.extend(post_qk(Q0, K0, 0))
            pop(2)
            LW(frag_id[p])
            smf(K1, t, slot_reg(p))
            if p + 4 < 8:
                for f in frag_ops(p + 4): f()
        pop(99)
        stamp(1)
        kx_id = {}
        def kxr(j): kx_id[j] = L('ds_read_b128 %s, %s offset:%d' % (vr(AF + 4 * j, 4), vr(V_L16), L_KX + par * 8192 + 1024 * j))
        def vp(i):
            t = order[i]
            smf(V0, t, ar(192 + t * 8, 8))
            smf(V1, t, vr(WV1 + t * 8, 8))
            kxr(t)
        kxr(own[0]); kxr(own[1])
        vp(2)
        for o in post_qk(Q1, K1, 1):
            if callable(o): o()
            else: a(o)
        vp(3)
        LW(qkw_id[0])
        a('s_barrier')
        F = ACC
        f_id = []
        for es in range(4):
            L('ds_read_b64_tr_b16 %s, %s offset:%d' % (vr(F + 4 * es, 2), vr(V_FTR), es * 1024))
            f_id.append(L('ds_read_b64_tr_b16 %s, %s offset:%d' % (vr(F + 4 * es + 2, 2), vr(V_FTR), es * 1024 + 512)))
        for i in range(4, 8):
            vp(i)
        stamp(2)
        SM, SX0, SX1 = WVS, WVS + 4, WVS + 8
        VM = V0
        started = set()
        def smm(acc, areg, es):
            c = vr(acc, 4) if acc in started else '0'
            started.add(acc)
            a('v_mfma_f32_16x16x32_bf16 %s, %s, %s, %s' % (vr(acc, 4), areg, vr(F + 4 * es, 4), c))
        LW(f_id[3])
        for i, t in enumerate(order):
            if i < 4:
                smm(SM, vr(F + 4 * i, 4), i)
            LW(kx_id[t])
            smm(SX0 if t < 4 else SX1, vr(AF + 4 * t, 4), t % 4)
            if i == 0:
                a('buffer_store_dwordx4 %s, %s, s[%d:%d], s%d offen offset:%d%s' % (vr(F + 4 * w, 4), vr(V_L16), S_WS, S_WS + 3, S_KM, w * 1024, SC))
                a('s_add_u32 s%d, s%d, 0x20000' % (S_KM, S_KM))
            if i == 2:
                for k in range(4):
                    a('v_cvt_pk_bf16_f32 %s, %s, %s' % (vr(VM + k), vr(V0 + 2 * k), vr(V0 + 2 * k + 1)))
            if i == 3:
                a('buffer_store_dwordx4 %s, %s, s[%d:%d], s%d offen%s' % (vr(VM, 4), vr(V_L16), S_WS, S_WS + 3, S_VM, SC))
                a('s_add_u32 s%d, s%d, 0x20000' % (S_VM, S_VM))
            if i == 5:
                a('s_cmp_eq_u32 s%d, %d' % (S_STEP, nsteps - 1))
        a('s_cbranch_scc1 %s_done' % name)
        stamp(3)
        a('v_max3_f32 %s, %s, %s, %s' % (vr(T), vr(SX0), vr(SX0 + 1), vr(SX0 + 2)))
        a('v_max3_f32 %s, %s, %s, %s' % (vr(T1), vr(SX0 + 3), vr(SM), vr(SM + 1)))
        a('v_max3_f32 %s, %s, %s, %s' % (vr(T1), vr(SX1), vr(SX1 + 1), vr(T1)))
        a('v_max3_f32 %s, %s, %s, %s' % (vr(T), vr(SX1 + 2), vr(SX1 + 3), vr(T)))
        a('v_max_f32 %s, %s, %s' % (vr(T), vr(T), vr(T1)))
        a('v_mov_b32 %s, %s' % (vr(T1), vr(T)))
        a('v_mov_b64 %s, 0' % vr(AF + 16, 2))
        a('v_mov_b64 %s, 0' % vr(AF + 18, 2))
        a('v_permlane32_swap_b32 %s, %s' % (vr(T), vr(T1)))
        a('v_max_f32 %s, %s, %s' % (vr(T), vr(T), vr(T1)))
        a('v_mov_b32 %s, %s' % (vr(T1), vr(T)))
        a('v_mov_b64 %s, 0' % vr(AF + 20, 2))
        a('v_mov_b64 %s, 0' % vr(AF + 22, 2))
        a('v_permlane16_swap_b32 %s, %s' % (vr(T), vr(T1)))
        a('v_max_f32 %s, %s, %s' % (vr(T), vr(T), vr(T1)))
        a('v_mul_f32 %s, s%d, %s' % (vr(T), S_C, vr(T)))
        PX = WVS + 28; PM = WVS + 2
        LS, O0, O1 = WVS + 16, WVS + 20, WVS + 24
        for i in range(2):
            a('v_fma_f32 %s, %s, s%d, -%s' % (vr(SM + i), vr(SM + i), S_C, vr(T)))
        for i in range(2):
            a('v_exp_f32 %s, %s' % (vr(SM + i), vr(SM + i)))
        for i in range(4, 12):
            a('v_fma_f32 %s, %s, s%d, -%s' % (vr(WVS + i), vr(WVS + i), S_C, vr(T)))
        a('v_cvt_pk_bf16_f32 %s, %s, %s' % (vr(PM), vr(SM), vr(SM + 1)))
        a('v_cvt_pk_bf16_f32 %s, %s, %s' % (vr(PM + 1), vr(SM), vr(SM + 1)))
        a('v_exp_f32 %s, %s' % (vr(WVS + 4), vr(WVS + 4)))
        a('v_exp_f32 %s, %s' % (vr(WVS + 5), vr(WVS + 5)))
        a('v_mfma_f32_16x16x16_bf16 %s, %s, %s, 0' % (vr(LS, 4), vr(PM, 2), vr(V_HONES, 2)))
        a('v_exp_f32 %s, %s' % (vr(WVS + 6), vr(WVS + 6)))
        a('v_exp_f32 %s, %s' % (vr(WVS + 7), vr(WVS + 7)))
        a('v_mfma_f32_16x16x16_bf16 %s, %s, %s, 0' % (vr(O0, 4), vr(PM, 2), vr(VM, 2)))
        a('v_exp_f32 %s, %s' % (vr(WVS + 8), vr(WVS + 8)))
        a('v_exp_f32 %s, %s' % (vr(WVS + 9), vr(WVS + 9)))
        a('v_mfma_f32_16x16x16_bf16 %s, %s, %s, 0' % (vr(O1, 4), vr(PM, 2), vr(VM + 2, 2)))
        a('v_exp_f32 %s, %s' % (vr(WVS + 10), vr(WVS + 10)))
        a('v_exp_f32 %s, %s' % (vr(WVS + 11), vr(WVS + 11)))
        a('v_cvt_pk_bf16_f32 %s, %s, %s' % (vr(PX), vr(SX0), vr(SX0 + 1)))
        a('v_cvt_pk_bf16_f32 %s, %s, %s' % (vr(PX + 1), vr(SX0 + 2), vr(SX0 + 3)))
        a('v_cvt_pk_bf16_f32 %s, %s, %s' % (vr(PX + 2), vr(SX1), vr(SX1 + 1)))
        a('v_cvt_pk_bf16_f32 %s, %s, %s' % (vr(PX + 3), vr(SX1 + 2), vr(SX1 + 3)))
        stamp(4)
        a('v_mov_b64 %s, 0' % vr(AF + 24, 2))
        a('v_mov_b64 %s, 0' % vr(AF + 26, 2))
        a('v_mfma_f32_16x16x32_bf16 %s, %s, %s, %s' % (vr(LS, 4), vr(PX, 4), vr(V_ONES, 4), vr(LS, 4)))
        a('v_mov_b64 %s, 0' % vr(AF + 28, 2))
        a('v_mov_b64 %s, 0' % vr(AF + 30, 2))
        a('v_mfma_f32_16x16x32_bf16 %s, %s, %s, %s' % (vr(O0, 4), vr(PX, 4), vr(VX + par * 8, 4), vr(O0, 4)))
        a('v_mfma_f32_16x16x32_bf16 %s, %s, %s, %s' % (vr(O1, 4), vr(PX, 4), vr(VX + par * 8 + 4, 4), vr(O1, 4)))
        wo_id = {}
        def wor(q):
            slot = WSL[wo_seq.index(q) % 5]
            L('ds_read_b128 %s, %s offset:%d' % (vr(slot, 4), vr(V_WVA), (8 + q) * 2048))
            wo_id[q] = L('ds_read_b128 %s, %s offset:%d' % (vr(slot + 4, 4), vr(V_WVA), (8 + q) * 2048 + 1024))
        WSL = [WVS, WVS + 8, WVS + 16, ACC, ACC + 8]
        wo_seq = [0, 2, 1, 3, 4, 6, 5, 7]
        wor(wo_seq[0]); wor(wo_seq[1])
        for i in range(2, 4):
            a('v_rcp_f32 %s, %s' % (vr(LS + i), vr(LS + i)))
        for tt, O in enumerate((O0, O1)):
            for i in range(2, 4):
                a('v_mul_f32 %s, %s, %s' % (vr(O + i), vr(O + i), vr(LS + i)))
            a('v_cvt_pk_bf16_f32 %s, %s, %s' % (vr(O), vr(O + 2), vr(O + 3)))
            L('ds_write_b32 %s, %s offset:%d' % (vr(V_OW), vr(O), 256 * tt))
        for i in range(4):
            a('v_mov_b64 %s, 0' % vr(AF + 2 * i, 2))
        a('s_waitcnt lgkmcnt(0)')
        a('s_barrier')
        OA = WVS + 24
        oa_id = []
        for t2 in range(2):
            L('ds_read_b64_tr_b16 %s, %s offset:%d' % (vr(OA + 4 * t2, 2), vr(V_OTR), t2 * 1024))
            oa_id.append(L('ds_read_b64_tr_b16 %s, %s offset:%d' % (vr(OA + 4 * t2 + 2, 2), vr(V_OTR), t2 * 1024 + 128)))
        for i in range(4, 8):
            a('v_mov_b64 %s, 0' % vr(AF + 2 * i, 2))
        stamp(5)
        def post_wo(u):
            A0 = AF + 8 * u; A1 = A0 + 4
            ops = []
            for A in (A0, A1):
                ops.append('v_add_f32 %s, %s, %s' % (vr(A), vr(A), vr(A + 2)))
                ops.append('v_add_f32 %s, %s, %s' % (vr(A + 1), vr(A + 1), vr(A + 3)))
            ops.append('v_cvt_pk_bf16_f32 %s, %s, %s' % (vr(A0), vr(A0), vr(A0 + 1)))
            ops.append('v_cvt_pk_bf16_f32 %s, %s, %s' % (vr(A0 + 1), vr(A1), vr(A1 + 1)))
            ops.append('buffer_store_dwordx2 %s, %s, s[%d:%d], s%d offen' % (vr(A0, 2), vr(V_H1ST), S_WS, S_WS + 3, S_H1ST + par * 4 + u))
            return ops
        LW(oa_id[0])
        nq = [2]
        for u in range(4):
            for t2 in range(2):
                if u == 0 and t2 == 1: LW(oa_id[1])
                for k in range(2):
                    tt8 = 2 * u + k
                    if u < 2:
                        breg = vr(WO + (tt8 * 2 + t2) * 8, 8)
                    else:
                        q = (tt8 - 4) * 2 + t2
                        LW(wo_id[q])
                        breg = vr(WSL[wo_seq.index(q) % 5], 8)
                    a('v_smfmac_f32_16x16x64_bf16 %s, %s, %s, %s' % (vr(AF + 4 * tt8, 4), vr(OA + 4 * t2, 4), breg, vr(V_IDX)))
                    if u == 0 and nq[0] < 5 and not (t2 == 0 and k == 0):
                        wor(wo_seq[nq[0]]); nq[0] += 1
                    if u >= 2 and nq[0] < 8:
                        wor(wo_seq[nq[0]]); nq[0] += 1
                    if t2 == 1 and k == 0 and u > 0:
                        fill.extend(post_wo(u - 1))
                    if t2 == 1:
                        pop(4)
            pop(99)
        for i in range(8, 12):
            a('v_mov_b64 %s, 0' % vr(ACC + 2 * i, 2))
        for o in post_wo(3): a(o)
        for i in range(0, 8):
            a('v_mov_b64 %s, 0' % vr(ACC + 2 * i, 2))
        R1 = WVS
        stamp(6)
        poll('p1_%s' % U, R1, [
            'buffer_load_dwordx4 %s, %s, s[%d:%d], s%d offen sc1' % (vr(R1 + 4 * it, 4), vr(V_H1LD), S_WS, S_WS + 3, S_H1LD + par * 2 + it) for it in range(2)])
        stamp(7)
        RA = WVS + 8; RB = WVS + 12; SN = WVS + 16
        a('v_mfma_f32_16x16x32_bf16 %s, %s, %s, 0' % (vr(RA, 4), vr(V_SEL, 4), vr(R1, 4)))
        a('v_mfma_f32_16x16x32_bf16 %s, %s, %s, %s' % (vr(RA, 4), vr(V_SEL, 4), vr(R1 + 4, 4), vr(RA, 4)))
        a('v_mov_b64 %s, -1' % vr(SN, 2))
        a('v_mov_b64 %s, -1' % vr(SN + 2, 2))
        a('s_add_u32 s%d, s%d, 1' % (S_STEP, S_STEP))
        for i in range(4):
            a('v_add_f32_dpp %s, %s, %s row_ror:4 row_mask:0xf bank_mask:0xf' % (vr(RB + i), vr(RA + i), vr(RA + i)))
        for i in range(4):
            a('v_add_f32_dpp %s, %s, %s row_ror:8 row_mask:0xf bank_mask:0xf' % (vr(RA + i), vr(RB + i), vr(RB + i)))
        a('s_mov_b64 exec, s[%d:%d]' % (S_STMASK, S_STMASK + 1))
        a('v_cvt_pk_bf16_f32 %s, %s, %s' % (vr(RA), vr(RA), vr(RA + 1)))
        a('v_cvt_pk_bf16_f32 %s, %s, %s' % (vr(RA + 1), vr(RA + 2), vr(RA + 3)))
        a('buffer_store_dword %s, %s, s[%d:%d], s%d offen' % (vr(RA), vr(V_H2ST), S_WS, S_WS + 3, S_H2 + (par ^ 1)))
        a('buffer_store_dword %s, %s, s[%d:%d], s%d offen offset:16' % (vr(RA + 1), vr(V_H2ST), S_WS, S_WS + 3, S_H2 + (par ^ 1)))
        a('buffer_store_dword %s, %s, s[%d:%d], s%d offen' % (vr(SN), vr(V_H2ST), S_WS, S_WS + 3, S_H2 + par))
        a('buffer_store_dword %s, %s, s[%d:%d], s%d offen offset:16' % (vr(SN), vr(V_H2ST), S_WS, S_WS + 3, S_H2 + par))
        a('s_mov_b64 exec, -1')
        for it in range(2):
            a('buffer_store_dwordx4 %s, %s, s[%d:%d], s%d offen' % (vr(SN, 4), vr(V_H1LD), S_WS, S_WS + 3, S_H1LD + par * 2 + it))
        if fused:
            a('s_add_u32 s%d, s%d, %d' % (S_T, S_STEP, 2 if par == 1 else 1))
            a('s_cmp_lg_u32 s%d, s%d' % (S_T, S_NB))
            a('s_cbranch_scc1 %s_nokv%s' % (name, U))
            if par == 1:
                a('v_mov_b32 %s, s%d' % (vr(V_T1), S_NBW))
                a('buffer_load_dword %s, %s, s[%d:%d], 0 offen sc1' % (vr(V_BIAS), vr(V_T1), S_DBG, S_DBG + 3))
            else:
                a('v_readfirstlane_b32 s%d, %s' % (S_T + 3, vr(V_BIAS)))
                a('s_cmp_ge_u32 s%d, 64' % (S_T + 3))
                a('s_cbranch_scc1 %s_kvok%s' % (name, U))
                dbg_wait('wkvn%d' % w, 's%d' % S_NBW, 64)
                a('%s_kvok%s:' % (name, U))
                a('s_min_u32 s%d, s%d, 8' % (S_T, S_NB))
                a('s_add_u32 s%d, s%d, s%d' % (S_NB, S_NB, S_T))
                a('s_add_u32 s%d, s%d, 4' % (S_NBW, S_NBW))
                a('s_cmp_ge_u32 s%d, 64' % S_NB)
                a('s_cselect_b32 s%d, 0x7fff, s%d' % (S_NB, S_NB))
            a('%s_nokv%s:' % (name, U))
        if stamps:
            a('s_sub_u32 s%d, s%d, 1' % (S_STEP, S_STEP))
            stamp(8)
            a('s_add_u32 s%d, s%d, 1' % (S_STEP, S_STEP))
    for w in range(1, 4):
        a('s_cmp_eq_u32 s%d, %d' % (S_WV, w))
        a('s_cbranch_scc1 %s_wl%d' % (name, w))
    for w in range(4):
        a('%s_wl%d:' % (name, w))
        step(0, w)
        step(1, w)
        a('s_branch %s_wl%d' % (name, w))
    for c in cold: c()
    a('%s_done:' % name)
    a('s_waitcnt vmcnt(0)')
    if stamps: rstamp(2)
    if fused:
        a('s_barrier')
        a('s_cmp_lg_u32 s%d, 0' % S_WV)
        a('s_cbranch_scc1 %s_fin' % name)
        dbg_add(21)
        a('%s_fin:' % name)

def kernel_header(a, name):
    a.out.append('.globl %s' % name)
    a.out.append('.p2align 8')
    a.out.append('.type %s,@function' % name)
    a.out.append('%s:' % name)

def kernel_desc(name, vgpr=512, sgpr=102, accum=256):
    return '''.amdhsa_kernel %s
  .amdhsa_next_free_vgpr %d
  .amdhsa_next_free_sgpr %d
  .amdhsa_accum_offset %d
  .amdhsa_group_segment_fixed_size 0
  .amdhsa_kernarg_size 160
  .amdhsa_user_sgpr_count 2
  .amdhsa_user_sgpr_kernarg_segment_ptr 1
  .amdhsa_system_sgpr_workgroup_id_x 1
.end_amdhsa_kernel
''' % (name, vgpr, sgpr, accum)

def gen_init(a, name):
    kernel_header(a, name)
    a('s_cmp_ge_u32 s2, 33')
    a('s_cbranch_scc1 %s_end' % name)
    a('s_load_dwordx2 s[8:9], s[0:1], 152')
    a('s_waitcnt lgkmcnt(0)')
    build_srd(a, 4, 8, WS_BYTES)
    a('s_lshl_b32 s3, s2, 14')
    a('s_add_u32 s3, s3, 0x%x' % H1_OFF)
    a('v_lshlrev_b32 v1, 4, v0')
    for i in range(4):
        a('v_mov_b32 v%d, -1' % (4 + i))
    for i in range(4):
        a('s_add_u32 s10, s3, %d' % (i * 4096))
        a('buffer_store_dwordx4 v[4:7], v1, s[4:7], s10 offen')
    a('%s_end:' % name)
    a('s_endpgm')

def gen_chain_kernel(a, name, **kw):
    kernel_header(a, name)
    gen_role(a, name)
    a('s_cmp_gt_u32 s%d, 31' % S_H)
    a('s_cbranch_scc1 %s_exit' % name)
    gen_chain_body(a, name, **kw)
    a('%s_exit:' % name)
    a('s_endpgm')

if __name__ == '__main__':
    import sys
    a = Asm()
    hdr = '''; @launch kernel=init_kernel grid=(33,1,1) block=(256,1,1) lds=0
; @launch kernel=chain_kernel grid=(256,1,1) block=(256,1,1) lds=163840
.amdgcn_target "amdgcn-amd-amdhsa--gfx950"
.text
'''
    gen_init(a, 'init_kernel')
    gen_chain_kernel(a, 'chain_kernel', dump=('dump' in sys.argv), stamps=('stamps' in sys.argv))
    txt = hdr + a.text() + '.section .rodata,"a"\n.p2align 6\n' + kernel_desc('init_kernel', 16, 16, 16) + '.p2align 6\n' + kernel_desc('chain_kernel')
    open(sys.argv[1], 'w').write(txt)
    print('nops inserted', a.nops_inserted, 'lines', len(a.out))
```

```python
import sys
from asmgen import Asm, vr
from layout import *
import gen_chain, gen_gemm, gen_attn, gen_ssm, gen_attn2
from gen_chain import kernel_desc, kernel_header, S_DBG, S_H, S_WV
from gen_all_hdr import header

L_TK = 163840 - 16
import os
NTAIL = int(os.environ.get('NTAIL', '14'))
T_Q = 640; T_WOF = 960; T_SSM = 1088; T_MO = 1344; T_AT = T_MO + (64 - NTAIL) * 4; T_END = T_AT + NTAIL * 24
def gen_main(a, name, stamps=False):
    kernel_header(a, name)
    a('s_cmp_ge_u32 s2, 256')
    a('s_cbranch_scc1 %s_exit' % name)
    gen_chain.gen_role(a, name)
    a('s_cmp_gt_u32 s%d, 31' % S_H)
    a('s_cbranch_scc1 %s_worker' % name)
    gen_chain.gen_chain_body(a, name, fused=True, stamps=stamps)
    a('s_branch %s_exit' % name)
    a('%s_worker:' % name)
    a('s_mov_b32 s48, s%d' % S_WV)
    a('s_mov_b32 s96, 0')
    a('s_mov_b32 s97, 0')
    gen_gemm.load_ptrs(a)
    def fetch():
        a('s_mov_b64 exec, 1')
        a('v_mov_b32 v253, 68')
        a('v_mov_b32 v254, 1')
        a('buffer_atomic_add v254, v253, s[%d:%d], 0 offen sc0' % (S_DBG, S_DBG + 3))
        a('s_mov_b64 exec, -1')
    a('s_cmp_lg_u32 s48, 0')
    a('s_cbranch_scc1 %s_loop' % name)
    fetch()
    a('%s_loop:' % name)
    a('v_mbcnt_lo_u32_b32 v0, -1, 0')
    a('v_mbcnt_hi_u32_b32 v0, -1, v0')
    a('s_lshl_b32 s16, s48, 6')
    a('v_add_u32 v0, s16, v0')
    a('v_mov_b32 v2, %d' % L_TK)
    a('s_cmp_lg_u32 s48, 0')
    a('s_cbranch_scc1 %s_tkw' % name)
    a('s_waitcnt vmcnt(0)')
    a('s_mov_b64 exec, 1')
    a('ds_write_b32 v2, v254')
    a('s_waitcnt lgkmcnt(0)')
    a('s_mov_b64 exec, -1')
    a('%s_tkw:' % name)
    a('s_barrier')
    a('ds_read_b32 v3, v2')
    a('s_waitcnt lgkmcnt(0)')
    a('v_readfirstlane_b32 s49, v3')
    a('s_barrier')
    a('s_mov_b32 s99, 0')
    a('s_cmp_lg_u32 s48, 0')
    a('s_cbranch_scc1 %s_nopf' % name)
    a('s_cmp_ge_u32 s49, %d' % (T_SSM - 224))
    a('s_cbranch_scc1 %s_nopf' % name)
    fetch()
    a('s_mov_b32 s99, 1')
    a('%s_nopf:' % name)
    a('s_cmp_ge_u32 s49, %d' % T_END)
    a('s_cbranch_scc1 %s_exit' % name)
    if stamps:
        a('s_memrealtime s[90:91]')
        a('s_lshl_b32 s98, s49, 4')
        a('s_add_u32 s98, s98, 0x%x' % (STAMP_OFF + 0x200000))
    a('s_mov_b32 s93, 1')
    a('s_cmp_ge_u32 s49, %d' % T_AT)
    a('s_cbranch_scc1 %s_t_attn' % name)
    a('s_cmp_ge_u32 s49, %d' % T_MO)
    a('s_cbranch_scc1 %s_t_mono' % name)
    a('s_cmp_ge_u32 s49, %d' % T_SSM)
    a('s_cbranch_scc1 %s_t_ssm' % name)
    a('s_cmp_ge_u32 s49, %d' % T_WOF)
    a('s_cbranch_scc1 %s_t_wof' % name)
    a('s_cmp_ge_u32 s49, %d' % T_Q)
    a('s_cbranch_scc1 %s_t_q' % name)
    a('s_lshr_b32 s16, s49, 6')
    a('s_bfe_u32 s12, s49, 0x10005')
    a('s_and_b32 s13, s49, 31')
    a('s_add_u32 s92, s16, 24')
    a('s_branch %s_t_g' % name)
    a('%s_t_q:' % name)
    a('s_sub_u32 s17, s49, %d' % T_Q)
    a('s_lshr_b32 s16, s17, 5')
    a('s_and_b32 s13, s17, 31')
    a('s_mov_b32 s12, 2')
    a('s_add_u32 s92, s16, 34')
    a('%s_t_g:' % name)
    a('s_lshl_b32 s14, s16, 2')
    a('s_sub_u32 s14, s14, 8')
    a('s_mov_b32 s33, 4')
    a('s_cmp_lt_u32 s16, 3')
    a('s_cselect_b32 s14, s16, s14')
    a('s_cselect_b32 s33, 2, s33')
    a('s_cmp_lt_u32 s16, 2')
    a('s_cselect_b32 s33, 1, s33')
    gen_gemm.gen_gemm_task(a, name + '_g', None, sc1=True)
    a('s_branch %s_sig' % name)
    a('%s_t_wof:' % name)
    a('s_sub_u32 s49, s49, %d' % T_WOF)
    a('s_mov_b32 s92, 18')
    gen_attn.gen_wof_task(a, name + '_w', 49, sc1=True)
    a('s_branch %s_sig' % name)
    a('%s_t_ssm:' % name)
    a('s_sub_u32 s49, s49, %d' % T_SSM)
    a('s_mov_b32 s92, 19')
    gen_ssm.gen_ssm_task(a, name + '_s', 49, sc1=True)
    a('s_branch %s_sig' % name)
    a('%s_t_mono:' % name)
    a('s_sub_u32 s49, s49, %d' % T_MO)
    a('s_lshr_b32 s16, s49, 2')
    gen_attn2.seg_block(a, 18, 16)
    gen_attn2.static_poll(a, name + '_md0', s_blk=18)
    gen_attn2.prog_poll(a, name + '_md1', 16)
    a('s_mov_b32 s92, 51')
    gen_attn.gen_attn_task(a, name + '_m', 49, sc1=False)
    a('s_branch %s_sig' % name)
    a('%s_t_attn:' % name)
    a('s_sub_u32 s49, s49, %d' % T_AT)
    a('s_mul_hi_u32 s12, s49, 0x%x' % ((1 << 32) // 24 + 1))
    a('s_mul_i32 s16, s12, 24')
    a('s_sub_u32 s13, s49, s16')
    a('s_add_u32 s12, s12, %d' % (64 - NTAIL))
    a('s_cmp_ge_u32 s13, 8')
    a('s_cbranch_scc1 %s_t_b' % name)
    a('s_lshl_b32 s92, s12, 7')
    a('s_add_u32 s92, s92, 0x%x' % (FLG_OFF + 4096))
    gen_attn2.gen_attnA(a, name + '_a', 12, 13, 48)
    a('s_branch %s_sig' % name)
    a('%s_t_b:' % name)
    a('s_sub_u32 s13, s13, 8')
    a('s_mov_b32 s92, 50')
    gen_attn2.gen_attnB(a, name + '_b', 12, 13, 48)
    a('%s_sig:' % name)
    a('s_waitcnt vmcnt(0)')
    a('s_barrier')
    a('s_cmp_lg_u32 s48, 0')
    a('s_cbranch_scc1 %s_loop' % name)
    a('s_mov_b64 exec, 1')
    a('v_mov_b32 v3, 1')
    a('s_cmp_ge_u32 s92, 64')
    a('s_cbranch_scc1 %s_sigws' % name)
    a('s_lshl_b32 s92, s92, 2')
    a('v_mov_b32 v2, s92')
    a('buffer_atomic_add v3, v2, s[%d:%d], 0 offen' % (S_DBG, S_DBG + 3))
    a('s_branch %s_sige' % name)
    a('%s_sigws:' % name)
    a('v_mov_b32 v2, s92')
    a('buffer_atomic_add v3, v2, s[4:7], 0 offen')
    a('%s_sige:' % name)
    if stamps:
        a('s_memrealtime s[94:95]')
        a('s_waitcnt lgkmcnt(0)')
        a('v_mov_b32 v4, s90')
        a('v_mov_b32 v5, s94')
        a('v_mov_b32 v6, 0')
        a('v_mov_b32 v7, s2')
        a('v_mov_b32 v2, 0')
        a('buffer_store_dwordx4 v[4:7], v2, s[4:7], s98 offen')
    a('s_mov_b64 exec, -1')
    a('s_cmp_eq_u32 s99, 1')
    a('s_cbranch_scc1 %s_loop' % name)
    fetch()
    a('s_branch %s_loop' % name)
    a('%s_exit:' % name)
    a('s_endpgm')

if __name__ == '__main__':
    a = Asm()
    hdr = header() + '''; @launch kernel=main_kernel grid=(256,1,1) block=(256,1,1) lds=163840
.amdgcn_target "amdgcn-amd-amdhsa--gfx950"
.text
'''
    gen_main(a, 'main_kernel', stamps=('stamps' in sys.argv))
    txt = hdr + a.text() + '.section .rodata,"a"\n.p2align 6\n' + kernel_desc('main_kernel', 512, 102, 256)
    open(sys.argv[1], 'w').write(txt)
    print('lines', len(a.out), 'bytes', len(txt))
```

```python
from asmgen import Asm, vr, ar, sr
from layout import *
from gen_chain import build_srd, kernel_header, kernel_desc, f32bits, SCALE_LOG2E
from gen_gemm import load_ptrs

def gen_wof_task(a, name, s_task, uid='', sc1=False):
    RS = 1056
    build_srd(a, 8, 52 + 2 * 5, 4194304)
    a('v_and_b32 v2, 63, v0')
    a('v_lshrrev_b32 v1, 6, v0')
    a('v_readfirstlane_b32 s15, v1')
    a('v_lshlrev_b32 v3, 4, v2')
    a('v_lshl_add_u32 v4, v1, 10, v3')
    a('v_mul_u32_u24 v5, %d, v1' % RS)
    a('v_add_u32 v5, v5, v3')
    a('s_lshl_b32 s16, s%d, 15' % s_task)
    a('s_barrier')
    for i in range(8):
        a('s_add_u32 s17, s16, %d' % (i * 4096))
        a('buffer_load_dwordx4 %s, v4, s[8:11], s17 offen' % vr(8 + 4 * i, 4))
    for i in range(8):
        a('s_waitcnt vmcnt(%d)' % (7 - i))
        a('ds_write_b128 v5, %s offset:%d' % (vr(8 + 4 * i, 4), i * 4 * RS))
    a('v_lshrrev_b32 v6, 2, v2')
    a('v_mul_u32_u24 v6, %d, v6' % RS)
    a('v_and_b32 v7, 3, v2')
    a('v_lshl_add_u32 v6, v7, 3, v6')
    a('s_lshl_b32 s17, s15, 8')
    a('v_add_u32 v6, s17, v6')
    a('s_waitcnt lgkmcnt(0)')
    a('s_barrier')
    for k in range(8):
        a('ds_read_b64_tr_b16 %s, v6 offset:%d' % (vr(8 + 4 * k, 2), k * 32))
        a('ds_read_b64_tr_b16 %s, v6 offset:%d' % (vr(8 + 4 * k + 2, 2), k * 32 + 16 * RS))
    a('s_lshl_b32 s17, s15, 13')
    a('s_add_u32 s16, s16, s17')
    a('s_add_u32 s16, s16, 0x%x' % WOF_OFF)
    for k in range(8):
        a('s_waitcnt lgkmcnt(%d)' % (14 - 2 * k))
        if k == 4:
            a('s_add_u32 s16, s16, 4096')
        a('buffer_store_dwordx4 %s, v3, s[4:7], s16 offen offset:%d%s' % (vr(8 + 4 * k, 4), (k % 4) * 1024, ' sc1' if sc1 else ''))

A_LDS = 65536 + 256

def gen_attn_task(a, name, s_task, uid='', sc1=False):
    N = name + uid
    SC = ' sc1' if sc1 else ''
    S_S, S_CQ, S_W, S_T = 12, 13, 15, 16
    YA = 0; SA = 64; PXr = 76; PMr = 80; OAc = 84; OF = 116
    MB_ = 148; VL16 = 152; T = 153; T1 = 154; LSUM = 155; VX_ = 156
    AW = 0; AQ = 128; AK = 160; AKM = 192; AV = 208; AVM = 240
    a('s_lshr_b32 s%d, s%d, 2' % (S_S, s_task))
    a('s_and_b32 s%d, s%d, 3' % (S_CQ, s_task))
    a('v_lshrrev_b32 v1, 6, v0')
    a('v_readfirstlane_b32 s%d, v1' % S_W)
    a('v_and_b32 v2, 63, v0')
    a('v_lshlrev_b32 %s, 4, v2' % vr(VL16))
    a('s_load_dwordx2 s[28:29], s[0:1], 128')
    a('s_load_dwordx2 s[30:31], s[0:1], 136')
    build_srd(a, 8, 52, 2097152)
    a('s_mov_b32 s27, 0x%x' % f32bits(SCALE_LOG2E))
    a('s_waitcnt lgkmcnt(0)')
    build_srd(a, 20, 28, 1024)
    build_srd(a, 32, 30, 2097152)
    vm_n = [0]; vm_done = [-1]
    def V(text):
        a(text); vm_n[0] += 1; return vm_n[0] - 1
    def VW(idx):
        if idx <= vm_done[0]: return
        n = vm_n[0] - idx - 1
        assert n <= 62, n
        a('s_waitcnt vmcnt(%d)' % n); vm_done[0] = idx
    a('s_lshl_b32 s%d, s%d, 5' % (S_T, S_S))
    a('s_add_u32 s%d, s%d, s%d' % (S_T, S_T, S_W))
    a('s_lshl_b32 s36, s%d, 13' % S_T)
    a('s_add_u32 s37, s36, 0x%x' % VX_OFF)
    a('s_add_u32 s38, s36, 0x%x' % QX_OFF)
    a('s_lshl_b32 s39, s%d, 12' % S_T)
    a('s_add_u32 s40, s39, 0x%x' % VM_OFF)
    a('s_add_u32 s39, s39, 0x%x' % KM_OFF)
    a('s_lshl_b32 s41, s%d, 17' % S_W)
    a('s_lshl_b32 s%d, s%d, 13' % (S_T, S_CQ))
    a('s_add_u32 s41, s41, s%d' % S_T)
    a('s_add_u32 s41, s41, 0x%x' % WOF_OFF)
    ids = {}
    def ld(dst, soff, off, sc=''):
        if off >= 4096:
            a('s_add_u32 s%d, s%d, %d' % (S_T, soff, off & ~4095)); so = S_T
        else:
            so = soff
        return V('buffer_load_dwordx4 %s, %s, s[4:7], s%d offen offset:%d%s' % (dst, vr(VL16), so, off & 4095, sc))
    def ld_qk(i):
        for j in range(8): ld(ar(AQ + 4 * j, 4), 38, j * 1024, SC)
        for j in range(8): ld(ar(AK + 4 * j, 4), 36, j * 1024, SC)
        for j in range(4): ids[('qk', i)] = ld(ar(AKM + 4 * j, 4), 39, j * 1024, SC)
        a('s_add_u32 s38, s38, s14'); a('s_add_u32 s36, s36, s14'); a('s_add_u32 s39, s39, s19')
    def ld_v(i):
        for j in range(8): ld(ar(AV + 4 * j, 4), 37, j * 1024, SC)
        for j in range(4): ids[('v', i)] = ld(ar(AVM + 4 * j, 4), 40, j * 1024, SC)
        a('s_add_u32 s37, s37, s14'); a('s_add_u32 s40, s40, s19')
    def ld_w(i, es):
        for nt in range(8): ids[('w', i, es)] = ld(ar(AW + (es * 8 + nt) * 4, 4), 41, es * 32768 + nt * 1024, SC)
        if es == 3: a('s_add_u32 s41, s41, s25')
    a('s_mov_b32 s14, 0x8000'); a('s_mov_b32 s19, 0x4000'); a('s_mov_b32 s25, 0x80000')
    ld_qk(0); ld_v(0)
    for es in range(4): ld_w(0, es)
    a('s_barrier')
    gw = V('buffer_load_dwordx4 v[8:11], %s, s[20:23], 0 offen' % vr(VL16))
    a('s_lshl_b32 s%d, s%d, 5' % (S_T, S_S))
    a('s_lshl_b32 s%d, s%d, 3' % (S_T + 1, S_W))
    a('s_add_u32 s%d, s%d, s%d' % (S_T, S_T, S_T + 1))
    a('s_lshl_b32 s%d, s%d, 10' % (S_T + 1, S_T))
    a('s_add_u32 s%d, s%d, 4096' % (S_T + 2, S_T + 1))
    xid = []
    for k in range(8):
        xid.append(V('buffer_load_dwordx4 %s, %s, s[8:11], s%d offen offset:%d' % (vr(24 + 4 * k, 4), vr(VL16), S_T + 1 + k // 4, (k % 4) * 1024)))
    VW(gw)
    for j in range(4):
        a('v_lshlrev_b32 %s, 16, %s' % (vr(12 + 2 * j), vr(8 + j)))
        a('v_and_b32 %s, 0xffff0000, %s' % (vr(13 + 2 * j), vr(8 + j)))
    a('s_mov_b32 s26, 0x3f803f80')
    for k in range(8):
        VW(xid[k])
        b = 24 + 4 * k
        for j in range(4):
            a('v_lshlrev_b32 v20, 16, %s' % vr(b + j))
            a('v_and_b32 v21, 0xffff0000, %s' % vr(b + j))
            a('v_mul_f32 v20, v20, %s' % vr(12 + 2 * j))
            a('v_mul_f32 v21, v21, %s' % vr(13 + 2 * j))
            a('v_cvt_pk_bf16_f32 v20, v20, v21')
            a('v_dot2_f32_bf16 %s, v20, s26, %s' % (vr(56 + k), '0' if j == 0 else vr(56 + k)))
    for k in range(8):
        for sh in (1, 2, 4, 8):
            a('v_add_f32_dpp %s, %s, %s row_ror:%d row_mask:0xf bank_mask:0xf' % (vr(56 + k), vr(56 + k), vr(56 + k), sh) if False else
              'v_mov_b32_dpp v20, %s row_ror:%d row_mask:0xf bank_mask:0xf' % (vr(56 + k), sh))
            a('v_add_f32 %s, %s, v20' % (vr(56 + k), vr(56 + k)))
        a('v_mov_b32 v20, %s' % vr(56 + k))
        a('v_permlane32_swap_b32 %s, v20' % vr(56 + k))
        a('v_add_f32 %s, %s, v20' % (vr(56 + k), vr(56 + k)))
        a('v_mov_b32 v20, %s' % vr(56 + k))
        a('v_permlane16_swap_b32 %s, v20' % vr(56 + k))
        a('v_add_f32 %s, %s, v20' % (vr(56 + k), vr(56 + k)))
    a('v_mov_b32 v22, v56')
    for k in range(1, 8):
        a('v_cmp_eq_u32 vcc, %d, v2' % k)
        a('v_cndmask_b32 v22, v22, %s, vcc' % vr(56 + k))
    a('v_cvt_pk_bf16_f32 v22, v22, v22')
    a('v_and_b32 v22, 0xffff0000, v22')
    a('v_mul_f32 v22, 0xbfb8aa3b, v22')
    a('v_exp_f32 v22, v22')
    a('v_add_f32 v22, 1.0, v22')
    a('v_rcp_f32 v22, v22')
    a('v_cvt_pk_bf16_f32 v22, v22, v22')
    a('v_and_b32 v22, 0xffff0000, v22')
    a('s_lshl_b32 s%d, s%d, 5' % (S_T, S_W))
    a('s_add_u32 s%d, s%d, 65536' % (S_T, S_T))
    a('v_lshlrev_b32 v23, 2, v2')
    a('v_add_u32 v23, s%d, v23' % S_T)
    a('s_mov_b64 exec, 0xff')
    a('ds_write_b32 v23, v22')
    a('s_mov_b64 exec, -1')
    a('v_and_b32 v3, 15, v2')
    a('v_lshrrev_b32 v4, 4, v2')
    a('v_lshlrev_b32 v4, 2, v4')
    a('v_mov_b32 v5, 0xff800000')
    a('v_mov_b32 v6, 0')
    for i in range(4):
        a('v_add_u32 v7, %d, v4' % i)
        a('v_cmp_le_u32 vcc, v7, v3')
        a('v_cndmask_b32 %s, v5, v6, vcc' % vr(MB_ + i))
    a('v_mov_b32 %s, v2' % vr(VX_))
    for i in range(32):
        a('v_mov_b64 %s, 0' % vr(YA + 2 * i, 2))
    SM, SX0, SX1 = SA, SA + 4, SA + 8
    def mm(acc, A_, B_, first):
        a('v_mfma_f32_16x16x32_bf16 %s, %s, %s, %s' % (vr(acc, 4), A_, B_, '0' if first else vr(acc, 4)))
    a('s_mov_b32 s44, 0') if False else None
    a('s_mov_b32 s26, 0')
    a('%s_hl:' % N)
    a('s_cmp_lt_u32 s26, 6')
    a('s_cselect_b32 s14, 0x8000, 0')
    a('s_lshr_b32 s19, s14, 1')
    a('s_lshl_b32 s25, s14, 4')
    a('s_waitcnt vmcnt(44)')
    for tt in range(2):
        for es in range(4):
            q = ar(AQ + (tt * 4 + es) * 4, 4)
            mm(SM, ar(AKM + 4 * es, 4), q, es == 0)
            mm(SX0, ar(AK + 4 * es, 4), q, es == 0)
            if tt == 1:
                mm(SX1, ar(AK + 16 + 4 * es, 4), q, es == 0)
        if tt == 1:
            ld_qk(1)
        DG = SX0 if tt == 0 else SX1
        for j in range(4):
            a('v_add_f32 %s, %s, %s' % (vr(DG + j), vr(DG + j), vr(MB_ + j)))
        a('v_max3_f32 %s, %s, %s, %s' % (vr(T), vr(SX0), vr(SX0 + 1), vr(SX0 + 2)))
        a('v_max3_f32 %s, %s, %s, %s' % (vr(T1), vr(SX0 + 3), vr(SM), vr(SM + 1)))
        if tt == 1:
            a('v_max3_f32 %s, %s, %s, %s' % (vr(T1), vr(SX1), vr(SX1 + 1), vr(T1)))
            a('v_max3_f32 %s, %s, %s, %s' % (vr(T), vr(SX1 + 2), vr(SX1 + 3), vr(T)))
        a('v_max_f32 %s, %s, %s' % (vr(T), vr(T), vr(T1)))
        a('v_mov_b32 %s, %s' % (vr(T1), vr(T)))
        a('v_permlane32_swap_b32 %s, %s' % (vr(T), vr(T1)))
        a('v_max_f32 %s, %s, %s' % (vr(T), vr(T), vr(T1)))
        a('v_mov_b32 %s, %s' % (vr(T1), vr(T)))
        a('v_permlane16_swap_b32 %s, %s' % (vr(T), vr(T1)))
        a('v_max_f32 %s, %s, %s' % (vr(T), vr(T), vr(T1)))
        a('v_mul_f32 %s, s27, %s' % (vr(T), vr(T)))
        regs = [SM, SM + 1] + [SX0 + j for j in range(4)] + ([SX1 + j for j in range(4)] if tt == 1 else [])
        for r in regs:
            a('v_fma_f32 %s, %s, s27, -%s' % (vr(r), vr(r), vr(T)))
        for r in regs:
            a('v_exp_f32 %s, %s' % (vr(r), vr(r)))
        a('v_add_f32 %s, %s, %s' % (vr(LSUM), vr(regs[0]), vr(regs[1])))
        for r in regs[2:]:
            a('v_add_f32 %s, %s, %s' % (vr(LSUM), vr(LSUM), vr(r)))
        a('v_cvt_pk_bf16_f32 %s, %s, %s' % (vr(PMr), vr(SM), vr(SM + 1)))
        a('v_cvt_pk_bf16_f32 %s, %s, %s' % (vr(PMr + 1), vr(SM), vr(SM + 1)))
        a('v_cvt_pk_bf16_f32 %s, %s, %s' % (vr(PXr), vr(SX0), vr(SX0 + 1)))
        a('v_cvt_pk_bf16_f32 %s, %s, %s' % (vr(PXr + 1), vr(SX0 + 2), vr(SX0 + 3)))
        if tt == 1:
            a('v_cvt_pk_bf16_f32 %s, %s, %s' % (vr(PXr + 2), vr(SX1), vr(SX1 + 1)))
            a('v_cvt_pk_bf16_f32 %s, %s, %s' % (vr(PXr + 3), vr(SX1 + 2), vr(SX1 + 3)))
        else:
            a('v_mov_b64 %s, 0' % vr(PXr + 2, 2))
        a('v_mov_b32 %s, %s' % (vr(T1), vr(LSUM)))
        if tt == 0:
            a('s_waitcnt vmcnt(32)')
        for et in range(8):
            a('v_mfma_f32_16x16x16_bf16 %s, %s, %s, 0' % (vr(OAc + 4 * et, 4), ar(AVM + 2 * et, 2), vr(PMr, 2)))
            if et == 0:
                a('v_permlane32_swap_b32 %s, %s' % (vr(LSUM), vr(T1)))
                a('v_add_f32 %s, %s, %s' % (vr(LSUM), vr(LSUM), vr(T1)))
                a('v_mov_b32 %s, %s' % (vr(T1), vr(LSUM)))
            if et == 2:
                a('v_permlane16_swap_b32 %s, %s' % (vr(LSUM), vr(T1)))
                a('v_add_f32 %s, %s, %s' % (vr(LSUM), vr(LSUM), vr(T1)))
                a('v_rcp_f32 %s, %s' % (vr(LSUM), vr(LSUM)))
        for et in range(8):
            a('v_mfma_f32_16x16x32_bf16 %s, %s, %s, %s' % (vr(OAc + 4 * et, 4), ar(AV + 4 * et, 4), vr(PXr, 4), vr(OAc + 4 * et, 4)))
        if tt == 1:
            ld_v(1)
        for et in range(8):
            o = OAc + 4 * et
            for j in range(4):
                a('v_mul_f32 %s, %s, %s' % (vr(o + j), vr(o + j), vr(LSUM)))
            a('v_cvt_pk_bf16_f32 %s, %s, %s' % (vr(OF + tt * 16 + 2 * et), vr(o), vr(o + 1)))
            a('v_cvt_pk_bf16_f32 %s, %s, %s' % (vr(OF + tt * 16 + 2 * et + 1), vr(o + 2), vr(o + 3)))
    for es in range(4):
        a('s_waitcnt vmcnt(56)')
        for nt in range(8):
            for tt in range(2):
                y = YA + (nt * 2 + tt) * 4
                a('v_mfma_f32_16x16x32_bf16 %s, %s, %s, %s' % (vr(y, 4), ar(AW + (es * 8 + nt) * 4, 4), vr(OF + tt * 16 + 4 * es, 4), vr(y, 4)))
        ld_w(1, es)
    a('s_add_u32 s26, s26, 1')
    a('s_cmp_lt_u32 s26, 8')
    a('s_cbranch_scc1 %s_hl' % N)
    vm_done[0] = -1
    a('s_lshl_b32 s%d, s%d, 14' % (S_T, S_W))
    a('v_add_u32 %s, s%d, %s' % (vr(T), S_T, vr(VL16)))
    for k in range(16):
        a('ds_write_b128 %s, %s offset:%d' % (vr(T), vr(YA + 4 * k, 4), k * 1024))
    lane = vr(VX_)
    a('v_and_b32 v64, 15, %s' % lane)
    a('v_lshrrev_b32 v65, 4, %s' % lane)
    a('v_lshlrev_b32 v66, 10, v64')
    a('v_lshl_add_u32 v66, v65, 3, v66')
    a('s_lshl_b32 s%d, s%d, 15' % (S_T, S_S))
    a('s_lshl_b32 s%d, s%d, 8' % (S_T + 1, S_CQ))
    a('s_add_u32 s%d, s%d, s%d' % (S_T, S_T, S_T + 1))
    a('s_lshl_b32 s%d, s%d, 6' % (S_T + 1, S_W))
    a('s_add_u32 s24, s%d, s%d' % (S_T, S_T + 1))
    a('s_add_u32 s25, s24, 16384')
    a('v_lshlrev_b32 v90, 14, v65')
    a('v_lshl_add_u32 v90, v64, 1, v90')
    a('s_lshl_b32 s42, s%d, 19' % S_CQ)
    a('s_lshl_b32 s%d, s%d, 17' % (S_T + 1, S_W))
    a('s_add_u32 s42, s42, s%d' % (S_T + 1))
    a('s_lshl_b32 s%d, s%d, 6' % (S_T + 1, S_S))
    a('s_add_u32 s42, s42, s%d' % (S_T + 1))
    a('s_add_u32 s42, s42, 0x%x' % BOUT_OFF)
    bid = {}
    for u in range(2):
        for tt in range(2):
            for j in range(4):
                a('s_add_u32 s43, s42, %d' % ((16 * u + j) * 4096))
                bid[(u, tt)] = V('buffer_load_ushort %s, v90, s[4:7], s43 offen offset:%d%s' % (vr(96 + (u * 2 + tt) * 4 + j), tt * 32, SC))
    a('s_lshl_b32 s%d, s%d, 12' % (S_T, S_W))
    a('v_add_u32 %s, s%d, %s' % (vr(T), S_T, vr(VL16)))
    a('v_lshlrev_b32 v67, 2, v64')
    a('s_waitcnt lgkmcnt(0)')
    a('s_barrier')
    for p in range(4):
        for k in range(4):
            a('ds_read_b128 %s, %s offset:%d' % (vr(YA + (p * 4 + k) * 4, 4), vr(T), p * 16384 + k * 1024))
    a('ds_read_b32 v76, v67 offset:%d' % 65535 if False else 'v_add_u32 v67, 65536, v67')
    a('ds_read_b32 v76, v67')
    a('ds_read_b32 v77, v67 offset:64')
    a('s_waitcnt lgkmcnt(0)')
    for tt in range(2):
        a('v_sub_f32 %s, 1.0, %s' % (vr(78 + tt), vr(76 + tt)))
        a('v_cvt_pk_bf16_f32 %s, %s, %s' % (vr(78 + tt), vr(78 + tt), vr(78 + tt)))
        a('v_and_b32 %s, 0xffff0000, %s' % (vr(78 + tt), vr(78 + tt)))
    for u in range(2):
        for tt in range(2):
            k = u * 2 + tt
            y = YA + k * 4
            for j in range(4):
                a('v_add_f32 %s, %s, %s' % (vr(y + j), vr(y + j), vr(y + 16 + j)))
                a('v_add_f32 %s, %s, %s' % (vr(y + 32 + j), vr(y + 32 + j), vr(y + 48 + j)))
            for j in range(4):
                a('v_add_f32 %s, %s, %s' % (vr(y + j), vr(y + j), vr(y + 32 + j)))
            a('v_cvt_pk_bf16_f32 v80, %s, %s' % (vr(y), vr(y + 1)))
            a('v_cvt_pk_bf16_f32 v81, %s, %s' % (vr(y + 2), vr(y + 3)))
            VW(bid[(u, tt)])
            bb = 68 + k * 2
            a('v_lshl_or_b32 %s, %s, 16, %s' % (vr(bb), vr(96 + 4 * k + 1), vr(96 + 4 * k)))
            a('v_lshl_or_b32 %s, %s, 16, %s' % (vr(bb + 1), vr(96 + 4 * k + 3), vr(96 + 4 * k + 2)))
            for h2 in range(2):
                a('v_lshlrev_b32 v82, 16, %s' % vr(80 + h2))
                a('v_and_b32 v83, 0xffff0000, %s' % vr(80 + h2))
                a('v_mul_f32 v82, v82, %s' % vr(76 + tt))
                a('v_mul_f32 v83, v83, %s' % vr(76 + tt))
                a('v_cvt_pk_bf16_f32 v82, v82, v83')
                a('v_lshlrev_b32 v84, 16, %s' % vr(bb + h2))
                a('v_and_b32 v85, 0xffff0000, %s' % vr(bb + h2))
                a('v_mul_f32 v84, v84, %s' % vr(78 + tt))
                a('v_mul_f32 v85, v85, %s' % vr(78 + tt))
                a('v_cvt_pk_bf16_f32 v84, v84, v85')
                a('v_lshlrev_b32 v83, 16, v82')
                a('v_and_b32 v82, 0xffff0000, v82')
                a('v_lshlrev_b32 v85, 16, v84')
                a('v_and_b32 v84, 0xffff0000, v84')
                a('v_add_f32 v83, v83, v85')
                a('v_add_f32 v82, v82, v84')
                a('v_cvt_pk_bf16_f32 %s, v83, v82' % vr(86 + 2 * k + h2))
            V('buffer_store_dwordx2 %s, v66, s[32:35], s%d offen offset:%d' % (vr(86 + 2 * k, 2), 24 + tt, u * 32))

def gen_simple_kernel(a, name, ntasks, body):
    kernel_header(a, name)
    a('s_cmp_ge_u32 s2, %d' % ntasks)
    a('s_cbranch_scc1 %s_exit' % name)
    load_ptrs(a)
    a('s_mov_b32 s49, s2')
    body(a, name, 49)
    a('%s_exit:' % name)
    a('s_endpgm')

if __name__ == '__main__':
    import sys
    a = Asm()
    hdr = '''; @launch kernel=wof_kernel grid=(128,1,1) block=(256,1,1) lds=34816
; @launch kernel=attn_kernel grid=(256,1,1) block=(256,1,1) lds=%d
.amdgcn_target "amdgcn-amd-amdhsa--gfx950"
.text
''' % A_LDS
    gen_simple_kernel(a, 'wof_kernel', 128, gen_wof_task)
    gen_simple_kernel(a, 'attn_kernel', 256, gen_attn_task)
    txt = hdr + a.text() + '.section .rodata,"a"\n.p2align 6\n' + kernel_desc('wof_kernel', 64, 102, 64) + '.p2align 6\n' + kernel_desc('attn_kernel', 416, 102, 160)
    open(sys.argv[1], 'w').write(txt)
    print('nops inserted', a.nops_inserted, 'lines', len(a.out))
```

```python
from asmgen import Asm, vr, ar, sr
from layout import *

import os
L_WV = 32768
L_KX = 0
L_EX = L_KX + 16384
L_QK = L_EX + 8192
L_O = L_QK + 4096
L_MISC = L_O + 2048
LDS_BYTES = 163840
L_STG = 0

AF = 0
ACC = 32
WVS = 56
VX = 88
V_IDX = 104
V_T0 = 105
V_ONES = 106
V_HONES = 110
V_SEL = 112
V_L16 = 116
V_WVA = 117
V_QKW = 118
V_FTR = 119
V_OW = 120
V_OTR = 121
V_H1ST = 122
V_H1LD = 123
V_H2LD = 124
V_H2ST = 125
V_BIAS = 126
V_T1 = 127
V_LANE = 7
WV1 = 128
WO = 192

S_WS = 4
S_W = 8
S_H = 12
S_WV = 13
S_STEP = 14
S_T = 15
S_H1ST = 20
S_H1LD = 28
S_H2 = 32
S_KXP = 34
S_VXP = 35
S_KM = 36
S_VM = 37
S_ONELO = 38
S_ONEHI = 39
S_STMASK = 40
S_C = 42
S_CNT = 43
S_DBG = 44
S_HI32 = 48
S_PTR = 50
S_DUMP = 66
S_M0A = 67
S_M0B = 68
S_TS = 70
S_KMX = 72
S_FLG = 74
S_NB = 75
S_NBW = 69
S_MODE = 93
S_OFFX = 92
CHX = int(os.environ.get('CHX', '0'))

import os
PK = int(os.environ.get('PK', '1')); PGAP = int(os.environ.get('PGAP', '1')); PMASK = int(os.environ.get('PMASK', '1'))
PD1 = int(os.environ.get('PD1', '0')); PD2 = int(os.environ.get('PD2', '0'))
SCALE_LOG2E = 0.08838834764831845 * 1.4426950408889634

def f32bits(x):
    import struct
    return struct.unpack('<I', struct.pack('<f', x))[0]

def build_srd(a, d, ptr_lo, nbytes):
    a('s_mov_b32 s%d, s%d' % (d, ptr_lo))
    a('s_and_b32 s%d, s%d, 0xffff' % (d + 1, ptr_lo + 1))
    a('s_mov_b32 s%d, 0x%x' % (d + 2, nbytes))
    a('s_mov_b32 s%d, 0x00020000' % (d + 3))

def gen_role(a, name, static=False):
    a('s_load_dwordx2 s[%d:%d], s[0:1], 144' % (S_T + 1, S_T + 2))
    a('s_getreg_b32 s%d, hwreg(HW_REG_XCC_ID)' % S_T)
    a('s_and_b32 s%d, s%d, 15' % (S_T, S_T))
    a('v_lshrrev_b32 v1, 6, v0')
    a('v_readfirstlane_b32 s%d, v1' % S_WV)
    a('v_and_b32 %s, 63, v0' % vr(V_LANE))
    a('s_waitcnt lgkmcnt(0)')
    build_srd(a, S_DBG, S_T + 1, 256)
    if static:
        a('s_mov_b32 s%d, 99' % S_H)
        a('s_mov_b32 s%d, 0' % S_OFFX)
        a('s_cmp_lg_u32 s%d, %d' % (S_T, CHX))
        a('s_cbranch_scc1 %s_role_end' % name)
        a('s_mov_b32 s%d, 0' % S_T)
    a('s_cmp_lg_u32 s%d, 0' % S_WV)
    a('s_cbranch_scc1 %s_role_wait' % name)
    a('s_mov_b64 exec, 1')
    a('s_lshl_b32 s%d, s%d, 2' % (S_T + 3, S_T))
    a('v_mov_b32 v2, s%d' % (S_T + 3))
    a('v_mov_b32 v3, 1')
    a('buffer_atomic_add v3, v2, s[%d:%d], 0 offen sc0' % (S_DBG, S_DBG + 3))
    a('s_waitcnt vmcnt(0)')
    a('v_readfirstlane_b32 s%d, v3' % (S_T + 3))
    a('s_mov_b32 s%d, 99' % S_H)
    a('s_cmp_gt_u32 s%d, 31' % (S_T + 3))
    a('s_cbranch_scc1 %s_role_pub' % name)
    if not static:
        a('s_cmp_lg_u32 s%d, 31' % (S_T + 3))
        a('s_cbranch_scc1 %s_role_poll' % name)
        a('s_add_u32 s%d, s%d, 1' % (S_T + 4, S_T))
        a('v_mov_b32 v4, s%d' % (S_T + 4))
        a('v_mov_b32 v5, 0')
        a('v_mov_b32 v2, 64')
        a('buffer_atomic_cmpswap v[4:5], v2, s[%d:%d], 0 offen' % (S_DBG, S_DBG + 3))
        a('s_waitcnt vmcnt(0)')
        a('%s_role_poll:' % name)
        a('s_mov_b32 s%d, 0x400000' % S_CNT)
        a('v_mov_b32 v2, 64')
        a('%s_role_poll_loop:' % name)
        a('buffer_load_dword v4, v2, s[%d:%d], 0 offen sc1' % (S_DBG, S_DBG + 3))
        a('s_waitcnt vmcnt(0)')
        a('v_readfirstlane_b32 s%d, v4' % (S_T + 4))
        a('s_sub_u32 s%d, s%d, 1' % (S_CNT, S_CNT))
        a('s_cmp_eq_u32 s%d, 0' % S_CNT)
        a('s_cbranch_scc1 %s_role_pub' % name)
        a('s_cmp_eq_u32 s%d, 0' % (S_T + 4))
        a('s_cbranch_scc1 %s_role_poll_loop' % name)
        a('s_sub_u32 s%d, s%d, 1' % (S_T + 4, S_T + 4))
        a('s_cmp_lg_u32 s%d, s%d' % (S_T + 4, S_T))
        a('s_cbranch_scc1 %s_role_pub' % name)
    a('s_mov_b32 s%d, s%d' % (S_H, S_T + 3))
    a('%s_role_pub:' % name)
    a('v_mov_b32 v2, %d' % L_MISC)
    a('v_mov_b32 v3, s%d' % S_H)
    a('ds_write_b32 v2, v3')
    a('s_waitcnt lgkmcnt(0)')
    a('s_mov_b64 exec, -1')
    a('%s_role_wait:' % name)
    a('s_barrier')
    a('v_mov_b32 v2, %d' % L_MISC)
    a('ds_read_b32 v3, v2')
    a('s_waitcnt lgkmcnt(0)')
    a('v_readfirstlane_b32 s%d, v3' % S_H)
    a('s_barrier')
    a('%s_role_end:' % name)

def gen_chain_body(a, name, nsteps=64, dump=False, stamps=False, fused=False):
    SC = ' sc1' if fused else ''
    lane = vr(V_LANE)
    if stamps: a('s_memrealtime s[94:95]')
    a('s_load_dwordx16 s[%d:%d], s[0:1], 0' % (S_PTR + 2, S_PTR + 17))
    a('s_load_dwordx2 s[%d:%d], s[0:1], 152' % (S_PTR, S_PTR + 1))
    a('s_waitcnt lgkmcnt(0)')
    P = lambda i: S_PTR + 2 + 2 * i
    build_srd(a, S_WS, S_PTR, WS_BYTES)
    a('v_and_b32 v1, 15, %s' % lane)
    a('v_lshrrev_b32 v2, 4, %s' % lane)
    a('v_lshlrev_b32 %s, 4, %s' % (vr(V_L16), lane))
    a('v_and_b32 v3, 2, v1')
    a('v_cmp_eq_u32 vcc, 0, v3')
    a('v_mov_b32 v3, 0xeeee')
    a('v_mov_b32 v4, 0x4444')
    a('v_cndmask_b32 %s, v3, v4, vcc' % vr(V_IDX))
    for i in range(4):
        a('v_mov_b32 %s, 0x3f803f80' % vr(V_ONES + i))
    a('v_cmp_gt_u32 vcc, 32, %s' % lane)
    a('v_mov_b32 v3, 0xff800000')
    a('v_mov_b32 v4, 0')
    a('v_cndmask_b32 %s, v3, v4, vcc' % vr(V_BIAS))
    a('s_lshl_b32 s%d, s%d, 15' % (S_T, S_WV))
    a('s_add_u32 s%d, s%d, %d' % (S_T, S_T, L_WV))
    a('v_add_u32 %s, s%d, %s' % (vr(V_WVA), S_T, vr(V_L16)))
    a('s_lshl_b32 s%d, s%d, 10' % (S_T, S_WV))
    a('s_add_u32 s%d, s%d, %d' % (S_T, S_T, L_QK))
    a('v_lshlrev_b32 v3, 5, v1')
    a('v_lshl_add_u32 v3, v2, 3, v3')
    a('v_add_u32 %s, s%d, v3' % (vr(V_QKW), S_T))
    a('v_lshrrev_b32 v5, 2, v1')
    a('v_and_b32 v6, 3, v1')
    a('v_lshl_add_u32 v3, v2, 2, v5')
    a('v_lshlrev_b32 v3, 5, v3')
    a('v_lshl_add_u32 v3, v6, 3, v3')
    a('v_add_u32 %s, %d, v3' % (vr(V_FTR), L_QK))
    a('v_lshl_add_u32 v3, v2, 3, v5')
    a('v_lshlrev_b32 v3, 5, v3')
    a('v_lshl_add_u32 v3, v6, 3, v3')
    a('v_add_u32 %s, %d, v3' % (vr(V_OTR), L_O))
    a('v_and_b32 v3, 1, v1')
    a('v_lshl_add_u32 v3, v5, 1, v3')
    a('v_lshlrev_b32 v3, 5, v3')
    a('v_bfe_u32 v4, v1, 1, 1')
    a('v_lshl_add_u32 v3, v4, 2, v3')
    a('v_lshl_add_u32 v3, v2, 3, v3')
    a('s_lshl_b32 s%d, s%d, 9' % (S_T, S_WV))
    a('s_add_u32 s%d, s%d, %d' % (S_T, S_T, L_O))
    a('v_add_u32 %s, s%d, v3' % (vr(V_OW), S_T))
    a('v_lshrrev_b32 v3, 5, %s' % lane)
    a('v_lshlrev_b32 v3, 13, v3')
    a('v_and_b32 v4, 1, v2')
    a('v_lshl_add_u32 v3, v4, 7, v3')
    a('v_lshl_add_u32 v3, v1, 3, v3')
    a('s_lshl_b32 s%d, s%d, 14' % (S_T, S_WV))
    a('s_lshl_b32 s%d, s%d, 8' % (S_T + 1, S_H))
    a('s_add_u32 s%d, s%d, s%d' % (S_T, S_T, S_T + 1))
    a('v_add_u32 %s, s%d, v3' % (vr(V_H1ST), S_T))
    a('v_lshrrev_b32 v3, 2, %s' % lane)
    a('v_lshlrev_b32 v3, 8, v3')
    a('v_lshl_add_u32 v3, v6, 4, v3')
    a('s_lshl_b32 s%d, s%d, 13' % (S_T, S_H))
    a('s_lshl_b32 s%d, s%d, 6' % (S_T + 1, S_WV))
    a('s_add_u32 s%d, s%d, s%d' % (S_T, S_T, S_T + 1))
    a('v_add_u32 %s, s%d, v3' % (vr(V_H1LD), S_T))
    a('s_lshl_b32 s%d, s%d, 11' % (S_T, S_WV))
    a('v_add_u32 %s, s%d, %s' % (vr(V_H2LD), S_T, vr(V_L16)))
    a('v_lshlrev_b32 v3, 8, v2')
    a('v_and_b32 v4, 1, %s' % lane)
    a('v_lshl_add_u32 v3, v4, 5, v3')
    a('v_bfe_u32 v4, %s, 1, 1' % lane)
    a('v_lshl_add_u32 v3, v4, 2, v3')
    a('s_lshr_b32 s%d, s%d, 1' % (S_T, S_H))
    a('s_lshl_b32 s%d, s%d, 9' % (S_T, S_T))
    a('s_and_b32 s%d, s%d, 1' % (S_T + 1, S_H))
    a('s_lshl_b32 s%d, s%d, 7' % (S_T + 1, S_T + 1))
    a('s_add_u32 s%d, s%d, s%d' % (S_T, S_T, S_T + 1))
    a('s_lshr_b32 s%d, s%d, 1' % (S_T + 1, S_WV))
    a('s_lshl_b32 s%d, s%d, 6' % (S_T + 1, S_T + 1))
    a('s_add_u32 s%d, s%d, s%d' % (S_T, S_T, S_T + 1))
    a('s_and_b32 s%d, s%d, 1' % (S_T + 1, S_WV))
    a('s_lshl_b32 s%d, s%d, 3' % (S_T + 1, S_T + 1))
    a('s_add_u32 s%d, s%d, s%d' % (S_T, S_T, S_T + 1))
    a('v_add_u32 %s, s%d, v3' % (vr(V_H2ST), S_T))
    a('v_mov_b32 %s, 0x3f803f80' % vr(V_HONES))
    a('v_mov_b32 %s, 0' % vr(V_HONES + 1))
    a('v_and_b32 v3, 1, v1')
    a('v_lshlrev_b32 v3, 2, v3')
    a('v_lshl_add_u32 v3, v5, 1, v3')
    a('v_bfe_u32 v4, v1, 1, 1')
    a('v_add_u32 v3, v3, v4')
    a('v_cmp_gt_u32 vcc, 8, v1')
    a('v_mov_b32 v4, 99')
    a('v_cndmask_b32 v3, v4, v3, vcc')
    a('v_mov_b32 v8, 0x3f80')
    a('v_mov_b32 v9, 0x3f800000')
    a('v_mov_b32 v10, 0')
    for k in range(4):
        a('v_cmp_eq_u32 vcc, %d, v3' % (2 * k))
        a('v_cndmask_b32 v4, v10, v8, vcc')
        a('v_cmp_eq_u32 vcc, %d, v3' % (2 * k + 1))
        a('v_cndmask_b32 %s, v4, v9, vcc' % vr(V_SEL + k))
    a('s_mov_b32 s%d, 0' % (S_KMX + 1))
    a('s_cmp_eq_u32 s%d, 0' % S_H)
    a('s_cselect_b32 s%d, -1, 1' % S_KMX)
    a('s_lshl_b32 s%d, s%d, 7' % (S_T, S_H))
    a('s_add_u32 s%d, s%d, 0x%x' % (S_T, S_T, FLG_OFF + 16384))
    a('s_cmp_eq_u32 s%d, 0' % S_H)
    a('s_cselect_b32 s%d, 0x%x, s%d' % (S_FLG, FLG_OFF, S_T))
    for par in range(2):
        for u in range(4):
            a('s_mov_b32 s%d, 0x%x' % (S_H1ST + par * 4 + u, H1_OFF + par * 262144 + u * 65536))
        for it in range(2):
            a('s_mov_b32 s%d, 0x%x' % (S_H1LD + par * 2 + it, H1_OFF + par * 262144 + it * 4096))
        a('s_mov_b32 s%d, 0x%x' % (S_H2 + par, H2_OFF + par * 8192))
    a('s_mov_b32 s%d, 0x00003f80' % S_ONELO)
    a('s_mov_b32 s%d, 0x3f800000' % S_ONEHI)
    a('s_mov_b32 s%d, 0x000f000f' % S_STMASK)
    a('s_mov_b32 s%d, 0' % (S_STMASK + 1))
    a('s_mov_b32 s%d, 0x%x' % (S_C, f32bits(SCALE_LOG2E)))
    a('s_mov_b32 s%d, 0' % S_HI32)
    a('s_mov_b32 s%d, -1' % (S_HI32 + 1))
    if fused:
        a('v_mov_b64 v[8:9], -1')
        a('v_mov_b64 v[10:11], -1')
        for par in range(2):
            for it in range(2):
                a('buffer_store_dwordx4 v[8:11], %s, s[%d:%d], s%d offen sc1' % (vr(V_H1LD), S_WS, S_WS + 3, S_H1LD + par * 2 + it))
        a('s_mov_b64 exec, s[%d:%d]' % (S_STMASK, S_STMASK + 1))
        for par in range(2):
            a('buffer_store_dword v8, %s, s[%d:%d], s%d offen sc1' % (vr(V_H2ST), S_WS, S_WS + 3, S_H2 + par))
            a('buffer_store_dword v8, %s, s[%d:%d], s%d offen offset:16 sc1' % (vr(V_H2ST), S_WS, S_WS + 3, S_H2 + par))
        a('s_mov_b64 exec, 7')
        a('s_lshl_b32 s%d, s%d, 7' % (S_T, S_H))
        a('s_add_u32 s%d, s%d, 0x%x' % (S_T, S_T, FLG_OFF))
        a('v_mov_b32 v9, s%d' % S_T)
        a('s_lshl_b32 s%d, s%d, 8' % (S_T, S_H))
        a('s_add_u32 s%d, s%d, 0x%x' % (S_T, S_T, FLG_OFF + 4096 - 128))
        a('v_lshlrev_b32 v10, 7, %s' % lane)
        a('v_add_u32 v10, s%d, v10' % S_T)
        a('v_cmp_eq_u32 vcc, 0, %s' % lane)
        a('v_cndmask_b32 v9, v10, v9, vcc')
        a('v_mov_b32 v8, 0')
        a('buffer_store_dword v8, v9, s[%d:%d], 0 offen sc1' % (S_WS, S_WS + 3))
        a('s_mov_b64 exec, 1')
        a('v_mov_b32 v10, 88')
        a('v_mov_b32 v11, s%d' % S_OFFX)
        a('buffer_atomic_add v11, v10, s[%d:%d], 0 offen' % (S_DBG, S_DBG + 3))
        a('s_mov_b64 exec, -1')
        a('s_nop 1')
    a('v_and_b32 v60, 15, v0')
    a('v_lshrrev_b32 v61, 4, v0')
    a('v_lshlrev_b32 v62, 4, v60')
    a('v_lshl_add_u32 v63, v61, 13, v62')
    a('s_lshl_b32 s%d, s%d, 8' % (S_T, S_H))
    a('v_add_u32 v63, s%d, v63' % S_T)
    a('v_lshl_add_u32 v64, v61, 10, v62')
    a('s_lshl_b32 s%d, s%d, 17' % (S_T, S_H))
    a('v_add_u32 v64, s%d, v64' % S_T)
    a('v_lshl_add_u32 v65, v61, 8, v62')
    a('v_add_u32 v65, %d, v65' % L_STG)
    a('v_lshl_add_u32 v3, v2, 3, v5')
    a('v_lshlrev_b32 v3, 8, v3')
    a('v_lshl_add_u32 v3, v6, 3, v3')
    a('s_lshl_b32 s%d, s%d, 6' % (S_T, S_WV))
    a('s_add_u32 s%d, s%d, %d' % (S_T, S_T, L_STG))
    a('v_add_u32 v66, s%d, v3' % S_T)
    a('s_lshl_b32 s%d, s%d, 5' % (S_T, S_WV))
    a('s_add_u32 s%d, s%d, %d' % (S_T, S_T, L_STG))
    a('v_add_u32 v67, s%d, v3' % S_T)
    for i, m in enumerate((2, 3, 4, 5)):
        build_srd(a, 76 + 4 * i, P(m), 4194304)
    build_srd(a, S_W, P(1), 8192)
    chunks = []
    for m in range(3):
        for t in range(8):
            chunks.append((m, t, 0))
    for t2 in range(2):
        for cb in range(4):
            chunks.append((3, t2, cb))
    SETS = [(8, 31), (24, 31), (40, 31), (88, 31), (128, 15), (144, 15), (160, 15), (176, 15), (192, 23), (208, 23), (224, 23), (240, 23)]
    DEPTH = 8
    set_of = {}; busy = {}
    issue_at = {}
    for c in range(32):
        it = max(0, c - DEPTH)
        while True:
            cand = [b for (b, lim) in SETS if lim >= c and busy.get(b, -1) < it]
            if it == 0:
                cand = [b for (b, lim) in SETS if lim >= c and b not in busy]
            if cand: break
            it += 1
            assert it <= c, c
        it = max([it] + [issue_at[k] for k in issue_at])
        set_of[c] = cand[0]; busy[cand[0]] = c; issue_at[c] = it
    def issue_loads(ci):
        m, t, cb = chunks[ci]
        base = set_of[ci]
        for i in range(4):
            if m < 3:
                off = (64 * t + 16 * i) * 8192
                a('s_mov_b32 s%d, 0x%x' % (S_T, off))
                a('buffer_load_dwordx4 %s, v63, s[%d:%d], s%d offen' % (vr(base + 4 * i, 4), 76 + 4 * m, 79 + 4 * m, S_T))
            else:
                off = (64 * t + 16 * i) * 1024 + cb * 256
                a('s_mov_b32 s%d, 0x%x' % (S_T, off))
                a('buffer_load_dwordx4 %s, v64, s[88:91], s%d offen' % (vr(base + 4 * i, 4), S_T))
    def early_sig():
        a('s_cmp_lg_u32 s%d, 0' % S_WV)
        a('s_cbranch_scc1 %s_noini' % name)
        a('s_mov_b64 exec, 1')
        a('v_mov_b32 v84, 80')
        a('v_mov_b32 v85, 1')
        a('buffer_atomic_add v85, v84, s[%d:%d], 0 offen' % (S_DBG, S_DBG + 3))
        a('s_mov_b64 exec, -1')
        a('%s_noini:' % name)
    issued = [0]
    for ci, (m, t, cb) in enumerate(chunks):
        while issued[0] < 32 and issue_at[issued[0]] <= ci:
            issue_loads(issued[0]); issued[0] += 1
        a('s_waitcnt vmcnt(%d)' % (4 * (issued[0] - ci - 1)))
        base = set_of[ci]
        sb = (ci % 2) * 16384
        for i in range(4):
            a('ds_write_b128 v65, %s offset:%d' % (vr(base + 4 * i, 4), sb + i * 4096))
        a('s_waitcnt lgkmcnt(0)')
        a('s_barrier')
        if fused and ci == 1:
            early_sig()
        for u in range(2):
            if m == 0:
                dst = lambda k: ar((u * 8 + t) * 8 + k, 2)
                colo = 32 * u; addr = 'v66'
            elif m < 3:
                if u == 0:
                    dst = lambda k: ar(64 + 64 * m + t * 8 + k, 2)
                elif m == 1:
                    dst = lambda k: vr(68 + k, 2)
                else:
                    dst = lambda k: vr(WV1 + t * 8 + k, 2)
                colo = 32 * u; addr = 'v66'
            else:
                if cb < 2:
                    dst = lambda k: vr(WO + ((2 * cb + u) * 2 + t) * 8 + k, 2)
                else:
                    dst = lambda k: vr(68 + 8 * u + k, 2)
                colo = 32 * u; addr = 'v66'
            for k, ro in enumerate((0, 4, 32, 36)):
                a('ds_read_b64_tr_b16 %s, %s offset:%d' % (dst(2 * k), addr, sb + ro * 256 + colo))
        if m == 1:
            a('s_waitcnt lgkmcnt(0)')
            for hh in range(2):
                a('ds_write_b128 %s, %s offset:%d' % (vr(V_WVA), vr(68 + 4 * hh, 4), t * 2048 + hh * 1024))
        if m == 3 and cb >= 2:
            a('s_waitcnt lgkmcnt(0)')
            for u in range(2):
                for hh in range(2):
                    a('ds_write_b128 %s, %s offset:%d' % (vr(V_WVA), vr(68 + 8 * u + 4 * hh, 4), (8 + ((2 * (cb - 2) + u) * 2 + t)) * 2048 + hh * 1024))
    a('s_waitcnt lgkmcnt(0)')
    a('s_barrier')
    if stamps:
        a('s_memrealtime s[96:97]')
        a('s_waitcnt lgkmcnt(0)')
        a('v_mov_b32 v3, s96')
        a('s_lshl_b32 s%d, s%d, 2' % (S_T, S_H))
        a('s_add_u32 s%d, s%d, s%d' % (S_T, S_T, S_WV))
        a('s_lshl_b32 s%d, s%d, 2' % (S_T, S_T))
        a('s_add_u32 s%d, s%d, 0x%x' % (S_T, S_T, STAMP_OFF + 0x100000))
        a('v_mov_b32 v4, 0')
        a('s_mov_b64 exec, 1')
        a('buffer_store_dword v3, v4, s[%d:%d], s%d offen' % (S_WS, S_WS + 3, S_T))
        a('s_mov_b64 exec, -1')
    a('s_lshl_b32 s%d, s%d, 13' % (S_KXP, S_H))
    a('s_add_u32 s%d, s%d, 0x%x' % (S_VXP, S_KXP, VX_OFF))
    a('s_lshl_b32 s%d, s%d, 12' % (S_KM, S_H))
    a('s_lshl_b32 s%d, s%d, 10' % (S_T, S_WV))
    a('s_add_u32 s%d, s%d, s%d' % (S_VM, S_KM, S_T))
    a('s_add_u32 s%d, s%d, 0x%x' % (S_VM, S_VM, VM_OFF))
    a('s_add_u32 s%d, s%d, 0x%x' % (S_KM, S_KM, KM_OFF))
    a('s_lshl_b32 s%d, s%d, 11' % (S_T, S_WV))
    a('s_add_u32 s%d, s%d, %d' % (S_M0A, S_T, L_KX))
    a('s_add_u32 s%d, s%d, %d' % (S_M0B, S_T, L_KX + 8192))
    a('s_mov_b32 s%d, 0x%x' % (S_DUMP, DBG_OFF))
    a('s_mov_b32 s%d, 0' % S_STEP)
    def prefetch_ops(par):
        return [
        's_mov_b32 m0, s%d' % (S_M0A if par == 0 else S_M0B),
        's_add_u32 s%d, s%d, 0x40000' % (S_T + 2, S_KXP),
        'buffer_load_dwordx4 %s, s[%d:%d], s%d offen%s lds' % (vr(V_H2LD), S_WS, S_WS + 3, S_KXP, SC),
        'buffer_load_dwordx4 %s, s[%d:%d], s%d offen offset:1024%s lds' % (vr(V_H2LD), S_WS, S_WS + 3, S_KXP, SC),
        'buffer_load_dwordx4 %s, %s, s[%d:%d], s%d offen%s' % (vr(VX + par * 8, 4), vr(V_H2LD), S_WS, S_WS + 3, S_VXP, SC),
        'buffer_load_dwordx4 %s, %s, s[%d:%d], s%d offen offset:1024%s' % (vr(VX + par * 8 + 4, 4), vr(V_H2LD), S_WS, S_WS + 3, S_VXP, SC),
        's_mov_b32 s%d, s%d' % (S_KXP, S_T + 2),
        's_add_u32 s%d, s%d, 0x40000' % (S_VXP, S_VXP)]
    def prefetch(par):
        for o in prefetch_ops(par): a(o)
    def rstamp(k):
        a('s_memrealtime s[96:97]')
        a('s_waitcnt lgkmcnt(0)')
        a('v_mov_b32 %s, s96' % vr(V_T0))
        a('s_lshl_b32 s%d, s%d, 2' % (S_T, S_H))
        a('s_add_u32 s%d, s%d, s%d' % (S_T, S_T, S_WV))
        a('s_lshl_b32 s%d, s%d, 2' % (S_T, S_T))
        a('s_add_u32 s%d, s%d, 0x%x' % (S_T, S_T, STAMP_OFF + 0x100000 + 0x1000 * k))
        a('v_mov_b32 %s, 0' % vr(V_T1))
        a('s_mov_b64 exec, 1')
        a('buffer_store_dword %s, %s, s[%d:%d], s%d offen' % (vr(V_T0), vr(V_T1), S_WS, S_WS + 3, S_T))
        a('s_mov_b64 exec, -1')
    def dbg_wait(tag, word, target):
        a('s_mov_b32 s%d, 0x200000' % S_CNT)
        a('v_mov_b32 %s, %s' % (vr(V_T1), word))
        a('%s_%s:' % (name, tag))
        a('buffer_load_dword %s, %s, s[%d:%d], 0 offen sc1' % (vr(V_BIAS), vr(V_T1), S_DBG, S_DBG + 3))
        a('s_waitcnt vmcnt(0)')
        a('v_readfirstlane_b32 s%d, %s' % (S_T + 3, vr(V_BIAS)))
        a('s_cmp_ge_u32 s%d, %d' % (S_T + 3, target))
        a('s_cbranch_scc1 %s_%s_ok' % (name, tag))
        a('s_sleep 2')
        a('s_sub_u32 s%d, s%d, 1' % (S_CNT, S_CNT))
        a('s_cbranch_scc0 %s_%s' % (name, tag))
        a('%s_%s_ok:' % (name, tag))
    def dbg_add(word):
        a('s_mov_b64 exec, 1')
        a('v_mov_b32 %s, %d' % (vr(V_T1), word * 4))
        a('v_mov_b32 %s, 1' % vr(V_T0))
        a('buffer_atomic_add %s, %s, s[%d:%d], 0 offen' % (vr(V_T0), vr(V_T1), S_DBG, S_DBG + 3))
        a('s_mov_b64 exec, -1')
    if fused:
        a('s_mov_b32 s%d, 0x200000' % S_CNT)
        a('v_lshrrev_b32 %s, 2, %s' % (vr(V_T1), vr(V_L16)))
        a('%s_w0:' % name)
        a('buffer_load_dword %s, %s, s[%d:%d], 0 offen sc1' % (vr(V_BIAS), vr(V_T1), S_DBG, S_DBG + 3))
        a('s_waitcnt vmcnt(0)')
        a('v_readlane_b32 s%d, %s, 20' % (S_T + 3, vr(V_BIAS)))
        a('v_readlane_b32 s%d, %s, 24' % (S_T + 4, vr(V_BIAS)))
        a('s_lshl_b32 s%d, s%d, 1' % (S_T + 3, S_T + 3))
        a('s_min_u32 s%d, s%d, s%d' % (S_T + 3, S_T + 3, S_T + 4))
        a('s_cmp_ge_u32 s%d, 64' % (S_T + 3))
        a('s_cbranch_scc1 %s_w0ok' % name)
        a('s_sleep 4')
        a('s_sub_u32 s%d, s%d, 1' % (S_CNT, S_CNT))
        a('s_cbranch_scc0 %s_w0' % name)
        a('%s_w0ok:' % name)
        a('v_readlane_b32 s%d, %s, 22' % (S_MODE, vr(V_BIAS)))
        a('v_mov_b32 %s, 0' % vr(V_BIAS))
        a('s_mov_b32 s%d, 2' % S_NB)
        a('s_mov_b32 s%d, 100' % S_NBW)
        if stamps: rstamp(1)
    prefetch(0)
    R2 = VX + 8
    a('v_and_b32 v3, 1, v1')
    a('v_lshl_add_u32 v3, v5, 1, v3')
    a('v_lshlrev_b32 v3, 10, v3')
    a('v_lshl_add_u32 v3, v2, 5, v3')
    a('v_bfe_u32 v4, v1, 1, 1')
    a('v_lshl_add_u32 v3, v4, 2, v3')
    a('s_lshl_b32 s%d, s%d, 8' % (S_T, S_WV))
    a('v_add_u32 v3, s%d, v3' % S_T)
    for tt in range(2):
        for ip in range(4):
            a('buffer_load_dword %s, v3, s[%d:%d], 0 offen offset:%d' % (vr(R2 + tt * 4 + ip), S_W, S_W + 3, tt * 128 + ip * 8))
    for i in range(24):
        a('v_mov_b32 %s, 0' % vr(ACC + i))
    a('s_waitcnt vmcnt(0)')

    def stamp(k):
        if not stamps: return
        a('s_memtime s[%d:%d]' % (76 + 2 * k, 77 + 2 * k))
        if k != 8: return
        a('s_waitcnt lgkmcnt(0)')
        for kk in range(9):
            a('v_writelane_b32 %s, s%d, %d' % (vr(V_T0), 76 + 2 * kk, kk))
        a('s_lshl_b32 s%d, s%d, 2' % (S_T, S_H))
        a('s_add_u32 s%d, s%d, s%d' % (S_T, S_T, S_WV))
        a('s_lshl_b32 s%d, s%d, 6' % (S_T, S_T))
        a('s_add_u32 s%d, s%d, s%d' % (S_T, S_T, S_STEP))
        a('s_lshl_b32 s%d, s%d, 6' % (S_T, S_T))
        a('s_add_u32 s%d, s%d, 0x%x' % (S_T, S_T, STAMP_OFF))
        a('v_lshrrev_b32 %s, 2, %s' % (vr(V_T1), vr(V_L16)))
        a('s_mov_b64 exec, 0x1ff')
        a('buffer_store_dword %s, %s, s[%d:%d], s%d offen' % (vr(V_T0), vr(V_T1), S_WS, S_WS + 3, S_T))
        a('s_mov_b64 exec, -1')

    Q0, Q1, K0, K1, V0, V1 = [ACC + 4 * i for i in range(6)]
    T, T1 = V_T0, V_T1
    lds_n = [0]
    cold = []
    def L(text):
        a(text); lds_n[0] += 1
        return lds_n[0] - 1
    lds_done = [-1]
    def LW(idx):
        if idx <= lds_done[0]:
            return
        n = lds_n[0] - idx - 1
        n = min(n, 14)
        idx = lds_n[0] - n - 1
        a('s_waitcnt lgkmcnt(%d)' % n)
        lds_done[0] = idx
    def poll(tag, R, loads, k=PK):
        a('s_mov_b32 s%d, 0x100000' % S_CNT)
        for _ in range(PD1 if tag.startswith('p1') else PD2):
            a('s_nop 15')
        for i in range(k):
            for o in loads: a(o)
            if i < k - 1:
                a('s_nop 15')
                if PGAP > 1: a('s_nop 15')
        a('%s_%s:' % (name, tag))
        a('s_waitcnt vmcnt(%d)' % (2 * (k - 1)))
        a('v_max3_u32 %s, %s, %s, %s' % (vr(T), vr(R), vr(R + 1), vr(R + 2)))
        a('v_max3_u32 %s, %s, %s, %s' % (vr(T1), vr(R + 3), vr(R + 4), vr(R + 5)))
        a('v_max3_u32 %s, %s, %s, %s' % (vr(T), vr(R + 6), vr(R + 7), vr(T)))
        a('v_max_u32 %s, %s, %s' % (vr(T), vr(T), vr(T1)))
        a('v_cmp_eq_u32 vcc, -1, %s' % vr(T))
        a('s_cbranch_vccz %s_%sdone' % (name, tag))
        if PMASK: a('s_mov_b64 exec, vcc')
        for o in loads: a(o)
        a('s_sub_u32 s%d, s%d, 1' % (S_CNT, S_CNT))
        a('s_cbranch_scc0 %s_%s' % (name, tag))
        a('%s_%sdone:' % (name, tag))
        if PMASK: a('s_mov_b64 exec, -1')
    def step(par, w, slow=False):
        U = '%d_%d%s' % (par, w, 's' if slow else '')
        HS = ' sc1' if slow else ''
        W_ = '%d%s' % (w, 's' if slow else '')
        fill = []
        def pop(n):
            for _ in range(n):
                if fill:
                    f = fill.pop(0)
                    if callable(f): f()
                    else: a(f)
        def smf(acc, t, breg):
            a('v_smfmac_f32_16x16x64_bf16 %s, %s, %s, %s' % (vr(acc, 4), vr(AF + 4 * t, 4), breg, vr(V_IDX)))
        frag_id = {}
        order = [0]
        def frag_ops(p):
            slot = WVS + (p % 4) * 8
            n = order[p] if p < 8 else 8 + order[p - 8]
            def r0(): L('ds_read_b128 %s, %s offset:%d' % (vr(slot, 4), vr(V_WVA), n * 2048))
            def r1(): frag_id[p] = L('ds_read_b128 %s, %s offset:%d' % (vr(slot + 4, 4), vr(V_WVA), n * 2048 + 1024))
            return [r0, r1]
        def slot_reg(p): return vr(WVS + (p % 4) * 8, 8)
        qkw_id = [None]
        def post_qk(Qr, Kr, tt):
            ops = []
            ops.append('v_add_f32 %s, %s, %s' % (vr(Kr), vr(Kr), vr(Kr + 2)))
            ops.append('v_add_f32 %s, %s, %s' % (vr(Kr + 1), vr(Kr + 1), vr(Kr + 3)))
            ops.append('v_add_f32 %s, %s, %s' % (vr(Qr), vr(Qr), vr(Qr + 2)))
            ops.append('v_add_f32 %s, %s, %s' % (vr(Qr + 1), vr(Qr + 1), vr(Qr + 3)))
            ops.append('v_cvt_pk_bf16_f32 %s, %s, %s' % (vr(Kr), vr(Kr), vr(Kr + 1)))
            ops.append('v_cvt_pk_bf16_f32 %s, %s, %s' % (vr(Kr + 1), vr(Qr), vr(Qr + 1)))
            def wr(): qkw_id[0] = L('ds_write_b64 %s, %s offset:%d' % (vr(V_QKW), vr(Kr, 2), tt * 512))
            ops.append(wr)
            return ops
        own = [2 * w, 2 * w + 1]
        oth = [t for t in range(8) if t not in own]
        order[:] = own + oth
        RR = AF + 8 * w
        for p in range(4):
            for f in frag_ops(p): f()
        if par == 0:
            a('s_cmp_eq_u32 s%d, 0' % S_STEP)
            a('s_cbranch_scc1 %s_m0_%s' % (name, W_))
        poll('p2_%s' % U, RR, [
            'buffer_load_dwordx4 %s, %s, s[%d:%d], s%d offen sc1' % (vr(RR, 4), vr(V_H2LD), S_WS, S_WS + 3, S_H2 + par),
            'buffer_load_dwordx4 %s, %s, s[%d:%d], s%d offen offset:1024 sc1' % (vr(RR + 4, 4), vr(V_H2LD), S_WS, S_WS + 3, S_H2 + par)])
        if par == 0:
            a('%s_m0done_%s:' % (name, W_))
            def m0blk():
                a('%s_m0_%s:' % (name, W_))
                for i in range(4):
                    a('v_mov_b64 %s, %s' % (vr(RR + 2 * i, 2), vr(VX + 8 + 2 * i, 2)))
                a('s_branch %s_m0done_%s' % (name, W_))
            cold.append(m0blk)
        stamp(0)
        L('ds_write_b128 %s, %s offset:%d' % (vr(V_H2LD), vr(RR, 4), L_EX))
        wid = L('ds_write_b128 %s, %s offset:%d' % (vr(V_H2LD), vr(RR + 4, 4), L_EX + 1024))
        if dump:
            a('s_cmp_lg_u32 s%d, 0' % S_H)
            a('s_cbranch_scc1 %s_nodump_%s' % (name, U))
            a('buffer_store_dwordx4 %s, %s, s[%d:%d], s%d offen' % (vr(RR, 4), vr(V_H2LD), S_WS, S_WS + 3, S_DUMP))
            a('buffer_store_dwordx4 %s, %s, s[%d:%d], s%d offen offset:1024' % (vr(RR + 4, 4), vr(V_H2LD), S_WS, S_WS + 3, S_DUMP))
            a('s_waitcnt vmcnt(0)')
            a('%s_nodump_%s:' % (name, U))
            a('s_add_u32 s%d, s%d, 8192' % (S_DUMP, S_DUMP))
        def quad(t, p):
            smf(Q0, t, ar(t * 8, 8))
            smf(K0, t, ar(128 + t * 8, 8))
            smf(Q1, t, ar(64 + t * 8, 8))
            LW(frag_id[p])
            smf(K1, t, slot_reg(p))
            smf(V0, t, ar(192 + t * 8, 8))
            smf(V1, t, vr(WV1 + t * 8, 8))
        quad(own[0], 0)
        LW(wid)
        a('s_barrier')
        af_id = {}
        for t in oth:
            af_id[t] = L('ds_read_b128 %s, %s offset:%d' % (vr(AF + 4 * t, 4), vr(V_L16), L_EX + 1024 * t))
        quad(own[1], 1)
        for p in (4, 5):
            fill.extend(frag_ops(p))
        fill.extend(prefetch_ops(par ^ 1))
        if fused and w == 0:
            fill.append('v_lshlrev_b32 %s, 3, %s' % (vr(V_T1), vr(V_L16)))
            fill.append('v_mov_b32 %s, s%d' % (vr(V_T0), S_STEP))
            def pub():
                a('s_mov_b64 exec, s[%d:%d]' % (S_KMX, S_KMX + 1))
                a('buffer_store_dword %s, %s, s[%d:%d], s%d offen sc1' % (vr(V_T0), vr(V_T1), S_WS, S_WS + 3, S_FLG))
                a('s_mov_b64 exec, -1')
            fill.append(pub)
        for t in oth:
            LW(af_id[t])
            smf(Q0, t, ar(t * 8, 8))
            pop(2)
            smf(K0, t, ar(128 + t * 8, 8))
            pop(2)
        pop(99)
        for i, t in enumerate(oth):
            p = 2 + i
            smf(Q1, t, ar(64 + t * 8, 8))
            if i == 2:
                fill.extend(post_qk(Q0, K0, 0))
            pop(2)
            LW(frag_id[p])
            smf(K1, t, slot_reg(p))
            if p + 4 < 8:
                for f in frag_ops(p + 4): f()
        pop(99)
        stamp(1)
        kx_id = {}
        def kxr(j): kx_id[j] = L('ds_read_b128 %s, %s offset:%d' % (vr(AF + 4 * j, 4), vr(V_L16), L_KX + par * 8192 + 1024 * j))
        def vp(i):
            t = order[i]
            smf(V0, t, ar(192 + t * 8, 8))
            smf(V1, t, vr(WV1 + t * 8, 8))
            kxr(t)
        kxr(own[0]); kxr(own[1])
        vp(2)
        for o in post_qk(Q1, K1, 1):
            if callable(o): o()
            else: a(o)
        vp(3)
        LW(qkw_id[0])
        a('s_barrier')
        F = ACC
        f_id = []
        for es in range(4):
            L('ds_read_b64_tr_b16 %s, %s offset:%d' % (vr(F + 4 * es, 2), vr(V_FTR), es * 1024))
            f_id.append(L('ds_read_b64_tr_b16 %s, %s offset:%d' % (vr(F + 4 * es + 2, 2), vr(V_FTR), es * 1024 + 512)))
        for i in range(4, 8):
            vp(i)
        stamp(2)
        SM, SX0, SX1 = WVS, WVS + 4, WVS + 8
        VM = V0
        started = set()
        def smm(acc, areg, es):
            c = vr(acc, 4) if acc in started else '0'
            started.add(acc)
            a('v_mfma_f32_16x16x32_bf16 %s, %s, %s, %s' % (vr(acc, 4), areg, vr(F + 4 * es, 4), c))
        LW(f_id[3])
        for i, t in enumerate(order):
            if i < 4:
                smm(SM, vr(F + 4 * i, 4), i)
            LW(kx_id[t])
            smm(SX0 if t < 4 else SX1, vr(AF + 4 * t, 4), t % 4)
            if i == 0:
                a('buffer_store_dwordx4 %s, %s, s[%d:%d], s%d offen offset:%d%s' % (vr(F + 4 * w, 4), vr(V_L16), S_WS, S_WS + 3, S_KM, w * 1024, SC))
                a('s_add_u32 s%d, s%d, 0x20000' % (S_KM, S_KM))
            if i == 2:
                for k in range(4):
                    a('v_cvt_pk_bf16_f32 %s, %s, %s' % (vr(VM + k), vr(V0 + 2 * k), vr(V0 + 2 * k + 1)))
            if i == 3:
                a('buffer_store_dwordx4 %s, %s, s[%d:%d], s%d offen%s' % (vr(VM, 4), vr(V_L16), S_WS, S_WS + 3, S_VM, SC))
                a('s_add_u32 s%d, s%d, 0x20000' % (S_VM, S_VM))
            if i == 5:
                a('s_cmp_eq_u32 s%d, %d' % (S_STEP, nsteps - 1))
        a('s_cbranch_scc1 %s_done' % name)
        stamp(3)
        a('v_max3_f32 %s, %s, %s, %s' % (vr(T), vr(SX0), vr(SX0 + 1), vr(SX0 + 2)))
        a('v_max3_f32 %s, %s, %s, %s' % (vr(T1), vr(SX0 + 3), vr(SM), vr(SM + 1)))
        a('v_max3_f32 %s, %s, %s, %s' % (vr(T1), vr(SX1), vr(SX1 + 1), vr(T1)))
        a('v_max3_f32 %s, %s, %s, %s' % (vr(T), vr(SX1 + 2), vr(SX1 + 3), vr(T)))
        a('v_max_f32 %s, %s, %s' % (vr(T), vr(T), vr(T1)))
        a('v_mov_b32 %s, %s' % (vr(T1), vr(T)))
        a('v_mov_b64 %s, 0' % vr(AF + 16, 2))
        a('v_mov_b64 %s, 0' % vr(AF + 18, 2))
        a('v_permlane32_swap_b32 %s, %s' % (vr(T), vr(T1)))
        a('v_max_f32 %s, %s, %s' % (vr(T), vr(T), vr(T1)))
        a('v_mov_b32 %s, %s' % (vr(T1), vr(T)))
        a('v_mov_b64 %s, 0' % vr(AF + 20, 2))
        a('v_mov_b64 %s, 0' % vr(AF + 22, 2))
        a('v_permlane16_swap_b32 %s, %s' % (vr(T), vr(T1)))
        a('v_max_f32 %s, %s, %s' % (vr(T), vr(T), vr(T1)))
        a('v_mul_f32 %s, s%d, %s' % (vr(T), S_C, vr(T)))
        PX = WVS + 28; PM = WVS + 2
        LS, O0, O1 = WVS + 16, WVS + 20, WVS + 24
        for i in range(2):
            a('v_fma_f32 %s, %s, s%d, -%s' % (vr(SM + i), vr(SM + i), S_C, vr(T)))
        for i in range(2):
            a('v_exp_f32 %s, %s' % (vr(SM + i), vr(SM + i)))
        for i in range(4, 12):
            a('v_fma_f32 %s, %s, s%d, -%s' % (vr(WVS + i), vr(WVS + i), S_C, vr(T)))
        a('v_cvt_pk_bf16_f32 %s, %s, %s' % (vr(PM), vr(SM), vr(SM + 1)))
        a('v_cvt_pk_bf16_f32 %s, %s, %s' % (vr(PM + 1), vr(SM), vr(SM + 1)))
        a('v_exp_f32 %s, %s' % (vr(WVS + 4), vr(WVS + 4)))
        a('v_exp_f32 %s, %s' % (vr(WVS + 5), vr(WVS + 5)))
        a('v_mfma_f32_16x16x16_bf16 %s, %s, %s, 0' % (vr(LS, 4), vr(PM, 2), vr(V_HONES, 2)))
        a('v_exp_f32 %s, %s' % (vr(WVS + 6), vr(WVS + 6)))
        a('v_exp_f32 %s, %s' % (vr(WVS + 7), vr(WVS + 7)))
        a('v_mfma_f32_16x16x16_bf16 %s, %s, %s, 0' % (vr(O0, 4), vr(PM, 2), vr(VM, 2)))
        a('v_exp_f32 %s, %s' % (vr(WVS + 8), vr(WVS + 8)))
        a('v_exp_f32 %s, %s' % (vr(WVS + 9), vr(WVS + 9)))
        a('v_mfma_f32_16x16x16_bf16 %s, %s, %s, 0' % (vr(O1, 4), vr(PM, 2), vr(VM + 2, 2)))
        a('v_exp_f32 %s, %s' % (vr(WVS + 10), vr(WVS + 10)))
        a('v_exp_f32 %s, %s' % (vr(WVS + 11), vr(WVS + 11)))
        a('v_cvt_pk_bf16_f32 %s, %s, %s' % (vr(PX), vr(SX0), vr(SX0 + 1)))
        a('v_cvt_pk_bf16_f32 %s, %s, %s' % (vr(PX + 1), vr(SX0 + 2), vr(SX0 + 3)))
        a('v_cvt_pk_bf16_f32 %s, %s, %s' % (vr(PX + 2), vr(SX1), vr(SX1 + 1)))
        a('v_cvt_pk_bf16_f32 %s, %s, %s' % (vr(PX + 3), vr(SX1 + 2), vr(SX1 + 3)))
        stamp(4)
        a('v_mov_b64 %s, 0' % vr(AF + 24, 2))
        a('v_mov_b64 %s, 0' % vr(AF + 26, 2))
        a('v_mfma_f32_16x16x32_bf16 %s, %s, %s, %s' % (vr(LS, 4), vr(PX, 4), vr(V_ONES, 4), vr(LS, 4)))
        a('v_mov_b64 %s, 0' % vr(AF + 28, 2))
        a('v_mov_b64 %s, 0' % vr(AF + 30, 2))
        a('v_mfma_f32_16x16x32_bf16 %s, %s, %s, %s' % (vr(O0, 4), vr(PX, 4), vr(VX + par * 8, 4), vr(O0, 4)))
        a('v_mfma_f32_16x16x32_bf16 %s, %s, %s, %s' % (vr(O1, 4), vr(PX, 4), vr(VX + par * 8 + 4, 4), vr(O1, 4)))
        wo_id = {}
        def wor(q):
            slot = WSL[wo_seq.index(q) % 5]
            L('ds_read_b128 %s, %s offset:%d' % (vr(slot, 4), vr(V_WVA), (8 + q) * 2048))
            wo_id[q] = L('ds_read_b128 %s, %s offset:%d' % (vr(slot + 4, 4), vr(V_WVA), (8 + q) * 2048 + 1024))
        WSL = [WVS, WVS + 8, WVS + 16, ACC, ACC + 8]
        wo_seq = [0, 2, 1, 3, 4, 6, 5, 7]
        wor(wo_seq[0]); wor(wo_seq[1])
        for i in range(2, 4):
            a('v_rcp_f32 %s, %s' % (vr(LS + i), vr(LS + i)))
        for tt, O in enumerate((O0, O1)):
            for i in range(2, 4):
                a('v_mul_f32 %s, %s, %s' % (vr(O + i), vr(O + i), vr(LS + i)))
            a('v_cvt_pk_bf16_f32 %s, %s, %s' % (vr(O), vr(O + 2), vr(O + 3)))
            L('ds_write_b32 %s, %s offset:%d' % (vr(V_OW), vr(O), 256 * tt))
        for i in range(4):
            a('v_mov_b64 %s, 0' % vr(AF + 2 * i, 2))
        a('s_waitcnt lgkmcnt(0)')
        a('s_barrier')
        OA = WVS + 24
        oa_id = []
        for t2 in range(2):
            L('ds_read_b64_tr_b16 %s, %s offset:%d' % (vr(OA + 4 * t2, 2), vr(V_OTR), t2 * 1024))
            oa_id.append(L('ds_read_b64_tr_b16 %s, %s offset:%d' % (vr(OA + 4 * t2 + 2, 2), vr(V_OTR), t2 * 1024 + 128)))
        for i in range(4, 8):
            a('v_mov_b64 %s, 0' % vr(AF + 2 * i, 2))
        stamp(5)
        def post_wo(u):
            A0 = AF + 8 * u; A1 = A0 + 4
            ops = []
            for A in (A0, A1):
                ops.append('v_add_f32 %s, %s, %s' % (vr(A), vr(A), vr(A + 2)))
                ops.append('v_add_f32 %s, %s, %s' % (vr(A + 1), vr(A + 1), vr(A + 3)))
            ops.append('v_cvt_pk_bf16_f32 %s, %s, %s' % (vr(A0), vr(A0), vr(A0 + 1)))
            ops.append('v_cvt_pk_bf16_f32 %s, %s, %s' % (vr(A0 + 1), vr(A1), vr(A1 + 1)))
            ops.append('buffer_store_dwordx2 %s, %s, s[%d:%d], s%d offen%s' % (vr(A0, 2), vr(V_H1ST), S_WS, S_WS + 3, S_H1ST + par * 4 + u, HS))
            return ops
        LW(oa_id[0])
        nq = [2]
        for u in range(4):
            for t2 in range(2):
                if u == 0 and t2 == 1: LW(oa_id[1])
                for k in range(2):
                    tt8 = 2 * u + k
                    if u < 2:
                        breg = vr(WO + (tt8 * 2 + t2) * 8, 8)
                    else:
                        q = (tt8 - 4) * 2 + t2
                        LW(wo_id[q])
                        breg = vr(WSL[wo_seq.index(q) % 5], 8)
                    a('v_smfmac_f32_16x16x64_bf16 %s, %s, %s, %s' % (vr(AF + 4 * tt8, 4), vr(OA + 4 * t2, 4), breg, vr(V_IDX)))
                    if u == 0 and nq[0] < 5 and not (t2 == 0 and k == 0):
                        wor(wo_seq[nq[0]]); nq[0] += 1
                    if u >= 2 and nq[0] < 8:
                        wor(wo_seq[nq[0]]); nq[0] += 1
                    if t2 == 1 and k == 0 and u > 0:
                        fill.extend(post_wo(u - 1))
                    if t2 == 1:
                        pop(4)
            pop(99)
        for i in range(8, 12):
            a('v_mov_b64 %s, 0' % vr(ACC + 2 * i, 2))
        for o in post_wo(3): a(o)
        for i in range(0, 8):
            a('v_mov_b64 %s, 0' % vr(ACC + 2 * i, 2))
        R1 = WVS
        stamp(6)
        poll('p1_%s' % U, R1, [
            'buffer_load_dwordx4 %s, %s, s[%d:%d], s%d offen sc1' % (vr(R1 + 4 * it, 4), vr(V_H1LD), S_WS, S_WS + 3, S_H1LD + par * 2 + it) for it in range(2)])
        stamp(7)
        RA = WVS + 8; RB = WVS + 12; SN = WVS + 16
        a('v_mfma_f32_16x16x32_bf16 %s, %s, %s, 0' % (vr(RA, 4), vr(V_SEL, 4), vr(R1, 4)))
        a('v_mfma_f32_16x16x32_bf16 %s, %s, %s, %s' % (vr(RA, 4), vr(V_SEL, 4), vr(R1 + 4, 4), vr(RA, 4)))
        a('v_mov_b64 %s, -1' % vr(SN, 2))
        a('v_mov_b64 %s, -1' % vr(SN + 2, 2))
        a('s_add_u32 s%d, s%d, 1' % (S_STEP, S_STEP))
        for i in range(4):
            a('v_add_f32_dpp %s, %s, %s row_ror:4 row_mask:0xf bank_mask:0xf' % (vr(RB + i), vr(RA + i), vr(RA + i)))
        for i in range(4):
            a('v_add_f32_dpp %s, %s, %s row_ror:8 row_mask:0xf bank_mask:0xf' % (vr(RA + i), vr(RB + i), vr(RB + i)))
        a('s_mov_b64 exec, s[%d:%d]' % (S_STMASK, S_STMASK + 1))
        a('v_cvt_pk_bf16_f32 %s, %s, %s' % (vr(RA), vr(RA), vr(RA + 1)))
        a('v_cvt_pk_bf16_f32 %s, %s, %s' % (vr(RA + 1), vr(RA + 2), vr(RA + 3)))
        a('buffer_store_dword %s, %s, s[%d:%d], s%d offen%s' % (vr(RA), vr(V_H2ST), S_WS, S_WS + 3, S_H2 + (par ^ 1), HS))
        a('buffer_store_dword %s, %s, s[%d:%d], s%d offen offset:16%s' % (vr(RA + 1), vr(V_H2ST), S_WS, S_WS + 3, S_H2 + (par ^ 1), HS))
        a('buffer_store_dword %s, %s, s[%d:%d], s%d offen%s' % (vr(SN), vr(V_H2ST), S_WS, S_WS + 3, S_H2 + par, HS))
        a('buffer_store_dword %s, %s, s[%d:%d], s%d offen offset:16%s' % (vr(SN), vr(V_H2ST), S_WS, S_WS + 3, S_H2 + par, HS))
        a('s_mov_b64 exec, -1')
        for it in range(2):
            a('buffer_store_dwordx4 %s, %s, s[%d:%d], s%d offen%s' % (vr(SN, 4), vr(V_H1LD), S_WS, S_WS + 3, S_H1LD + par * 2 + it, HS))
        if fused:
            a('s_add_u32 s%d, s%d, %d' % (S_T, S_STEP, 2 if par == 1 else 1))
            a('s_cmp_lg_u32 s%d, s%d' % (S_T, S_NB))
            a('s_cbranch_scc1 %s_nokv%s' % (name, U))
            if par == 1:
                a('v_mov_b32 %s, s%d' % (vr(V_T1), S_NBW))
                a('buffer_load_dword %s, %s, s[%d:%d], 0 offen sc1' % (vr(V_BIAS), vr(V_T1), S_DBG, S_DBG + 3))
            else:
                a('v_readfirstlane_b32 s%d, %s' % (S_T + 3, vr(V_BIAS)))
                a('s_cmp_ge_u32 s%d, 64' % (S_T + 3))
                a('s_cbranch_scc1 %s_kvok%s' % (name, U))
                dbg_wait('wkvn%s' % W_, 's%d' % S_NBW, 64)
                a('%s_kvok%s:' % (name, U))
                a('s_min_u32 s%d, s%d, 8' % (S_T, S_NB))
                a('s_add_u32 s%d, s%d, s%d' % (S_NB, S_NB, S_T))
                a('s_add_u32 s%d, s%d, 4' % (S_NBW, S_NBW))
                a('s_cmp_ge_u32 s%d, 64' % S_NB)
                a('s_cselect_b32 s%d, 0x7fff, s%d' % (S_NB, S_NB))
            a('%s_nokv%s:' % (name, U))
        if stamps:
            a('s_sub_u32 s%d, s%d, 1' % (S_STEP, S_STEP))
            stamp(8)
            a('s_add_u32 s%d, s%d, 1' % (S_STEP, S_STEP))
    for slow in ([False, True] if fused else [False]):
        sfx = 's' if slow else ''
        if fused and not slow:
            a('s_cmp_lg_u32 s%d, 0' % S_MODE)
            a('s_cbranch_scc1 %s_slowmode' % name)
        if slow:
            a('%s_slowmode:' % name)
        for w in range(1, 4):
            a('s_cmp_eq_u32 s%d, %d' % (S_WV, w))
            a('s_cbranch_scc1 %s_wl%d%s' % (name, w, sfx))
        for w in range(4):
            a('%s_wl%d%s:' % (name, w, sfx))
            step(0, w, slow)
            step(1, w, slow)
            a('s_branch %s_wl%d%s' % (name, w, sfx))
    for c in cold: c()
    a('%s_done:' % name)
    a('s_waitcnt vmcnt(0)')
    if stamps: rstamp(2)
    if fused:
        a('s_barrier')
        a('s_cmp_lg_u32 s%d, 0' % S_WV)
        a('s_cbranch_scc1 %s_fin' % name)
        dbg_add(21)
        a('%s_fin:' % name)

def kernel_header(a, name):
    a.out.append('.globl %s' % name)
    a.out.append('.p2align 8')
    a.out.append('.type %s,@function' % name)
    a.out.append('%s:' % name)

def kernel_desc(name, vgpr=512, sgpr=102, accum=256):
    return '''.amdhsa_kernel %s
  .amdhsa_next_free_vgpr %d
  .amdhsa_next_free_sgpr %d
  .amdhsa_accum_offset %d
  .amdhsa_group_segment_fixed_size 0
  .amdhsa_kernarg_size 160
  .amdhsa_user_sgpr_count 2
  .amdhsa_user_sgpr_kernarg_segment_ptr 1
  .amdhsa_system_sgpr_workgroup_id_x 1
.end_amdhsa_kernel
''' % (name, vgpr, sgpr, accum)

def gen_init(a, name):
    kernel_header(a, name)
    a('s_cmp_ge_u32 s2, 33')
    a('s_cbranch_scc1 %s_end' % name)
    a('s_load_dwordx2 s[8:9], s[0:1], 152')
    a('s_waitcnt lgkmcnt(0)')
    build_srd(a, 4, 8, WS_BYTES)
    a('s_lshl_b32 s3, s2, 14')
    a('s_add_u32 s3, s3, 0x%x' % H1_OFF)
    a('v_lshlrev_b32 v1, 4, v0')
    for i in range(4):
        a('v_mov_b32 v%d, -1' % (4 + i))
    for i in range(4):
        a('s_add_u32 s10, s3, %d' % (i * 4096))
        a('buffer_store_dwordx4 v[4:7], v1, s[4:7], s10 offen')
    a('%s_end:' % name)
    a('s_endpgm')

def gen_chain_kernel(a, name, **kw):
    kernel_header(a, name)
    gen_role(a, name)
    a('s_cmp_gt_u32 s%d, 31' % S_H)
    a('s_cbranch_scc1 %s_exit' % name)
    gen_chain_body(a, name, **kw)
    a('%s_exit:' % name)
    a('s_endpgm')

if __name__ == '__main__':
    import sys
    a = Asm()
    hdr = '''; @launch kernel=init_kernel grid=(33,1,1) block=(256,1,1) lds=0
; @launch kernel=chain_kernel grid=(256,1,1) block=(256,1,1) lds=163840
.amdgcn_target "amdgcn-amd-amdhsa--gfx950"
.text
'''
    gen_init(a, 'init_kernel')
    gen_chain_kernel(a, 'chain_kernel', dump=('dump' in sys.argv), stamps=('stamps' in sys.argv))
    txt = hdr + a.text() + '.section .rodata,"a"\n.p2align 6\n' + kernel_desc('init_kernel', 16, 16, 16) + '.p2align 6\n' + kernel_desc('chain_kernel')
    open(sys.argv[1], 'w').write(txt)
    print('nops inserted', a.nops_inserted, 'lines', len(a.out))
```

```python
import sys
from asmgen import Asm, vr
from layout import *
import gen_chain, gen_gemm, gen_attn, gen_ssm, gen_attn2
from gen_chain import kernel_desc, kernel_header, S_DBG, S_H, S_WV
from gen_all_hdr import header

L_TK = 163840 - 16
import os
NTAIL = int(os.environ.get('NTAIL', '14'))
T_Q = 640; T_WOF = 960; T_SSM = 1088; T_MO = 1344; T_AT = T_MO + (64 - NTAIL) * 4; T_END = T_AT + NTAIL * 24
def gen_main(a, name, stamps=False):
    kernel_header(a, name)
    a('s_cmp_ge_u32 s2, 256')
    a('s_cbranch_scc1 %s_exit' % name)
    if stamps: a('s_memrealtime s[88:89]')
    gen_chain.gen_role(a, name, static=True)
    a('s_mov_b32 s101, 0')
    a('s_cmp_gt_u32 s%d, 31' % S_H)
    a('s_cbranch_scc1 %s_worker' % name)
    a('%s_chain:' % name)
    gen_chain.gen_chain_body(a, name, fused=True, stamps=stamps)
    a('s_cmp_eq_u32 s101, 0')
    a('s_cbranch_scc1 %s_exit' % name)
    a('s_barrier')
    a('s_mov_b32 s48, s%d' % S_WV)
    a('s_mov_b32 s96, 0')
    a('s_mov_b32 s97, 0')
    a('s_mov_b32 s87, 2')
    a('s_mov_b32 s86, 99')
    a('s_mov_b32 s99, 0')
    a('s_mov_b32 s101, 0')
    gen_gemm.load_ptrs(a)
    a('v_mbcnt_lo_u32_b32 v0, -1, 0')
    a('v_mbcnt_hi_u32_b32 v0, -1, v0')
    a('s_lshl_b32 s16, s48, 6')
    a('v_add_u32 v0, s16, v0')
    a('s_mov_b32 s49, s100')
    a('s_branch %s_nopf' % name)
    a('%s_worker:' % name)
    a('s_mov_b32 s48, s%d' % S_WV)
    a('s_mov_b32 s96, 0')
    a('s_mov_b32 s97, 0')
    a('s_mov_b32 s87, 0')
    def fetch():
        a('s_mov_b64 exec, 1')
        a('v_mov_b32 v253, 68')
        a('v_mov_b32 v254, 1')
        a('buffer_atomic_add v254, v253, s[%d:%d], 0 offen sc0' % (S_DBG, S_DBG + 3))
        a('s_mov_b64 exec, -1')
    a('s_cmp_lg_u32 s48, 0')
    a('s_cbranch_scc1 %s_nf0' % name)
    fetch()
    a('%s_nf0:' % name)
    gen_gemm.load_ptrs(a)
    a('%s_loop:' % name)
    a('v_mbcnt_lo_u32_b32 v0, -1, 0')
    a('v_mbcnt_hi_u32_b32 v0, -1, v0')
    a('s_lshl_b32 s16, s48, 6')
    a('v_add_u32 v0, s16, v0')
    a('v_mov_b32 v2, %d' % L_TK)
    a('s_cmp_lg_u32 s48, 0')
    a('s_cbranch_scc1 %s_tkw' % name)
    a('s_waitcnt vmcnt(0)')
    a('s_mov_b64 exec, 1')
    a('ds_write_b32 v2, v254')
    a('v_mov_b32 v4, 99')
    a('s_cmp_lg_u32 s87, 1')
    a('s_cbranch_scc1 %s_nocl' % name)
    a('v_mov_b32 v5, 0')
    a('buffer_load_dword v6, v5, s[%d:%d], 0 offen sc1' % (S_DBG, S_DBG + 3))
    a('s_waitcnt vmcnt(0)')
    a('v_readfirstlane_b32 s16, v6')
    a('s_cmp_ge_u32 s16, 32')
    a('s_cbranch_scc1 %s_nocl' % name)
    a('v_mov_b32 v4, 1')
    a('buffer_atomic_add v4, v5, s[%d:%d], 0 offen sc0' % (S_DBG, S_DBG + 3))
    a('s_waitcnt vmcnt(0)')
    a('%s_nocl:' % name)
    a('ds_write_b32 v2, v4 offset:4')
    a('s_waitcnt lgkmcnt(0)')
    a('s_mov_b64 exec, -1')
    a('%s_tkw:' % name)
    a('s_barrier')
    a('ds_read_b64 v[4:5], v2')
    a('s_waitcnt lgkmcnt(0)')
    a('v_readfirstlane_b32 s49, v4')
    a('v_readfirstlane_b32 s86, v5')
    a('s_barrier')
    a('s_add_u32 s87, s87, 1')
    a('s_cmp_ge_u32 s86, 32')
    a('s_cbranch_scc1 %s_nocl2' % name)
    a('s_mov_b32 s101, 1')
    a('s_cmp_ge_u32 s49, %d' % T_MO)
    a('s_cbranch_scc1 %s_tochain' % name)
    a('s_mov_b32 s101, 0')
    a('s_mov_b32 s99, 0')
    a('s_branch %s_nopf' % name)
    a('%s_nocl2:' % name)
    a('s_mov_b32 s99, 0')
    a('s_cmp_lg_u32 s48, 0')
    a('s_cbranch_scc1 %s_nopf' % name)
    a('s_cmp_ge_u32 s49, %d' % (T_SSM - 224))
    a('s_cbranch_scc1 %s_nopf' % name)
    fetch()
    a('s_mov_b32 s99, 1')
    a('%s_nopf:' % name)
    a('s_cmp_ge_u32 s49, %d' % T_END)
    a('s_cbranch_scc1 %s_exit' % name)
    if stamps:
        a('s_memrealtime s[90:91]')
        a('s_lshl_b32 s98, s49, 4')
        a('s_add_u32 s98, s98, 0x%x' % (STAMP_OFF + 0x200000))
    a('s_mov_b32 s93, 1')
    a('s_cmp_ge_u32 s49, %d' % T_AT)
    a('s_cbranch_scc1 %s_t_attn' % name)
    a('s_cmp_ge_u32 s49, %d' % T_MO)
    a('s_cbranch_scc1 %s_t_mono' % name)
    a('s_cmp_ge_u32 s49, %d' % T_SSM)
    a('s_cbranch_scc1 %s_t_ssm' % name)
    a('s_cmp_ge_u32 s49, %d' % T_WOF)
    a('s_cbranch_scc1 %s_t_wof' % name)
    a('s_cmp_ge_u32 s49, %d' % T_Q)
    a('s_cbranch_scc1 %s_t_q' % name)
    a('s_lshr_b32 s16, s49, 6')
    a('s_bfe_u32 s12, s49, 0x10005')
    a('s_and_b32 s13, s49, 31')
    a('s_add_u32 s92, s16, 24')
    a('s_branch %s_t_g' % name)
    a('%s_t_q:' % name)
    a('s_sub_u32 s17, s49, %d' % T_Q)
    a('s_lshr_b32 s16, s17, 5')
    a('s_and_b32 s13, s17, 31')
    a('s_mov_b32 s12, 2')
    a('s_add_u32 s92, s16, 34')
    a('%s_t_g:' % name)
    a('s_lshl_b32 s14, s16, 2')
    a('s_sub_u32 s14, s14, 8')
    a('s_mov_b32 s33, 4')
    a('s_cmp_lt_u32 s16, 3')
    a('s_cselect_b32 s14, s16, s14')
    a('s_cselect_b32 s33, 2, s33')
    a('s_cmp_lt_u32 s16, 2')
    a('s_cselect_b32 s33, 1, s33')
    gen_gemm.gen_gemm_task(a, name + '_g', None, sc1=True)
    a('s_branch %s_sig' % name)
    a('%s_t_wof:' % name)
    a('s_sub_u32 s49, s49, %d' % T_WOF)
    a('s_mov_b32 s92, 18')
    gen_attn.gen_wof_task(a, name + '_w', 49, sc1=True)
    a('s_branch %s_sig' % name)
    a('%s_t_ssm:' % name)
    a('s_sub_u32 s49, s49, %d' % T_SSM)
    a('s_mov_b32 s92, 19')
    gen_ssm.gen_ssm_task(a, name + '_s', 49, sc1=True)
    a('s_branch %s_sig' % name)
    a('%s_t_mono:' % name)
    a('s_sub_u32 s49, s49, %d' % T_MO)
    a('s_lshr_b32 s16, s49, 2')
    gen_attn2.seg_block(a, 18, 16)
    gen_attn2.static_poll(a, name + '_md0', s_blk=18)
    gen_attn2.prog_poll(a, name + '_md1', 16)
    a('s_mov_b32 s92, 51')
    gen_attn.gen_attn_task(a, name + '_m', 49, sc1=False)
    a('s_branch %s_sig' % name)
    a('%s_t_attn:' % name)
    a('s_sub_u32 s49, s49, %d' % T_AT)
    a('s_mul_hi_u32 s12, s49, 0x%x' % ((1 << 32) // 24 + 1))
    a('s_mul_i32 s16, s12, 24')
    a('s_sub_u32 s13, s49, s16')
    a('s_add_u32 s12, s12, %d' % (64 - NTAIL))
    a('s_cmp_ge_u32 s13, 8')
    a('s_cbranch_scc1 %s_t_b' % name)
    a('s_lshl_b32 s92, s12, 7')
    a('s_add_u32 s92, s92, 0x%x' % (FLG_OFF + 4096))
    gen_attn2.gen_attnA(a, name + '_a', 12, 13, 48)
    a('s_branch %s_sig' % name)
    a('%s_t_b:' % name)
    a('s_sub_u32 s13, s13, 8')
    a('s_mov_b32 s92, 50')
    gen_attn2.gen_attnB(a, name + '_b', 12, 13, 48)
    a('%s_sig:' % name)
    a('s_waitcnt vmcnt(0)')
    a('s_barrier')
    a('s_cmp_lg_u32 s48, 0')
    a('s_cbranch_scc1 %s_next' % name)
    a('s_mov_b64 exec, 1')
    a('v_mov_b32 v3, 1')
    a('s_cmp_ge_u32 s92, 64')
    a('s_cbranch_scc1 %s_sigws' % name)
    a('s_lshl_b32 s92, s92, 2')
    a('v_mov_b32 v2, s92')
    a('buffer_atomic_add v3, v2, s[%d:%d], 0 offen' % (S_DBG, S_DBG + 3))
    a('s_branch %s_sige' % name)
    a('%s_sigws:' % name)
    a('v_mov_b32 v2, s92')
    a('buffer_atomic_add v3, v2, s[4:7], 0 offen')
    a('%s_sige:' % name)
    if stamps:
        a('s_memrealtime s[94:95]')
        a('s_waitcnt lgkmcnt(0)')
        a('v_mov_b32 v4, s90')
        a('v_mov_b32 v5, s94')
        a('v_mov_b32 v6, s88')
        a('v_mov_b32 v7, s2')
        a('v_mov_b32 v2, 0')
        a('buffer_store_dwordx4 v[4:7], v2, s[4:7], s98 offen')
    a('s_mov_b64 exec, -1')
    a('s_cmp_lt_u32 s86, 32')
    a('s_cbranch_scc1 %s_tochain' % name)
    a('s_cmp_eq_u32 s99, 1')
    a('s_cbranch_scc1 %s_loop' % name)
    fetch()
    a('s_branch %s_loop' % name)
    a('%s_next:' % name)
    a('s_cmp_ge_u32 s86, 32')
    a('s_cbranch_scc1 %s_loop' % name)
    a('%s_tochain:' % name)
    a('s_mov_b32 s100, s49')
    a('v_mbcnt_lo_u32_b32 v0, -1, 0')
    a('v_mbcnt_hi_u32_b32 v0, -1, v0')
    a('v_mov_b32 %s, v0' % vr(gen_chain.V_LANE))
    a('s_lshl_b32 s16, s48, 6')
    a('v_add_u32 v0, s16, v0')
    a('s_mov_b32 s%d, s48' % S_WV)
    a('s_mov_b32 s%d, s86' % S_H)
    a('s_mov_b32 s%d, 1' % gen_chain.S_OFFX)
    a('s_branch %s_chain' % name)
    a('%s_exit:' % name)
    a('s_endpgm')

if __name__ == '__main__':
    a = Asm()
    hdr = header() + '''; @launch kernel=main_kernel grid=(256,1,1) block=(256,1,1) lds=163840
.amdgcn_target "amdgcn-amd-amdhsa--gfx950"
.text
'''
    gen_main(a, 'main_kernel', stamps=('stamps' in sys.argv))
    txt = hdr + a.text() + '.section .rodata,"a"\n.p2align 6\n' + kernel_desc('main_kernel', 512, 102, 256)
    open(sys.argv[1], 'w').write(txt)
    print('lines', len(a.out), 'bytes', len(txt))
```

```python
import re

_REG_RE = re.compile(r'^(-?)(abs\()?([vas])(\d+|\[(\d+):(\d+)\])\)?$')

def parse_reg(tok):
    tok = tok.strip()
    if tok in ('vcc',):
        return [('s', 'vcc')]
    if tok in ('exec',):
        return [('s', 'exec')]
    if tok == 'm0':
        return [('s', 'm0')]
    m = _REG_RE.match(tok)
    if not m:
        return []
    kind = m.group(3)
    if m.group(5) is not None:
        lo, hi = int(m.group(5)), int(m.group(6))
    else:
        lo = hi = int(m.group(4))
    return [(kind, i) for i in range(lo, hi + 1)]

TRANS = ('v_exp_f32', 'v_log_f32', 'v_rcp_f32', 'v_rsq_f32', 'v_sqrt_f32', 'v_sin_f32', 'v_cos_f32')

def mfma_passes(op):
    if '32x32' in op:
        return 8
    return 4

class Ins:
    __slots__ = ('text', 'op', 'cls', 'reads', 'writes', 'srcc', 'srcab', 'passes', 'states', 'dpp', 'wide_store')

class Asm:
    def __init__(self):
        self.out = []
        self.hist = []
        self.nops_inserted = 0

    def _classify(self, text):
        ins = Ins()
        ins.text = text
        body = text.split(';')[0].strip()
        parts = body.split(None, 1)
        op = parts[0]
        rest = parts[1] if len(parts) > 1 else ''
        ops = [o.strip() for o in rest.split(',')] if rest else []
        mods = ''
        if ops:
            last = ops[-1].split()
            ops[-1] = last[0] if last else ''
            mods = ' '.join(last[1:])
        ins.op = op
        ins.reads = []; ins.writes = []; ins.srcc = []; ins.srcab = []
        ins.passes = 0; ins.states = 1; ins.dpp = ('row_' in mods or 'quad_perm' in mods or op.endswith('_dpp')); ins.wide_store = False
        R = [parse_reg(o) for o in ops]
        if op == 's_nop':
            ins.cls = 'nop'; ins.states = int(ops[0], 0) + 1
        elif op.startswith('v_mfma'):
            ins.cls = 'mfma'; ins.passes = mfma_passes(op)
            ins.writes = R[0]; ins.srcab = R[1] + R[2]; ins.srcc = R[3]; ins.reads = ins.srcab + ins.srcc
        elif op.startswith('v_smfmac'):
            ins.cls = 'mfma'; ins.passes = mfma_passes(op)
            ins.writes = R[0]; ins.srcab = R[1] + R[2] + R[3]; ins.srcc = R[0]; ins.reads = ins.srcab + ins.srcc
        elif op.startswith('v_permlane') and 'swap' in op:
            ins.cls = 'permlane'; ins.writes = R[0] + R[1]; ins.reads = R[0] + R[1]
        elif op.startswith('v_cmp'):
            ins.cls = 'valu'; ins.writes = R[0]; ins.reads = sum(R[1:], [])
        elif op.startswith('v_writelane'):
            ins.cls = 'valu'; ins.writes = R[0]; ins.reads = sum(R, [])
        elif op.startswith('v_readfirstlane') or op.startswith('v_readlane'):
            ins.cls = 'readlane'; ins.writes = R[0]; ins.reads = sum(R[1:], [])
        elif op.startswith('v_'):
            ins.cls = 'trans' if any(op.startswith(t) for t in TRANS) else 'valu'
            ins.writes = list(R[0]); ins.reads = sum(R[1:], [])
            if op.startswith('v_fmac') or op.startswith('v_dot2c') or op.startswith('v_pk_fmac') or ins.dpp:
                ins.reads = ins.reads + R[0]
            if '_co_' in op:
                ins.writes = R[0] + R[1]; ins.reads = sum(R[2:], [])
            if op.startswith('v_cndmask') and len(ops) == 3:
                ins.reads = ins.reads + [('s', 'vcc')]
        elif op.startswith('ds_read') or op.startswith('ds_bpermute') or op.startswith('ds_swizzle'):
            ins.cls = 'ds'; ins.writes = R[0]; ins.reads = sum(R[1:], [])
        elif op.startswith('ds_'):
            ins.cls = 'ds'; ins.reads = sum(R, [])
        elif op.startswith('buffer_load') or op.startswith('global_load'):
            ins.cls = 'vmem'
            if 'lds' in mods.split() or '_lds_' in op:
                ins.reads = sum(R, []) + [('s', 'm0')]; ins.cls = 'vmem_lds'
            else:
                ins.writes = R[0]; ins.reads = sum(R[1:], [])
        elif op.startswith('buffer_store') or op.startswith('global_store'):
            ins.cls = 'vmem'; ins.reads = sum(R, [])
            if 'x4' in op or 'x3' in op:
                ins.wide_store = True
                ins.srcc = R[0] if op.startswith('buffer') else R[1]
        elif op.startswith('buffer_atomic') or op.startswith('global_atomic'):
            ins.cls = 'vmem'; ins.reads = sum(R, [])
            if 'sc0' in mods.split():
                ins.writes = R[0]
        elif op.startswith('buffer_') or op.startswith('s_waitcnt') or op.startswith('s_barrier') or op.startswith('s_sleep') or op.startswith('s_setprio'):
            ins.cls = 'other'
        elif op.startswith('s_cbranch') or op.startswith('s_branch') or op == 's_endpgm':
            ins.cls = 'branch'
        elif op.startswith('s_'):
            ins.cls = 'salu'
            if op.startswith('s_cmp') or op.startswith('s_bitcmp'):
                ins.reads = sum(R, [])
            elif op.startswith('s_load') or op.startswith('s_buffer_load') or op.startswith('s_mem'):
                ins.cls = 'smem'; ins.writes = R[0]; ins.reads = sum(R[1:], [])
            else:
                ins.writes = R[0] if R else []; ins.reads = sum(R[1:], [])
                if 'saveexec' in op:
                    ins.writes = ins.writes + [('s', 'exec')]
        else:
            raise ValueError('unknown instruction ' + text)
        return ins

    def _need(self, p, c):
        need = 0
        pw = set(p.writes)
        VALUISH = ('valu', 'trans', 'permlane', 'readlane')
        cvr = set(r for r in c.reads if r[0] in 'va')
        cw = set(c.writes)
        if p.cls in VALUISH:
            pv = set(r for r in pw if r[0] in 'va')
            ps = set(r for r in pw if r[0] == 's')
            if pv:
                if c.cls == 'mfma' and pv & cvr: need = max(need, 2)
                if c.cls == 'permlane' and pv & cvr: need = max(need, 2)
                if c.dpp and pv & cvr: need = max(need, 2)
                if c.cls == 'readlane' and pv & cvr: need = max(need, 1)
                if p.cls == 'trans' and c.cls in VALUISH and c.cls != 'trans' and pv & (cvr | cw): need = max(need, 1)
                if p.cls == 'trans' and c.cls in ('vmem', 'ds', 'vmem_lds') and pv & cvr: need = max(need, 1)
            if ps:
                csr = set(r for r in c.reads if r[0] == 's')
                if ps & csr:
                    if c.cls in ('vmem', 'vmem_lds'): need = max(need, 5)
                    elif c.cls in VALUISH: need = max(need, 4 if c.cls == 'readlane' else 2)
                    elif c.cls in ('salu', 'smem'): need = max(need, 1)
                if ('s', 'exec') in ps and (c.cls in VALUISH or c.cls == 'mfma'): need = max(need, 5)
        if p.cls == 'mfma':
            big = {4: 8, 8: 12}[p.passes]
            if c.cls == 'mfma':
                if pw & set(c.srcab): need = max(need, big)
                if pw & set(c.srcc):
                    if not (set(c.srcc) == pw and c.op == p.op): need = max(need, p.passes + 2)
                elif pw & cw:
                    need = max(need, big)
            else:
                if pw & (cvr | cw): need = max(need, big)
            if c.cls in VALUISH and set(p.srcc) & cw: need = max(need, p.passes - 1)
        if p.wide_store:
            if set(p.srcc) & cw: need = max(need, 2)
        if p.cls == 'salu' and ('s', 'm0') in pw and c.cls == 'vmem_lds':
            need = max(need, 1)
        return need

    def emit(self, text):
        for line in text.split('\n'):
            line = line.strip()
            if not line:
                continue
            if line.startswith(';') or line.startswith('.') :
                self.out.append('    ' + line); continue
            if line.endswith(':'):
                self.out.append(line); continue
            ins = self._classify(line)
            dist = 0; need = 0
            for p in reversed(self.hist):
                n = self._need(p, ins) - dist
                if n > need: need = n
                dist += p.states
                if dist > 24: break
            if ins.cls == 'branch' and ins.op != 's_endpgm' and not getattr(self, 'noflush', False):
                dist = 0
                for p in reversed(self.hist):
                    if p.cls == 'mfma':
                        n = {4: 8, 8: 12}[p.passes] - dist - 1
                        if n > need: need = n
                    elif p.cls in ('valu', 'trans', 'permlane', 'readlane') and any(r[0] in 'va' for r in p.writes):
                        n = 2 - dist - 1
                        if n > need: need = n
                    dist += p.states
                    if dist > 24: break
            while need > 0:
                k = min(need, 16)
                nop = self._classify('s_nop %d' % (k - 1))
                self.out.append('    s_nop %d' % (k - 1)); self.hist.append(nop); self.nops_inserted += k
                need -= k
            self.out.append('    ' + line)
            self.hist.append(ins)
            if len(self.hist) > 64:
                self.hist = self.hist[-40:]

    def br(self, text):
        self.noflush = True
        self.emit(text)
        self.noflush = False

    def __call__(self, text):
        self.emit(text)

    def text(self):
        return '\n'.join(self.out) + '\n'

def vr(base, n=1, k='v'):
    return '%s%d' % (k, base) if n == 1 else '%s[%d:%d]' % (k, base, base + n - 1)
def ar(base, n=1):
    return vr(base, n, 'a')
def sr(base, n=1):
    return vr(base, n, 's')
```

```python
from asmgen import Asm, vr, ar, sr
from layout import *

import os
L_WV = 32768
L_KX = 0
L_EX = L_KX + 16384
L_QK = L_EX + 8192
L_O = L_QK + 4096
L_MISC = L_O + 2048
LDS_BYTES = 163840
L_STG = 0

AF = 0
ACC = 32
WVS = 56
VX = 88
V_IDX = 104
V_T0 = 105
V_ONES = 106
V_HONES = 110
V_SEL = 112
V_L16 = 116
V_WVA = 117
V_QKW = 118
V_FTR = 119
V_OW = 120
V_OTR = 121
V_H1ST = 122
V_H1LD = 123
V_H2LD = 124
V_H2ST = 125
V_BIAS = 126
V_T1 = 127
V_FLA = 111
L_FLG = L_MISC + 16
V_LANE = 7
WV1 = 128
WO = 192

S_WS = 4
S_W = 8
S_H = 12
S_WV = 13
S_STEP = 14
S_T = 15
S_H1ST = 20
S_H1LD = 28
S_H2 = 32
S_KXP = 34
S_VXP = 35
S_KM = 36
S_VM = 37
S_ONELO = 38
S_ONEHI = 39
S_STMASK = 40
S_C = 42
S_CNT = 43
S_DBG = 44
S_HI32 = 48
S_PTR = 50
S_DUMP = 66
S_M0A = 67
S_M0B = 68
S_TS = 70
S_KMX = 72
S_FLG = 74
S_NB = 75
S_NBW = 69
S_TAGM = 71
S_MODE = 93
S_OFFX = 92
CHX = int(os.environ.get('CHX', '0'))

import os
PK = int(os.environ.get('PK', '1')); PGAP = int(os.environ.get('PGAP', '1')); PMASK = int(os.environ.get('PMASK', '1'))
LFLAG = int(os.environ.get('LFLAG', '0'))
LATERST = int(os.environ.get('LATERST', '3'))
PD1 = int(os.environ.get('PD1', '0')); PD2 = int(os.environ.get('PD2', '0'))
SCALE_LOG2E = 0.08838834764831845 * 1.4426950408889634

def f32bits(x):
    import struct
    return struct.unpack('<I', struct.pack('<f', x))[0]

def build_srd(a, d, ptr_lo, nbytes):
    a('s_mov_b32 s%d, s%d' % (d, ptr_lo))
    a('s_and_b32 s%d, s%d, 0xffff' % (d + 1, ptr_lo + 1))
    a('s_mov_b32 s%d, 0x%x' % (d + 2, nbytes))
    a('s_mov_b32 s%d, 0x00020000' % (d + 3))

def gen_role(a, name, static=False):
    a('s_load_dwordx2 s[%d:%d], s[0:1], 144' % (S_T + 1, S_T + 2))
    a('s_getreg_b32 s%d, hwreg(HW_REG_XCC_ID)' % S_T)
    a('s_and_b32 s%d, s%d, 15' % (S_T, S_T))
    a('v_lshrrev_b32 v1, 6, v0')
    a('v_readfirstlane_b32 s%d, v1' % S_WV)
    a('v_and_b32 %s, 63, v0' % vr(V_LANE))
    a('s_waitcnt lgkmcnt(0)')
    build_srd(a, S_DBG, S_T + 1, 256)
    a('s_mov_b32 s%d, 0' % S_OFFX)
    a('s_cmp_lg_u32 s%d, 0' % S_WV)
    a('s_cbranch_scc1 %s_role_wait' % name)
    a('s_mov_b64 exec, 1')
    if static:
        a('s_add_u32 s%d, s%d, %d' % (S_T + 4, S_T, 1 + CHX))
        a('v_mov_b32 v4, s%d' % (S_T + 4))
        a('v_mov_b32 v5, 0')
        a('v_mov_b32 v2, 64')
        a('buffer_atomic_cmpswap v[4:5], v2, s[%d:%d], 0 offen sc0' % (S_DBG, S_DBG + 3))
        a('s_waitcnt vmcnt(0)')
        a('v_readfirstlane_b32 s%d, v4' % (S_T + 3))
        a('s_cmp_eq_u32 s%d, 0' % (S_T + 3))
        a('s_cselect_b32 s%d, s%d, s%d' % (S_T + 3, S_T + 4, S_T + 3))
        a('s_sub_u32 s%d, s%d, 1' % (S_T + 3, S_T + 3))
        a('s_mov_b32 s%d, 99' % S_H)
        a('s_cmp_lg_u32 s%d, s%d' % (S_T + 3, S_T))
        a('s_cbranch_scc1 %s_role_pub' % name)
        a('s_mov_b32 s%d, 0' % S_T)
    a('s_lshl_b32 s%d, s%d, 2' % (S_T + 3, S_T))
    a('v_mov_b32 v2, s%d' % (S_T + 3))
    a('v_mov_b32 v3, 1')
    a('buffer_atomic_add v3, v2, s[%d:%d], 0 offen sc0' % (S_DBG, S_DBG + 3))
    a('s_waitcnt vmcnt(0)')
    a('v_readfirstlane_b32 s%d, v3' % (S_T + 3))
    a('s_mov_b32 s%d, 99' % S_H)
    a('s_cmp_gt_u32 s%d, 31' % (S_T + 3))
    a('s_cbranch_scc1 %s_role_pub' % name)
    if not static:
        a('s_cmp_lg_u32 s%d, %d' % (S_T + 3, 31 if CHX == 0 else 40))
        a('s_cbranch_scc1 %s_role_poll' % name)
        a('s_add_u32 s%d, s%d, 1' % (S_T + 4, S_T))
        a('v_mov_b32 v4, s%d' % (S_T + 4))
        a('v_mov_b32 v5, 0')
        a('v_mov_b32 v2, 64')
        a('buffer_atomic_cmpswap v[4:5], v2, s[%d:%d], 0 offen' % (S_DBG, S_DBG + 3))
        a('s_waitcnt vmcnt(0)')
        a('%s_role_poll:' % name)
        a('s_mov_b32 s%d, 24' % S_CNT)
        a('v_mov_b32 v2, 64')
        a('%s_role_poll_loop:' % name)
        a('buffer_load_dword v4, v2, s[%d:%d], 0 offen sc1' % (S_DBG, S_DBG + 3))
        a('s_waitcnt vmcnt(0)')
        a('v_readfirstlane_b32 s%d, v4' % (S_T + 4))
        a('s_cmp_lg_u32 s%d, 0' % (S_T + 4))
        a('s_cbranch_scc1 %s_role_got' % name)
        a('s_sub_u32 s%d, s%d, 1' % (S_CNT, S_CNT))
        a('s_cbranch_scc0 %s_role_poll_loop' % name)
        a('v_mov_b32 v4, 0xff')
        a('v_mov_b32 v5, 0')
        a('buffer_atomic_cmpswap v[4:5], v2, s[%d:%d], 0 offen sc0' % (S_DBG, S_DBG + 3))
        a('s_waitcnt vmcnt(0)')
        a('v_readfirstlane_b32 s%d, v4' % (S_T + 4))
        a('%s_role_got:' % name)
        a('s_sub_u32 s%d, s%d, 1' % (S_T + 4, S_T + 4))
        a('s_cmp_lg_u32 s%d, s%d' % (S_T + 4, S_T))
        a('s_cbranch_scc1 %s_role_pub' % name)
    a('s_mov_b32 s%d, s%d' % (S_H, S_T + 3))
    a('%s_role_pub:' % name)
    a('v_mov_b32 v2, %d' % L_MISC)
    a('v_mov_b32 v3, s%d' % S_H)
    a('ds_write_b32 v2, v3')
    a('s_waitcnt lgkmcnt(0)')
    a('s_mov_b64 exec, -1')
    a('%s_role_wait:' % name)
    a('s_barrier')
    a('v_mov_b32 v2, %d' % L_MISC)
    a('ds_read_b32 v3, v2')
    a('s_waitcnt lgkmcnt(0)')
    a('v_readfirstlane_b32 s%d, v3' % S_H)
    a('s_barrier')
    a('%s_role_end:' % name)

def gen_chain_body(a, name, nsteps=64, dump=False, stamps=False, fused=False):
    SC = ' sc1' if fused else ''
    lane = vr(V_LANE)
    if stamps: a('s_memrealtime s[94:95]')
    a('s_load_dwordx16 s[%d:%d], s[0:1], 0' % (S_PTR + 2, S_PTR + 17))
    a('s_load_dwordx2 s[%d:%d], s[0:1], 152' % (S_PTR, S_PTR + 1))
    a('s_waitcnt lgkmcnt(0)')
    P = lambda i: S_PTR + 2 + 2 * i
    build_srd(a, S_WS, S_PTR, WS_BYTES)
    a('v_and_b32 v1, 15, %s' % lane)
    a('v_lshrrev_b32 v2, 4, %s' % lane)
    a('v_lshlrev_b32 %s, 4, %s' % (vr(V_L16), lane))
    a('v_and_b32 v3, 2, v1')
    a('v_cmp_eq_u32 vcc, 0, v3')
    a('v_mov_b32 v3, 0xeeee')
    a('v_mov_b32 v4, 0x4444')
    a('v_cndmask_b32 %s, v3, v4, vcc' % vr(V_IDX))
    for i in range(4):
        a('v_mov_b32 %s, 0x3f803f80' % vr(V_ONES + i))
    a('v_cmp_gt_u32 vcc, 32, %s' % lane)
    a('v_mov_b32 v3, 0xff800000')
    a('v_mov_b32 v4, 0')
    a('v_cndmask_b32 %s, v3, v4, vcc' % vr(V_BIAS))
    a('s_lshl_b32 s%d, s%d, 15' % (S_T, S_WV))
    a('s_add_u32 s%d, s%d, %d' % (S_T, S_T, L_WV))
    a('v_add_u32 %s, s%d, %s' % (vr(V_WVA), S_T, vr(V_L16)))
    a('s_lshl_b32 s%d, s%d, 10' % (S_T, S_WV))
    a('s_add_u32 s%d, s%d, %d' % (S_T, S_T, L_QK))
    a('v_lshlrev_b32 v3, 5, v1')
    a('v_lshl_add_u32 v3, v2, 3, v3')
    a('v_add_u32 %s, s%d, v3' % (vr(V_QKW), S_T))
    a('v_lshrrev_b32 v5, 2, v1')
    a('v_and_b32 v6, 3, v1')
    a('v_lshl_add_u32 v3, v2, 2, v5')
    a('v_lshlrev_b32 v3, 5, v3')
    a('v_lshl_add_u32 v3, v6, 3, v3')
    a('v_add_u32 %s, %d, v3' % (vr(V_FTR), L_QK))
    a('v_lshl_add_u32 v3, v2, 3, v5')
    a('v_lshlrev_b32 v3, 5, v3')
    a('v_lshl_add_u32 v3, v6, 3, v3')
    a('v_add_u32 %s, %d, v3' % (vr(V_OTR), L_O))
    a('v_and_b32 v3, 1, v1')
    a('v_lshl_add_u32 v3, v5, 1, v3')
    a('v_lshlrev_b32 v3, 5, v3')
    a('v_bfe_u32 v4, v1, 1, 1')
    a('v_lshl_add_u32 v3, v4, 2, v3')
    a('v_lshl_add_u32 v3, v2, 3, v3')
    a('s_lshl_b32 s%d, s%d, 9' % (S_T, S_WV))
    a('s_add_u32 s%d, s%d, %d' % (S_T, S_T, L_O))
    a('v_add_u32 %s, s%d, v3' % (vr(V_OW), S_T))
    a('v_lshrrev_b32 v3, 5, %s' % lane)
    a('v_lshlrev_b32 v3, 13, v3')
    a('v_and_b32 v4, 1, v2')
    a('v_lshl_add_u32 v3, v4, 7, v3')
    a('v_lshl_add_u32 v3, v1, 3, v3')
    a('s_lshl_b32 s%d, s%d, 14' % (S_T, S_WV))
    a('s_lshl_b32 s%d, s%d, 8' % (S_T + 1, S_H))
    a('s_add_u32 s%d, s%d, s%d' % (S_T, S_T, S_T + 1))
    a('v_add_u32 %s, s%d, v3' % (vr(V_H1ST), S_T))
    a('v_lshrrev_b32 v3, 2, %s' % lane)
    a('v_lshlrev_b32 v3, 8, v3')
    a('v_lshl_add_u32 v3, v6, 4, v3')
    a('s_lshl_b32 s%d, s%d, 13' % (S_T, S_H))
    a('s_lshl_b32 s%d, s%d, 6' % (S_T + 1, S_WV))
    a('s_add_u32 s%d, s%d, s%d' % (S_T, S_T, S_T + 1))
    a('v_add_u32 %s, s%d, v3' % (vr(V_H1LD), S_T))
    a('s_lshl_b32 s%d, s%d, 11' % (S_T, S_WV))
    a('v_add_u32 %s, s%d, %s' % (vr(V_H2LD), S_T, vr(V_L16)))
    a('v_lshlrev_b32 v3, 8, v2')
    a('v_and_b32 v4, 1, %s' % lane)
    a('v_lshl_add_u32 v3, v4, 5, v3')
    a('v_bfe_u32 v4, %s, 1, 1' % lane)
    a('v_lshl_add_u32 v3, v4, 2, v3')
    a('s_lshr_b32 s%d, s%d, 1' % (S_T, S_H))
    a('s_lshl_b32 s%d, s%d, 9' % (S_T, S_T))
    a('s_and_b32 s%d, s%d, 1' % (S_T + 1, S_H))
    a('s_lshl_b32 s%d, s%d, 7' % (S_T + 1, S_T + 1))
    a('s_add_u32 s%d, s%d, s%d' % (S_T, S_T, S_T + 1))
    a('s_lshr_b32 s%d, s%d, 1' % (S_T + 1, S_WV))
    a('s_lshl_b32 s%d, s%d, 6' % (S_T + 1, S_T + 1))
    a('s_add_u32 s%d, s%d, s%d' % (S_T, S_T, S_T + 1))
    a('s_and_b32 s%d, s%d, 1' % (S_T + 1, S_WV))
    a('s_lshl_b32 s%d, s%d, 3' % (S_T + 1, S_T + 1))
    a('s_add_u32 s%d, s%d, s%d' % (S_T, S_T, S_T + 1))
    a('v_add_u32 %s, s%d, v3' % (vr(V_H2ST), S_T))
    a('v_mov_b32 %s, 0x3f803f80' % vr(V_HONES))
    a('v_mov_b32 %s, 0' % vr(V_HONES + 1))
    a('v_and_b32 v3, 1, v1')
    a('v_lshlrev_b32 v3, 2, v3')
    a('v_lshl_add_u32 v3, v5, 1, v3')
    a('v_bfe_u32 v4, v1, 1, 1')
    a('v_add_u32 v3, v3, v4')
    a('v_cmp_gt_u32 vcc, 8, v1')
    a('v_mov_b32 v4, 99')
    a('v_cndmask_b32 v3, v4, v3, vcc')
    a('v_mov_b32 v8, 0x3f80')
    a('v_mov_b32 v9, 0x3f800000')
    a('v_mov_b32 v10, 0')
    for k in range(4):
        a('v_cmp_eq_u32 vcc, %d, v3' % (2 * k))
        a('v_cndmask_b32 v4, v10, v8, vcc')
        a('v_cmp_eq_u32 vcc, %d, v3' % (2 * k + 1))
        a('v_cndmask_b32 %s, v4, v9, vcc' % vr(V_SEL + k))
    a('s_mov_b32 s%d, 0' % (S_KMX + 1))
    a('s_cmp_eq_u32 s%d, 0' % S_H)
    a('s_cselect_b32 s%d, -1, 1' % S_KMX)
    a('s_lshl_b32 s%d, s%d, 7' % (S_T, S_H))
    a('s_add_u32 s%d, s%d, 0x%x' % (S_T, S_T, FLG_OFF + 16384))
    a('s_cmp_eq_u32 s%d, 0' % S_H)
    a('s_cselect_b32 s%d, 0x%x, s%d' % (S_FLG, FLG_OFF, S_T))
    for par in range(2):
        for u in range(4):
            a('s_mov_b32 s%d, 0x%x' % (S_H1ST + par * 4 + u, H1_OFF + par * 262144 + u * 65536))
        for it in range(2):
            a('s_mov_b32 s%d, 0x%x' % (S_H1LD + par * 2 + it, H1_OFF + par * 262144 + it * 4096))
        a('s_mov_b32 s%d, 0x%x' % (S_H2 + par, H2_OFF + par * 8192))
    a('s_mov_b32 s%d, 0x00003f80' % S_ONELO)
    a('s_mov_b32 s%d, 0x3f800000' % S_ONEHI)
    a('s_mov_b32 s%d, 0x000f000f' % S_STMASK)
    a('s_mov_b32 s%d, 0' % (S_STMASK + 1))
    a('s_mov_b32 s%d, 0x%x' % (S_C, f32bits(SCALE_LOG2E)))
    a('s_mov_b32 s%d, 0' % S_HI32)
    a('s_mov_b32 s%d, -1' % (S_HI32 + 1))
    if fused:
        a('v_mov_b64 v[8:9], -1')
        a('v_mov_b64 v[10:11], -1')
        for par in range(2):
            for it in range(2):
                a('buffer_store_dwordx4 v[8:11], %s, s[%d:%d], s%d offen sc1' % (vr(V_H1LD), S_WS, S_WS + 3, S_H1LD + par * 2 + it))
        a('s_mov_b64 exec, s[%d:%d]' % (S_STMASK, S_STMASK + 1))
        for par in range(2):
            a('buffer_store_dword v8, %s, s[%d:%d], s%d offen sc1' % (vr(V_H2ST), S_WS, S_WS + 3, S_H2 + par))
            a('buffer_store_dword v8, %s, s[%d:%d], s%d offen offset:16 sc1' % (vr(V_H2ST), S_WS, S_WS + 3, S_H2 + par))
        a('s_mov_b64 exec, 7')
        a('s_lshl_b32 s%d, s%d, 7' % (S_T, S_H))
        a('s_add_u32 s%d, s%d, 0x%x' % (S_T, S_T, FLG_OFF))
        a('v_mov_b32 v9, s%d' % S_T)
        a('s_lshl_b32 s%d, s%d, 8' % (S_T, S_H))
        a('s_add_u32 s%d, s%d, 0x%x' % (S_T, S_T, FLG_OFF + 4096 - 128))
        a('v_lshlrev_b32 v10, 7, %s' % lane)
        a('v_add_u32 v10, s%d, v10' % S_T)
        a('v_cmp_eq_u32 vcc, 0, %s' % lane)
        a('v_cndmask_b32 v9, v10, v9, vcc')
        a('v_mov_b32 v8, 0')
        a('buffer_store_dword v8, v9, s[%d:%d], 0 offen sc1' % (S_WS, S_WS + 3))
        a('s_mov_b64 exec, 1')
        a('v_mov_b32 v10, 88')
        a('v_mov_b32 v11, s%d' % S_OFFX)
        a('buffer_atomic_add v11, v10, s[%d:%d], 0 offen' % (S_DBG, S_DBG + 3))
        a('s_mov_b64 exec, -1')
        a('s_nop 1')
    a('v_and_b32 v60, 15, v0')
    a('v_lshrrev_b32 v61, 4, v0')
    a('v_lshlrev_b32 v62, 4, v60')
    a('v_lshl_add_u32 v63, v61, 13, v62')
    a('s_lshl_b32 s%d, s%d, 8' % (S_T, S_H))
    a('v_add_u32 v63, s%d, v63' % S_T)
    a('v_lshl_add_u32 v64, v61, 10, v62')
    a('s_lshl_b32 s%d, s%d, 17' % (S_T, S_H))
    a('v_add_u32 v64, s%d, v64' % S_T)
    a('v_lshl_add_u32 v65, v61, 8, v62')
    a('v_add_u32 v65, %d, v65' % L_STG)
    a('v_lshl_add_u32 v3, v2, 3, v5')
    a('v_lshlrev_b32 v3, 8, v3')
    a('v_lshl_add_u32 v3, v6, 3, v3')
    a('s_lshl_b32 s%d, s%d, 6' % (S_T, S_WV))
    a('s_add_u32 s%d, s%d, %d' % (S_T, S_T, L_STG))
    a('v_add_u32 v66, s%d, v3' % S_T)
    a('s_lshl_b32 s%d, s%d, 5' % (S_T, S_WV))
    a('s_add_u32 s%d, s%d, %d' % (S_T, S_T, L_STG))
    a('v_add_u32 v67, s%d, v3' % S_T)
    for i, m in enumerate((2, 3, 4, 5)):
        build_srd(a, 76 + 4 * i, P(m), 4194304)
    build_srd(a, S_W, P(1), 8192)
    chunks = []
    for m in range(3):
        for t in range(8):
            chunks.append((m, t, 0))
    for t2 in range(2):
        for cb in range(4):
            chunks.append((3, t2, cb))
    SETS = [(8, 31), (24, 31), (40, 31), (88, 31), (128, 15), (144, 15), (160, 15), (176, 15), (192, 23), (208, 23), (224, 23), (240, 23)]
    DEPTH = int(os.environ.get('WDEPTH', '8'))
    set_of = {}; busy = {}
    issue_at = {}
    for c in range(32):
        it = max(0, c - DEPTH)
        while True:
            cand = [b for (b, lim) in SETS if lim >= c and busy.get(b, -1) < it]
            if it == 0:
                cand = [b for (b, lim) in SETS if lim >= c and b not in busy]
            if cand: break
            it += 1
            assert it <= c, c
        it = max([it] + [issue_at[k] for k in issue_at])
        set_of[c] = cand[0]; busy[cand[0]] = c; issue_at[c] = it
    def issue_loads(ci):
        m, t, cb = chunks[ci]
        base = set_of[ci]
        for i in range(4):
            if m < 3:
                off = (64 * t + 16 * i) * 8192
                a('s_mov_b32 s%d, 0x%x' % (S_T, off))
                a('buffer_load_dwordx4 %s, v63, s[%d:%d], s%d offen' % (vr(base + 4 * i, 4), 76 + 4 * m, 79 + 4 * m, S_T))
            else:
                off = (64 * t + 16 * i) * 1024 + cb * 256
                a('s_mov_b32 s%d, 0x%x' % (S_T, off))
                a('buffer_load_dwordx4 %s, v64, s[88:91], s%d offen' % (vr(base + 4 * i, 4), S_T))
    def early_sig():
        a('s_cmp_lg_u32 s%d, 0' % S_WV)
        a('s_cbranch_scc1 %s_noini' % name)
        a('s_mov_b64 exec, 1')
        a('v_mov_b32 v84, 80')
        a('v_mov_b32 v85, 1')
        a('buffer_atomic_add v85, v84, s[%d:%d], 0 offen' % (S_DBG, S_DBG + 3))
        a('s_mov_b64 exec, -1')
        a('%s_noini:' % name)
    issued = [0]
    for ci, (m, t, cb) in enumerate(chunks):
        while issued[0] < 32 and issue_at[issued[0]] <= ci:
            issue_loads(issued[0]); issued[0] += 1
        a('s_waitcnt vmcnt(%d)' % (4 * (issued[0] - ci - 1)))
        base = set_of[ci]
        sb = (ci % 2) * 16384
        for i in range(4):
            a('ds_write_b128 v65, %s offset:%d' % (vr(base + 4 * i, 4), sb + i * 4096))
        a('s_waitcnt lgkmcnt(0)')
        a('s_barrier')
        if fused and ci == 1:
            early_sig()
        for u in range(2):
            if m == 0:
                dst = lambda k: ar((u * 8 + t) * 8 + k, 2)
                colo = 32 * u; addr = 'v66'
            elif m < 3:
                if u == 0:
                    dst = lambda k: ar(64 + 64 * m + t * 8 + k, 2)
                elif m == 1:
                    dst = lambda k: vr(68 + k, 2)
                else:
                    dst = lambda k: vr(WV1 + t * 8 + k, 2)
                colo = 32 * u; addr = 'v66'
            else:
                if cb < 2:
                    dst = lambda k: vr(WO + ((2 * cb + u) * 2 + t) * 8 + k, 2)
                else:
                    dst = lambda k: vr(68 + 8 * u + k, 2)
                colo = 32 * u; addr = 'v66'
            for k, ro in enumerate((0, 4, 32, 36)):
                a('ds_read_b64_tr_b16 %s, %s offset:%d' % (dst(2 * k), addr, sb + ro * 256 + colo))
        if m == 1:
            a('s_waitcnt lgkmcnt(0)')
            for hh in range(2):
                a('ds_write_b128 %s, %s offset:%d' % (vr(V_WVA), vr(68 + 4 * hh, 4), t * 2048 + hh * 1024))
        if m == 3 and cb >= 2:
            a('s_waitcnt lgkmcnt(0)')
            for u in range(2):
                for hh in range(2):
                    a('ds_write_b128 %s, %s offset:%d' % (vr(V_WVA), vr(68 + 8 * u + 4 * hh, 4), (8 + ((2 * (cb - 2) + u) * 2 + t)) * 2048 + hh * 1024))
    a('s_waitcnt lgkmcnt(0)')
    a('s_barrier')
    if stamps:
        a('s_memrealtime s[96:97]')
        a('s_waitcnt lgkmcnt(0)')
        a('v_mov_b32 v3, s96')
        a('s_lshl_b32 s%d, s%d, 2' % (S_T, S_H))
        a('s_add_u32 s%d, s%d, s%d' % (S_T, S_T, S_WV))
        a('s_lshl_b32 s%d, s%d, 2' % (S_T, S_T))
        a('s_add_u32 s%d, s%d, 0x%x' % (S_T, S_T, STAMP_OFF + 0x100000))
        a('v_mov_b32 v4, 0')
        a('s_mov_b64 exec, 1')
        a('buffer_store_dword v3, v4, s[%d:%d], s%d offen' % (S_WS, S_WS + 3, S_T))
        a('s_mov_b64 exec, -1')
    a('v_mov_b32 v3, -1')
    for q in range(4):
        a('ds_write_b32 %s, v3 offset:%d' % (vr(V_FLA), L_FLG + 4 * q))
    a('s_waitcnt lgkmcnt(0)')
    a('s_barrier')
    a('s_lshl_b32 s%d, s%d, 13' % (S_KXP, S_H))
    a('s_add_u32 s%d, s%d, 0x%x' % (S_VXP, S_KXP, VX_OFF))
    a('s_lshl_b32 s%d, s%d, 12' % (S_KM, S_H))
    a('s_lshl_b32 s%d, s%d, 10' % (S_T, S_WV))
    a('s_add_u32 s%d, s%d, s%d' % (S_VM, S_KM, S_T))
    a('s_add_u32 s%d, s%d, 0x%x' % (S_VM, S_VM, VM_OFF))
    a('s_add_u32 s%d, s%d, 0x%x' % (S_KM, S_KM, KM_OFF))
    a('s_lshl_b32 s%d, s%d, 11' % (S_T, S_WV))
    a('s_add_u32 s%d, s%d, %d' % (S_M0A, S_T, L_KX))
    a('s_add_u32 s%d, s%d, %d' % (S_M0B, S_T, L_KX + 8192))
    a('s_mov_b32 s%d, 0x%x' % (S_DUMP, DBG_OFF))
    a('s_mov_b32 s%d, 0' % S_STEP)
    def prefetch_ops(par):
        return [
        's_mov_b32 m0, s%d' % (S_M0A if par == 0 else S_M0B),
        's_add_u32 s%d, s%d, 0x40000' % (S_T + 2, S_KXP),
        'buffer_load_dwordx4 %s, s[%d:%d], s%d offen%s lds' % (vr(V_H2LD), S_WS, S_WS + 3, S_KXP, SC),
        'buffer_load_dwordx4 %s, s[%d:%d], s%d offen offset:1024%s lds' % (vr(V_H2LD), S_WS, S_WS + 3, S_KXP, SC),
        'buffer_load_dwordx4 %s, %s, s[%d:%d], s%d offen%s' % (vr(VX + par * 8, 4), vr(V_H2LD), S_WS, S_WS + 3, S_VXP, SC),
        'buffer_load_dwordx4 %s, %s, s[%d:%d], s%d offen offset:1024%s' % (vr(VX + par * 8 + 4, 4), vr(V_H2LD), S_WS, S_WS + 3, S_VXP, SC),
        's_mov_b32 s%d, s%d' % (S_KXP, S_T + 2),
        's_add_u32 s%d, s%d, 0x40000' % (S_VXP, S_VXP)]
    def prefetch(par):
        for o in prefetch_ops(par): a(o)
    def rstamp(k):
        a('s_memrealtime s[96:97]')
        a('s_waitcnt lgkmcnt(0)')
        a('v_mov_b32 %s, s96' % vr(V_T0))
        a('s_lshl_b32 s%d, s%d, 2' % (S_T, S_H))
        a('s_add_u32 s%d, s%d, s%d' % (S_T, S_T, S_WV))
        a('s_lshl_b32 s%d, s%d, 2' % (S_T, S_T))
        a('s_add_u32 s%d, s%d, 0x%x' % (S_T, S_T, STAMP_OFF + 0x100000 + 0x1000 * k))
        a('v_mov_b32 %s, 0' % vr(V_T1))
        a('s_mov_b64 exec, 1')
        a('buffer_store_dword %s, %s, s[%d:%d], s%d offen' % (vr(V_T0), vr(V_T1), S_WS, S_WS + 3, S_T))
        a('s_mov_b64 exec, -1')
    def dbg_wait(tag, word, target):
        a('s_mov_b32 s%d, 0x200000' % S_CNT)
        a('v_mov_b32 %s, %s' % (vr(V_T1), word))
        a('%s_%s:' % (name, tag))
        a('buffer_load_dword %s, %s, s[%d:%d], 0 offen sc1' % (vr(V_BIAS), vr(V_T1), S_DBG, S_DBG + 3))
        a('s_waitcnt vmcnt(0)')
        a('v_readfirstlane_b32 s%d, %s' % (S_T + 3, vr(V_BIAS)))
        a('s_cmp_ge_u32 s%d, %d' % (S_T + 3, target))
        a('s_cbranch_scc1 %s_%s_ok' % (name, tag))
        a('s_sleep 2')
        a('s_sub_u32 s%d, s%d, 1' % (S_CNT, S_CNT))
        a('s_cbranch_scc0 %s_%s' % (name, tag))
        a('%s_%s_ok:' % (name, tag))
    def dbg_add(word):
        a('s_mov_b64 exec, 1')
        a('v_mov_b32 %s, %d' % (vr(V_T1), word * 4))
        a('v_mov_b32 %s, 1' % vr(V_T0))
        a('buffer_atomic_add %s, %s, s[%d:%d], 0 offen' % (vr(V_T0), vr(V_T1), S_DBG, S_DBG + 3))
        a('s_mov_b64 exec, -1')
    if fused:
        a('s_mov_b32 s%d, 0x200000' % S_CNT)
        a('v_lshrrev_b32 %s, 2, %s' % (vr(V_T1), vr(V_L16)))
        a('%s_w0:' % name)
        a('buffer_load_dword %s, %s, s[%d:%d], 0 offen sc1' % (vr(V_BIAS), vr(V_T1), S_DBG, S_DBG + 3))
        a('s_waitcnt vmcnt(0)')
        a('v_readlane_b32 s%d, %s, 20' % (S_T + 3, vr(V_BIAS)))
        a('v_readlane_b32 s%d, %s, 24' % (S_T + 4, vr(V_BIAS)))
        a('s_lshl_b32 s%d, s%d, 1' % (S_T + 3, S_T + 3))
        a('s_min_u32 s%d, s%d, s%d' % (S_T + 3, S_T + 3, S_T + 4))
        a('s_cmp_ge_u32 s%d, 64' % (S_T + 3))
        a('s_cbranch_scc1 %s_w0ok' % name)
        a('s_sleep 4')
        a('s_sub_u32 s%d, s%d, 1' % (S_CNT, S_CNT))
        a('s_cbranch_scc0 %s_w0' % name)
        a('%s_w0ok:' % name)
        a('v_readlane_b32 s%d, %s, 22' % (S_MODE, vr(V_BIAS)))
        a('v_mov_b32 %s, 0' % vr(V_BIAS))
        a('s_mov_b32 s%d, 2' % S_NB)
        a('s_mov_b32 s%d, 100' % S_NBW)
        if stamps: rstamp(1)
    prefetch(0)
    R2 = VX + 8
    a('v_and_b32 v3, 1, v1')
    a('v_lshl_add_u32 v3, v5, 1, v3')
    a('v_lshlrev_b32 v3, 10, v3')
    a('v_lshl_add_u32 v3, v2, 5, v3')
    a('v_bfe_u32 v4, v1, 1, 1')
    a('v_lshl_add_u32 v3, v4, 2, v3')
    a('s_lshl_b32 s%d, s%d, 8' % (S_T, S_WV))
    a('v_add_u32 v3, s%d, v3' % S_T)
    for tt in range(2):
        for ip in range(4):
            a('buffer_load_dword %s, v3, s[%d:%d], 0 offen offset:%d' % (vr(R2 + tt * 4 + ip), S_W, S_W + 3, tt * 128 + ip * 8))
    for i in range(24):
        a('v_mov_b32 %s, 0' % vr(ACC + i))
    a('s_waitcnt vmcnt(0)')

    def stamp(k):
        if not stamps: return
        a('s_memtime s[%d:%d]' % (76 + 2 * k, 77 + 2 * k))
        if k != 8: return
        a('s_waitcnt lgkmcnt(0)')
        for kk in range(9):
            a('v_writelane_b32 %s, s%d, %d' % (vr(V_T0), 76 + 2 * kk, kk))
        a('s_lshl_b32 s%d, s%d, 2' % (S_T, S_H))
        a('s_add_u32 s%d, s%d, s%d' % (S_T, S_T, S_WV))
        a('s_lshl_b32 s%d, s%d, 6' % (S_T, S_T))
        a('s_add_u32 s%d, s%d, s%d' % (S_T, S_T, S_STEP))
        a('s_lshl_b32 s%d, s%d, 6' % (S_T, S_T))
        a('s_add_u32 s%d, s%d, 0x%x' % (S_T, S_T, STAMP_OFF))
        a('v_lshrrev_b32 %s, 2, %s' % (vr(V_T1), vr(V_L16)))
        a('s_mov_b64 exec, 0x1ff')
        a('buffer_store_dword %s, %s, s[%d:%d], s%d offen' % (vr(V_T0), vr(V_T1), S_WS, S_WS + 3, S_T))
        a('s_mov_b64 exec, -1')

    Q0, Q1, K0, K1, V0, V1 = [ACC + 4 * i for i in range(6)]
    T, T1 = V_T0, V_T1
    lds_n = [0]
    cold = []
    def L(text):
        a(text); lds_n[0] += 1
        return lds_n[0] - 1
    lds_done = [-1]
    def LW(idx):
        if idx <= lds_done[0]:
            return
        n = lds_n[0] - idx - 1
        n = min(n, 14)
        idx = lds_n[0] - n - 1
        a('s_waitcnt lgkmcnt(%d)' % n)
        lds_done[0] = idx
    def poll(tag, R, loads, k=PK, extra=(), tagged=False):
        a('s_mov_b32 s%d, 0x100000' % S_CNT)
        for o in loads: a(o)
        nst = 0
        for o in extra:
            a(o)
            if o.startswith('buffer'): nst += 1
        if nst:
            a('s_waitcnt vmcnt(%d)' % nst)
            a('s_branch %s_%sc' % (name, tag))
        a('%s_%s:' % (name, tag))
        a('s_waitcnt vmcnt(0)')
        a('%s_%sc:' % (name, tag))
        if tagged:
            a('v_bitop3_b32 %s, %s, %s, s%d bitop3:0x7e' % (vr(T), vr(R), vr(R + 2), S_TAGM))
            a('v_bitop3_b32 %s, %s, %s, s%d bitop3:0x7e' % (vr(T1), vr(R + 4), vr(R + 6), S_TAGM))
            a('v_or_b32 %s, %s, %s' % (vr(T), vr(T), vr(T1)))
            a('v_and_b32 %s, 1, %s' % (vr(T), vr(T)))
            a('v_cmp_ne_u32 vcc, 0, %s' % vr(T))
        else:
            a('v_max3_u32 %s, %s, %s, %s' % (vr(T), vr(R), vr(R + 1), vr(R + 2)))
            a('v_max3_u32 %s, %s, %s, %s' % (vr(T1), vr(R + 3), vr(R + 4), vr(R + 5)))
            a('v_max3_u32 %s, %s, %s, %s' % (vr(T), vr(R + 6), vr(R + 7), vr(T)))
            a('v_max_u32 %s, %s, %s' % (vr(T), vr(T), vr(T1)))
            a('v_cmp_eq_u32 vcc, -1, %s' % vr(T))
        a('s_cbranch_vccz %s_%sdone' % (name, tag))
        if PMASK: a('s_mov_b64 exec, vcc')
        for o in loads: a(o)
        a('s_sub_u32 s%d, s%d, 1' % (S_CNT, S_CNT))
        a('s_cbranch_scc0 %s_%s' % (name, tag))
        a('%s_%sdone:' % (name, tag))
        if PMASK: a('s_mov_b64 exec, -1')
    def step(par, w, slow=False):
        U = '%d_%d%s' % (par, w, 's' if slow else '')
        HS = ' sc1' if slow else ''
        W_ = '%d%s' % (w, 's' if slow else '')
        fill = []
        def pop(n):
            for _ in range(n):
                if fill:
                    f = fill.pop(0)
                    if callable(f): f()
                    else: a(f)
        def smf(acc, t, breg):
            a('v_smfmac_f32_16x16x64_bf16 %s, %s, %s, %s' % (vr(acc, 4), vr(AF + 4 * t, 4), breg, vr(V_IDX)))
        frag_id = {}
        order = [0]
        def frag_ops(p):
            slot = WVS + (p % 4) * 8
            n = order[p] if p < 8 else 8 + order[p - 8]
            def r0(): L('ds_read_b128 %s, %s offset:%d' % (vr(slot, 4), vr(V_WVA), n * 2048))
            def r1(): frag_id[p] = L('ds_read_b128 %s, %s offset:%d' % (vr(slot + 4, 4), vr(V_WVA), n * 2048 + 1024))
            return [r0, r1]
        def slot_reg(p): return vr(WVS + (p % 4) * 8, 8)
        qkw_id = [None]
        def post_qk(Qr, Kr, tt):
            ops = []
            ops.append('v_add_f32 %s, %s, %s' % (vr(Kr), vr(Kr), vr(Kr + 2)))
            ops.append('v_add_f32 %s, %s, %s' % (vr(Kr + 1), vr(Kr + 1), vr(Kr + 3)))
            ops.append('v_add_f32 %s, %s, %s' % (vr(Qr), vr(Qr), vr(Qr + 2)))
            ops.append('v_add_f32 %s, %s, %s' % (vr(Qr + 1), vr(Qr + 1), vr(Qr + 3)))
            ops.append('v_cvt_pk_bf16_f32 %s, %s, %s' % (vr(Kr), vr(Kr), vr(Kr + 1)))
            ops.append('v_cvt_pk_bf16_f32 %s, %s, %s' % (vr(Kr + 1), vr(Qr), vr(Qr + 1)))
            def wr(): qkw_id[0] = L('ds_write_b64 %s, %s offset:%d' % (vr(V_QKW), vr(Kr, 2), tt * 512))
            ops.append(wr)
            return ops
        own = [2 * w, 2 * w + 1]
        oth = [t for t in range(8) if t not in own]
        if LFLAG:
            oth = [t for q in ((w + 1) % 4, (w + 2) % 4, (w + 3) % 4) for t in (2 * q, 2 * q + 1)]
        order[:] = own + oth
        RR = AF + 8 * w
        SX = VX + (par ^ 1) * 8
        for p in range(4):
            for f in frag_ops(p): f()
        if par == 0:
            a('s_cmp_eq_u32 s%d, 0' % S_STEP)
            a('s_cbranch_scc1 %s_m0_%s' % (name, W_))
        poll('p2_%s' % U, RR, [
            'buffer_load_dwordx4 %s, %s, s[%d:%d], s%d offen sc1' % (vr(RR, 4), vr(V_H2LD), S_WS, S_WS + 3, S_H2 + par),
            'buffer_load_dwordx4 %s, %s, s[%d:%d], s%d offen offset:1024 sc1' % (vr(RR + 4, 4), vr(V_H2LD), S_WS, S_WS + 3, S_H2 + par)],
            extra=(['v_mov_b64 %s, -1' % vr(SX, 2), 'v_mov_b64 %s, -1' % vr(SX + 2, 2)] +
                   ['buffer_store_dwordx4 %s, %s, s[%d:%d], s%d offen%s' % (vr(SX, 4), vr(V_H1LD), S_WS, S_WS + 3, S_H1LD + (par ^ 1) * 2 + it, HS) for it in range(2)]) if LATERST == 1 else ())
        if par == 0:
            a('%s_m0done_%s:' % (name, W_))
            def m0blk():
                a('%s_m0_%s:' % (name, W_))
                for i in range(4):
                    a('v_mov_b64 %s, %s' % (vr(RR + 2 * i, 2), vr(VX + 8 + 2 * i, 2)))
                a('s_branch %s_m0done_%s' % (name, W_))
            cold.append(m0blk)
        stamp(0)
        L('ds_write_b128 %s, %s offset:%d' % (vr(V_H2LD), vr(RR, 4), L_EX))
        wid = L('ds_write_b128 %s, %s offset:%d' % (vr(V_H2LD), vr(RR + 4, 4), L_EX + 1024))
        if dump:
            a('s_cmp_lg_u32 s%d, 0' % S_H)
            a('s_cbranch_scc1 %s_nodump_%s' % (name, U))
            a('buffer_store_dwordx4 %s, %s, s[%d:%d], s%d offen' % (vr(RR, 4), vr(V_H2LD), S_WS, S_WS + 3, S_DUMP))
            a('buffer_store_dwordx4 %s, %s, s[%d:%d], s%d offen offset:1024' % (vr(RR + 4, 4), vr(V_H2LD), S_WS, S_WS + 3, S_DUMP))
            a('s_waitcnt vmcnt(0)')
            a('%s_nodump_%s:' % (name, U))
            a('s_add_u32 s%d, s%d, 8192' % (S_DUMP, S_DUMP))
        def quad(t, p):
            smf(Q0, t, ar(t * 8, 8))
            smf(K0, t, ar(128 + t * 8, 8))
            smf(Q1, t, ar(64 + t * 8, 8))
            LW(frag_id[p])
            smf(K1, t, slot_reg(p))
            smf(V0, t, ar(192 + t * 8, 8))
            smf(V1, t, vr(WV1 + t * 8, 8))
        af_id = {}
        if LFLAG:
            a('v_mov_b32 %s, s%d' % (vr(V_T0), S_STEP))
            L('ds_write_b32 %s, %s offset:%d' % (vr(V_FLA), vr(V_T0), L_FLG + 4 * w))
            quad(own[0], 0)
            qs = [(w + 1) % 4, (w + 2) % 4, (w + 3) % 4]
            FR = [V_T0, V_T1, VX + (par ^ 1) * 8]
            def qreads(i):
                q = qs[i]
                L('ds_read_b32 %s, %s offset:%d' % (vr(FR[i]), vr(V_FLA), L_FLG + 4 * q))
                for t in (2 * q, 2 * q + 1):
                    af_id[t] = L('ds_read_b128 %s, %s offset:%d' % (vr(AF + 4 * t, 4), vr(V_L16), L_EX + 1024 * t))
            for i in range(3): qreads(i)
            quad(own[1], 1)
            oth[:] = [t for q in qs for t in (2 * q, 2 * q + 1)]
            def qcheck(i):
                q = qs[i]
                LW(af_id[2 * q + 1])
                a('v_readfirstlane_b32 s%d, %s' % (S_T + 3, vr(FR[i])))
                a('s_cmp_lg_u32 s%d, s%d' % (S_T + 3, S_STEP))
                a.br('s_cbranch_scc1 %s_qr%d_%s' % (name, i, U))
                a('%s_qk%d_%s:' % (name, i, U))
                def retry():
                    a('%s_qr%d_%s:' % (name, i, U))
                    a('s_mov_b32 s%d, 0x100000' % S_CNT)
                    a('%s_qrl%d_%s:' % (name, i, U))
                    a('ds_read_b32 %s, %s offset:%d' % (vr(FR[i]), vr(V_FLA), L_FLG + 4 * q))
                    for t in (2 * q, 2 * q + 1):
                        a('ds_read_b128 %s, %s offset:%d' % (vr(AF + 4 * t, 4), vr(V_L16), L_EX + 1024 * t))
                    a('s_waitcnt lgkmcnt(0)')
                    a('v_readfirstlane_b32 s%d, %s' % (S_T + 3, vr(FR[i])))
                    a('s_cmp_eq_u32 s%d, s%d' % (S_T + 3, S_STEP))
                    a('s_cbranch_scc1 %s_qk%d_%s' % (name, i, U))
                    a('s_sub_u32 s%d, s%d, 1' % (S_CNT, S_CNT))
                    a('s_cbranch_scc0 %s_qrl%d_%s' % (name, i, U))
                    a('s_branch %s_qk%d_%s' % (name, i, U))
                cold.append(retry)
        else:
            quad(own[0], 0)
            LW(wid)
            a('s_barrier')
            for t in oth:
                af_id[t] = L('ds_read_b128 %s, %s offset:%d' % (vr(AF + 4 * t, 4), vr(V_L16), L_EX + 1024 * t))
            quad(own[1], 1)
        for p in (4, 5):
            fill.extend(frag_ops(p))
        late = []
        (late if LFLAG else fill).extend(prefetch_ops(par ^ 1))
        if fused and w == 0:
            fill_save = fill; fill = late
            fill.append('v_lshlrev_b32 %s, 3, %s' % (vr(V_T1), vr(V_L16)))
            fill.append('v_mov_b32 %s, s%d' % (vr(V_T0), S_STEP))
            def pub():
                a('s_mov_b64 exec, s[%d:%d]' % (S_KMX, S_KMX + 1))
                a('buffer_store_dword %s, %s, s[%d:%d], s%d offen sc1' % (vr(V_T0), vr(V_T1), S_WS, S_WS + 3, S_FLG))
                a('s_mov_b64 exec, -1')
            fill.append(pub)
            fill = fill_save
        for ii, t in enumerate(oth):
            if LFLAG and ii % 2 == 0: qcheck(ii // 2)
            LW(af_id[t])
            smf(Q0, t, ar(t * 8, 8))
            pop(2)
            smf(K0, t, ar(128 + t * 8, 8))
            pop(2)
        pop(99)
        for i, t in enumerate(oth):
            p = 2 + i
            smf(Q1, t, ar(64 + t * 8, 8))
            if i == 0:
                fill.extend(late)
            if i == 2:
                fill.extend(post_qk(Q0, K0, 0))
            pop(2)
            LW(frag_id[p])
            smf(K1, t, slot_reg(p))
            if p + 4 < 8:
                for f in frag_ops(p + 4): f()
        pop(99)
        stamp(1)
        kx_id = {}
        def kxr(j): kx_id[j] = L('ds_read_b128 %s, %s offset:%d' % (vr(AF + 4 * j, 4), vr(V_L16), L_KX + par * 8192 + 1024 * j))
        def vp(i):
            t = order[i]
            smf(V0, t, ar(192 + t * 8, 8))
            smf(V1, t, vr(WV1 + t * 8, 8))
            kxr(t)
        kxr(own[0]); kxr(own[1])
        vp(2)
        for o in post_qk(Q1, K1, 1):
            if callable(o): o()
            else: a(o)
        vp(3)
        LW(qkw_id[0])
        a('s_barrier')
        F = ACC
        f_id = []
        for es in range(4):
            L('ds_read_b64_tr_b16 %s, %s offset:%d' % (vr(F + 4 * es, 2), vr(V_FTR), es * 1024))
            f_id.append(L('ds_read_b64_tr_b16 %s, %s offset:%d' % (vr(F + 4 * es + 2, 2), vr(V_FTR), es * 1024 + 512)))
        if LATERST == 2:
            a('v_mov_b64 %s, -1' % vr(WVS + 28, 2))
            a('v_mov_b64 %s, -1' % vr(WVS + 30, 2))
        for i in range(4, 8):
            vp(i)
            if LATERST == 2 and i in (4, 5):
                a('buffer_store_dwordx4 %s, %s, s[%d:%d], s%d offen%s' % (vr(WVS + 28, 4), vr(V_H1LD), S_WS, S_WS + 3, S_H1LD + (par ^ 1) * 2 + (i - 4), HS))
        stamp(2)
        SM, SX0, SX1 = WVS, WVS + 4, WVS + 8
        VM = V0
        started = set()
        def smm(acc, areg, es):
            c = vr(acc, 4) if acc in started else '0'
            started.add(acc)
            a('v_mfma_f32_16x16x32_bf16 %s, %s, %s, %s' % (vr(acc, 4), areg, vr(F + 4 * es, 4), c))
        LW(f_id[3])
        for i, t in enumerate(order):
            if i < 4:
                smm(SM, vr(F + 4 * i, 4), i)
            LW(kx_id[t])
            smm(SX0 if t < 4 else SX1, vr(AF + 4 * t, 4), t % 4)
            if i == 0:
                a('buffer_store_dwordx4 %s, %s, s[%d:%d], s%d offen offset:%d%s' % (vr(F + 4 * w, 4), vr(V_L16), S_WS, S_WS + 3, S_KM, w * 1024, SC))
                a('s_add_u32 s%d, s%d, 0x20000' % (S_KM, S_KM))
            if i == 2:
                for k in range(4):
                    a('v_cvt_pk_bf16_f32 %s, %s, %s' % (vr(VM + k), vr(V0 + 2 * k), vr(V0 + 2 * k + 1)))
            if i == 3:
                a('buffer_store_dwordx4 %s, %s, s[%d:%d], s%d offen%s' % (vr(VM, 4), vr(V_L16), S_WS, S_WS + 3, S_VM, SC))
                a('s_add_u32 s%d, s%d, 0x20000' % (S_VM, S_VM))
            if i == 5:
                a('s_cmp_eq_u32 s%d, %d' % (S_STEP, nsteps - 1))
        a('s_cbranch_scc1 %s_done' % name)
        stamp(3)
        a('v_max3_f32 %s, %s, %s, %s' % (vr(T), vr(SX0), vr(SX0 + 1), vr(SX0 + 2)))
        a('v_max3_f32 %s, %s, %s, %s' % (vr(T1), vr(SX0 + 3), vr(SM), vr(SM + 1)))
        a('v_max3_f32 %s, %s, %s, %s' % (vr(T1), vr(SX1), vr(SX1 + 1), vr(T1)))
        a('v_max3_f32 %s, %s, %s, %s' % (vr(T), vr(SX1 + 2), vr(SX1 + 3), vr(T)))
        a('v_max_f32 %s, %s, %s' % (vr(T), vr(T), vr(T1)))
        a('v_mov_b32 %s, %s' % (vr(T1), vr(T)))
        a('v_mov_b64 %s, 0' % vr(AF + 16, 2))
        a('v_mov_b64 %s, 0' % vr(AF + 18, 2))
        a('v_permlane32_swap_b32 %s, %s' % (vr(T), vr(T1)))
        a('v_max_f32 %s, %s, %s' % (vr(T), vr(T), vr(T1)))
        a('v_mov_b32 %s, %s' % (vr(T1), vr(T)))
        a('v_mov_b64 %s, 0' % vr(AF + 20, 2))
        a('v_mov_b64 %s, 0' % vr(AF + 22, 2))
        a('v_permlane16_swap_b32 %s, %s' % (vr(T), vr(T1)))
        a('v_max_f32 %s, %s, %s' % (vr(T), vr(T), vr(T1)))
        a('v_mul_f32 %s, s%d, %s' % (vr(T), S_C, vr(T)))
        PX = WVS + 28; PM = WVS + 2
        LS, O0, O1 = WVS + 16, WVS + 20, WVS + 24
        for i in range(2):
            a('v_fma_f32 %s, %s, s%d, -%s' % (vr(SM + i), vr(SM + i), S_C, vr(T)))
        for i in range(2):
            a('v_exp_f32 %s, %s' % (vr(SM + i), vr(SM + i)))
        for i in range(4, 12):
            a('v_fma_f32 %s, %s, s%d, -%s' % (vr(WVS + i), vr(WVS + i), S_C, vr(T)))
        a('v_cvt_pk_bf16_f32 %s, %s, %s' % (vr(PM), vr(SM), vr(SM + 1)))
        a('v_cvt_pk_bf16_f32 %s, %s, %s' % (vr(PM + 1), vr(SM), vr(SM + 1)))
        a('v_exp_f32 %s, %s' % (vr(WVS + 4), vr(WVS + 4)))
        a('v_exp_f32 %s, %s' % (vr(WVS + 5), vr(WVS + 5)))
        a('v_mfma_f32_16x16x16_bf16 %s, %s, %s, 0' % (vr(LS, 4), vr(PM, 2), vr(V_HONES, 2)))
        a('v_exp_f32 %s, %s' % (vr(WVS + 6), vr(WVS + 6)))
        a('v_exp_f32 %s, %s' % (vr(WVS + 7), vr(WVS + 7)))
        a('v_mfma_f32_16x16x16_bf16 %s, %s, %s, 0' % (vr(O0, 4), vr(PM, 2), vr(VM, 2)))
        a('v_exp_f32 %s, %s' % (vr(WVS + 8), vr(WVS + 8)))
        a('v_exp_f32 %s, %s' % (vr(WVS + 9), vr(WVS + 9)))
        a('v_mfma_f32_16x16x16_bf16 %s, %s, %s, 0' % (vr(O1, 4), vr(PM, 2), vr(VM + 2, 2)))
        a('v_exp_f32 %s, %s' % (vr(WVS + 10), vr(WVS + 10)))
        a('v_exp_f32 %s, %s' % (vr(WVS + 11), vr(WVS + 11)))
        a('v_cvt_pk_bf16_f32 %s, %s, %s' % (vr(PX), vr(SX0), vr(SX0 + 1)))
        a('v_cvt_pk_bf16_f32 %s, %s, %s' % (vr(PX + 1), vr(SX0 + 2), vr(SX0 + 3)))
        a('v_cvt_pk_bf16_f32 %s, %s, %s' % (vr(PX + 2), vr(SX1), vr(SX1 + 1)))
        a('v_cvt_pk_bf16_f32 %s, %s, %s' % (vr(PX + 3), vr(SX1 + 2), vr(SX1 + 3)))
        stamp(4)
        a('v_mov_b64 %s, 0' % vr(AF + 24, 2))
        a('v_mov_b64 %s, 0' % vr(AF + 26, 2))
        a('v_mfma_f32_16x16x32_bf16 %s, %s, %s, %s' % (vr(LS, 4), vr(PX, 4), vr(V_ONES, 4), vr(LS, 4)))
        a('v_mov_b64 %s, 0' % vr(AF + 28, 2))
        a('v_mov_b64 %s, 0' % vr(AF + 30, 2))
        a('v_mfma_f32_16x16x32_bf16 %s, %s, %s, %s' % (vr(O0, 4), vr(PX, 4), vr(VX + par * 8, 4), vr(O0, 4)))
        a('v_mfma_f32_16x16x32_bf16 %s, %s, %s, %s' % (vr(O1, 4), vr(PX, 4), vr(VX + par * 8 + 4, 4), vr(O1, 4)))
        wo_id = {}
        def wor(q):
            slot = WSL[wo_seq.index(q) % 5]
            L('ds_read_b128 %s, %s offset:%d' % (vr(slot, 4), vr(V_WVA), (8 + q) * 2048))
            wo_id[q] = L('ds_read_b128 %s, %s offset:%d' % (vr(slot + 4, 4), vr(V_WVA), (8 + q) * 2048 + 1024))
        WSL = [WVS, WVS + 8, WVS + 16, ACC, ACC + 8]
        wo_seq = [0, 2, 1, 3, 4, 6, 5, 7]
        wor(wo_seq[0]); wor(wo_seq[1])
        for i in range(2, 4):
            a('v_rcp_f32 %s, %s' % (vr(LS + i), vr(LS + i)))
        for tt, O in enumerate((O0, O1)):
            for i in range(2, 4):
                a('v_mul_f32 %s, %s, %s' % (vr(O + i), vr(O + i), vr(LS + i)))
            a('v_cvt_pk_bf16_f32 %s, %s, %s' % (vr(O), vr(O + 2), vr(O + 3)))
            L('ds_write_b32 %s, %s offset:%d' % (vr(V_OW), vr(O), 256 * tt))
        for i in range(4):
            a('v_mov_b64 %s, 0' % vr(AF + 2 * i, 2))
        a('s_waitcnt lgkmcnt(0)')
        a('s_barrier')
        OA = WVS + 24
        oa_id = []
        for t2 in range(2):
            L('ds_read_b64_tr_b16 %s, %s offset:%d' % (vr(OA + 4 * t2, 2), vr(V_OTR), t2 * 1024))
            oa_id.append(L('ds_read_b64_tr_b16 %s, %s offset:%d' % (vr(OA + 4 * t2 + 2, 2), vr(V_OTR), t2 * 1024 + 128)))
        for i in range(4, 8):
            a('v_mov_b64 %s, 0' % vr(AF + 2 * i, 2))
        stamp(5)
        def post_wo(u):
            A0 = AF + 8 * u; A1 = A0 + 4
            ops = []
            for A in (A0, A1):
                ops.append('v_add_f32 %s, %s, %s' % (vr(A), vr(A), vr(A + 2)))
                ops.append('v_add_f32 %s, %s, %s' % (vr(A + 1), vr(A + 1), vr(A + 3)))
            ops.append('v_cvt_pk_bf16_f32 %s, %s, %s' % (vr(A0), vr(A0), vr(A0 + 1)))
            ops.append('v_cvt_pk_bf16_f32 %s, %s, %s' % (vr(A0 + 1), vr(A1), vr(A1 + 1)))
            if LATERST == 3:
                ops.append('v_bfi_b32 %s, 1, s%d, %s' % (vr(A0), S_TAGM, vr(A0)))
            ops.append('buffer_store_dwordx2 %s, %s, s[%d:%d], s%d offen%s' % (vr(A0, 2), vr(V_H1ST), S_WS, S_WS + 3, S_H1ST + par * 4 + u, HS))
            return ops
        LW(oa_id[0])
        nq = [2]
        if LATERST == 3:
            a('s_bfe_i32 s%d, s%d, 0x10001' % (S_TAGM, S_STEP))
        for u in range(4):
            for t2 in range(2):
                if u == 0 and t2 == 1: LW(oa_id[1])
                for k in range(2):
                    tt8 = 2 * u + k
                    if u < 2:
                        breg = vr(WO + (tt8 * 2 + t2) * 8, 8)
                    else:
                        q = (tt8 - 4) * 2 + t2
                        LW(wo_id[q])
                        breg = vr(WSL[wo_seq.index(q) % 5], 8)
                    a('v_smfmac_f32_16x16x64_bf16 %s, %s, %s, %s' % (vr(AF + 4 * tt8, 4), vr(OA + 4 * t2, 4), breg, vr(V_IDX)))
                    if u == 0 and nq[0] < 5 and not (t2 == 0 and k == 0):
                        wor(wo_seq[nq[0]]); nq[0] += 1
                    if u >= 2 and nq[0] < 8:
                        wor(wo_seq[nq[0]]); nq[0] += 1
                    if t2 == 1 and k == 0 and u > 0:
                        fill.extend(post_wo(u - 1))
                    if t2 == 1:
                        pop(4)
            pop(99)
        for i in range(8, 12):
            a('v_mov_b64 %s, 0' % vr(ACC + 2 * i, 2))
        for o in post_wo(3): a(o)
        for i in range(0, 8):
            a('v_mov_b64 %s, 0' % vr(ACC + 2 * i, 2))
        R1 = WVS
        stamp(6)
        poll('p1_%s' % U, R1, [
            'buffer_load_dwordx4 %s, %s, s[%d:%d], s%d offen sc1' % (vr(R1 + 4 * it, 4), vr(V_H1LD), S_WS, S_WS + 3, S_H1LD + par * 2 + it) for it in range(2)], tagged=(LATERST == 3))
        stamp(7)
        RA = WVS + 8; RB = WVS + 12; SN = WVS + 16
        a('v_mfma_f32_16x16x32_bf16 %s, %s, %s, 0' % (vr(RA, 4), vr(V_SEL, 4), vr(R1, 4)))
        a('v_mfma_f32_16x16x32_bf16 %s, %s, %s, %s' % (vr(RA, 4), vr(V_SEL, 4), vr(R1 + 4, 4), vr(RA, 4)))
        a('v_mov_b64 %s, -1' % vr(SN, 2))
        a('v_mov_b64 %s, -1' % vr(SN + 2, 2))
        a('s_add_u32 s%d, s%d, 1' % (S_STEP, S_STEP))
        for i in range(4):
            a('v_add_f32_dpp %s, %s, %s row_ror:4 row_mask:0xf bank_mask:0xf' % (vr(RB + i), vr(RA + i), vr(RA + i)))
        for i in range(4):
            a('v_add_f32_dpp %s, %s, %s row_ror:8 row_mask:0xf bank_mask:0xf' % (vr(RA + i), vr(RB + i), vr(RB + i)))
        a('s_mov_b64 exec, s[%d:%d]' % (S_STMASK, S_STMASK + 1))
        a('v_cvt_pk_bf16_f32 %s, %s, %s' % (vr(RA), vr(RA), vr(RA + 1)))
        a('v_cvt_pk_bf16_f32 %s, %s, %s' % (vr(RA + 1), vr(RA + 2), vr(RA + 3)))
        a('buffer_store_dword %s, %s, s[%d:%d], s%d offen%s' % (vr(RA), vr(V_H2ST), S_WS, S_WS + 3, S_H2 + (par ^ 1), HS))
        a('buffer_store_dword %s, %s, s[%d:%d], s%d offen offset:16%s' % (vr(RA + 1), vr(V_H2ST), S_WS, S_WS + 3, S_H2 + (par ^ 1), HS))
        a('buffer_store_dword %s, %s, s[%d:%d], s%d offen%s' % (vr(SN), vr(V_H2ST), S_WS, S_WS + 3, S_H2 + par, HS))
        a('buffer_store_dword %s, %s, s[%d:%d], s%d offen offset:16%s' % (vr(SN), vr(V_H2ST), S_WS, S_WS + 3, S_H2 + par, HS))
        a('s_mov_b64 exec, -1')
        if not LATERST:
            for it in range(2):
                a('buffer_store_dwordx4 %s, %s, s[%d:%d], s%d offen%s' % (vr(SN, 4), vr(V_H1LD), S_WS, S_WS + 3, S_H1LD + par * 2 + it, HS))
        if fused:
            a('s_add_u32 s%d, s%d, %d' % (S_T, S_STEP, 2 if par == 1 else 1))
            a('s_cmp_lg_u32 s%d, s%d' % (S_T, S_NB))
            a('s_cbranch_scc1 %s_nokv%s' % (name, U))
            if par == 1:
                a('v_mov_b32 %s, s%d' % (vr(V_T1), S_NBW))
                a('buffer_load_dword %s, %s, s[%d:%d], 0 offen sc1' % (vr(V_BIAS), vr(V_T1), S_DBG, S_DBG + 3))
            else:
                a('v_readfirstlane_b32 s%d, %s' % (S_T + 3, vr(V_BIAS)))
                a('s_cmp_ge_u32 s%d, 64' % (S_T + 3))
                a('s_cbranch_scc1 %s_kvok%s' % (name, U))
                dbg_wait('wkvn%s' % W_, 's%d' % S_NBW, 64)
                a('%s_kvok%s:' % (name, U))
                a('s_min_u32 s%d, s%d, 8' % (S_T, S_NB))
                a('s_add_u32 s%d, s%d, s%d' % (S_NB, S_NB, S_T))
                a('s_add_u32 s%d, s%d, 4' % (S_NBW, S_NBW))
                a('s_cmp_ge_u32 s%d, 64' % S_NB)
                a('s_cselect_b32 s%d, 0x7fff, s%d' % (S_NB, S_NB))
            a('%s_nokv%s:' % (name, U))
        if stamps:
            a('s_sub_u32 s%d, s%d, 1' % (S_STEP, S_STEP))
            stamp(8)
            a('s_add_u32 s%d, s%d, 1' % (S_STEP, S_STEP))
    for slow in ([False, True] if (fused and not os.environ.get('NOSLOW')) else [False]):
        sfx = 's' if slow else ''
        if fused and not slow and not os.environ.get('NOSLOW'):
            a('s_cmp_lg_u32 s%d, 0' % S_MODE)
            a('s_cbranch_scc1 %s_slowmode' % name)
        if slow:
            a('%s_slowmode:' % name)
        for w in range(1, 4):
            a('s_cmp_eq_u32 s%d, %d' % (S_WV, w))
            a('s_cbranch_scc1 %s_wl%d%s' % (name, w, sfx))
        for w in range(4):
            if os.environ.get('ALIGN'): a('.p2align %s' % os.environ['ALIGN'])
            a('%s_wl%d%s:' % (name, w, sfx))
            step(0, w, slow)
            step(1, w, slow)
            a('s_branch %s_wl%d%s' % (name, w, sfx))
    for c in cold: c()
    a('%s_done:' % name)
    a('s_waitcnt vmcnt(0)')
    if stamps: rstamp(2)
    if fused:
        a('s_barrier')
        a('s_cmp_lg_u32 s%d, 0' % S_WV)
        a('s_cbranch_scc1 %s_fin' % name)
        dbg_add(21)
        a('%s_fin:' % name)

def kernel_header(a, name):
    a.out.append('.globl %s' % name)
    a.out.append('.p2align 8')
    a.out.append('.type %s,@function' % name)
    a.out.append('%s:' % name)

def kernel_desc(name, vgpr=512, sgpr=102, accum=256):
    return '''.amdhsa_kernel %s
  .amdhsa_next_free_vgpr %d
  .amdhsa_next_free_sgpr %d
  .amdhsa_accum_offset %d
  .amdhsa_group_segment_fixed_size 0
  .amdhsa_kernarg_size 160
  .amdhsa_user_sgpr_count 2
  .amdhsa_user_sgpr_kernarg_segment_ptr 1
  .amdhsa_system_sgpr_workgroup_id_x 1
.end_amdhsa_kernel
''' % (name, vgpr, sgpr, accum)

def gen_init(a, name):
    kernel_header(a, name)
    a('s_cmp_ge_u32 s2, 33')
    a('s_cbranch_scc1 %s_end' % name)
    a('s_load_dwordx2 s[8:9], s[0:1], 152')
    a('s_waitcnt lgkmcnt(0)')
    build_srd(a, 4, 8, WS_BYTES)
    a('s_lshl_b32 s3, s2, 14')
    a('s_add_u32 s3, s3, 0x%x' % H1_OFF)
    a('v_lshlrev_b32 v1, 4, v0')
    for i in range(4):
        a('v_mov_b32 v%d, -1' % (4 + i))
    for i in range(4):
        a('s_add_u32 s10, s3, %d' % (i * 4096))
        a('buffer_store_dwordx4 v[4:7], v1, s[4:7], s10 offen')
    a('%s_end:' % name)
    a('s_endpgm')

def gen_chain_kernel(a, name, **kw):
    kernel_header(a, name)
    gen_role(a, name)
    a('s_cmp_gt_u32 s%d, 31' % S_H)
    a('s_cbranch_scc1 %s_exit' % name)
    gen_chain_body(a, name, **kw)
    a('%s_exit:' % name)
    a('s_endpgm')

if __name__ == '__main__':
    import sys
    a = Asm()
    hdr = '''; @launch kernel=init_kernel grid=(33,1,1) block=(256,1,1) lds=0
; @launch kernel=chain_kernel grid=(256,1,1) block=(256,1,1) lds=163840
.amdgcn_target "amdgcn-amd-amdhsa--gfx950"
.text
'''
    gen_init(a, 'init_kernel')
    gen_chain_kernel(a, 'chain_kernel', dump=('dump' in sys.argv), stamps=('stamps' in sys.argv))
    txt = hdr + a.text() + '.section .rodata,"a"\n.p2align 6\n' + kernel_desc('init_kernel', 16, 16, 16) + '.p2align 6\n' + kernel_desc('chain_kernel')
    open(sys.argv[1], 'w').write(txt)
    print('nops inserted', a.nops_inserted, 'lines', len(a.out))
```

```python
import sys
from asmgen import Asm, vr
from layout import *
import gen_chain, gen_gemm, gen_attn, gen_ssm, gen_attn2
from gen_chain import kernel_desc, kernel_header, S_DBG, S_H, S_WV
from gen_all_hdr import header

L_TK = 163840 - 16
import os
NTAIL = int(os.environ.get('NTAIL', '14'))
NS1 = int(os.environ.get('NS1', '0'))
T_Q = 640; T_WOF = 960; T_SSM = 1088; T_MO = 1344; T_AT = T_MO + (64 - NTAIL) * 4; T_END = T_AT + NTAIL * 24
def gen_main(a, name, stamps=False):
    kernel_header(a, name)
    a('s_cmp_ge_u32 s2, 256')
    a('s_cbranch_scc1 %s_exit' % name)
    if stamps: a('s_memrealtime s[88:89]')
    gen_chain.gen_role(a, name, static=False)
    a('s_mov_b32 s101, 0')
    a('s_cmp_gt_u32 s%d, 31' % S_H)
    a('s_cbranch_scc1 %s_worker' % name)
    a('%s_chain:' % name)
    gen_chain.gen_chain_body(a, name, fused=True, stamps=stamps)
    a('s_cmp_eq_u32 s101, 0')
    a('s_cbranch_scc1 %s_exit' % name)
    a('s_barrier')
    a('s_mov_b32 s48, s%d' % S_WV)
    a('s_mov_b32 s96, 0')
    a('s_mov_b32 s97, 0')
    a('s_mov_b32 s87, 2')
    a('s_mov_b32 s86, 99')
    a('s_mov_b32 s99, 0')
    a('s_mov_b32 s101, 0')
    gen_gemm.load_ptrs(a)
    a('v_mbcnt_lo_u32_b32 v0, -1, 0')
    a('v_mbcnt_hi_u32_b32 v0, -1, v0')
    a('s_lshl_b32 s16, s48, 6')
    a('v_add_u32 v0, s16, v0')
    a('s_mov_b32 s49, s100')
    a('s_branch %s_nopf' % name)
    a('%s_worker:' % name)
    a('s_mov_b32 s48, s%d' % S_WV)
    a('s_mov_b32 s96, 0')
    a('s_mov_b32 s97, 0')
    a('s_mov_b32 s87, 0')
    def fetch():
        a('s_mov_b64 exec, 1')
        a('v_mov_b32 v253, 68')
        a('v_mov_b32 v254, 1')
        a('buffer_atomic_add v254, v253, s[%d:%d], 0 offen sc0' % (S_DBG, S_DBG + 3))
        a('s_mov_b64 exec, -1')
    a('s_cmp_lg_u32 s48, 0')
    a('s_cbranch_scc1 %s_nf0' % name)
    fetch()
    a('%s_nf0:' % name)
    gen_gemm.load_ptrs(a)
    a('%s_loop:' % name)
    a('v_mbcnt_lo_u32_b32 v0, -1, 0')
    a('v_mbcnt_hi_u32_b32 v0, -1, v0')
    a('s_lshl_b32 s16, s48, 6')
    a('v_add_u32 v0, s16, v0')
    a('v_mov_b32 v2, %d' % L_TK)
    a('s_cmp_lg_u32 s48, 0')
    a('s_cbranch_scc1 %s_tkw' % name)
    a('s_waitcnt vmcnt(0)')
    a('s_mov_b64 exec, 1')
    a('ds_write_b32 v2, v254')
    a('v_mov_b32 v4, 99')
    a('s_cmp_lg_u32 s87, 1')
    a('s_cbranch_scc1 %s_nocl' % name)
    a('v_mov_b32 v5, 64')
    a('v_mov_b32 v6, 0xff')
    a('v_mov_b32 v7, 0')
    a('buffer_atomic_cmpswap v[6:7], v5, s[%d:%d], 0 offen sc0' % (S_DBG, S_DBG + 3))
    a('s_waitcnt vmcnt(0)')
    a('v_readfirstlane_b32 s16, v6')
    a('s_cmp_eq_u32 s16, 0')
    a('s_cselect_b32 s16, 0xff, s16')
    a('s_cmp_lg_u32 s16, 0xff')
    a('s_cbranch_scc1 %s_nocl' % name)
    a('v_mov_b32 v4, 1')
    a('v_mov_b32 v5, 92')
    a('buffer_atomic_add v4, v5, s[%d:%d], 0 offen sc0' % (S_DBG, S_DBG + 3))
    a('s_waitcnt vmcnt(0)')
    a('%s_nocl:' % name)
    a('ds_write_b32 v2, v4 offset:4')
    a('s_waitcnt lgkmcnt(0)')
    a('s_mov_b64 exec, -1')
    a('%s_tkw:' % name)
    a('s_barrier')
    a('ds_read_b64 v[4:5], v2')
    a('s_waitcnt lgkmcnt(0)')
    a('v_readfirstlane_b32 s49, v4')
    a('v_readfirstlane_b32 s86, v5')
    a('s_barrier')
    a('s_add_u32 s87, s87, 1')
    a('s_cmp_ge_u32 s86, 32')
    a('s_cbranch_scc1 %s_nocl2' % name)
    a('s_mov_b32 s101, 1')
    a('s_cmp_ge_u32 s49, %d' % T_MO)
    a('s_cbranch_scc1 %s_tochain' % name)
    a('s_mov_b32 s101, 0')
    a('s_mov_b32 s99, 0')
    a('s_branch %s_nopf' % name)
    a('%s_nocl2:' % name)
    a('s_mov_b32 s99, 0')
    a('s_cmp_lg_u32 s48, 0')
    a('s_cbranch_scc1 %s_nopf' % name)
    a('s_cmp_ge_u32 s49, %d' % (T_SSM - 224))
    a('s_cbranch_scc1 %s_nopf' % name)
    a('s_cmp_lt_u32 s49, 256')
    a('s_cbranch_scc1 %s_nopf' % name)
    fetch()
    a('s_mov_b32 s99, 1')
    a('%s_nopf:' % name)
    a('s_cmp_ge_u32 s49, %d' % T_END)
    a('s_cbranch_scc1 %s_exit' % name)
    if stamps:
        a('s_memrealtime s[90:91]')
        a('s_lshl_b32 s98, s49, 4')
        a('s_add_u32 s98, s98, 0x%x' % (STAMP_OFF + 0x200000))
    a('s_mov_b32 s93, 1')
    if NS1:
        a('s_cmp_lt_u32 s49, 128')
        a('s_cbranch_scc1 %s_rmp' % name)
        a('s_cmp_ge_u32 s49, %d' % (T_SSM + NS1))
        a('s_cbranch_scc1 %s_rmp' % name)
        a('s_sub_u32 s16, s49, %d' % NS1)
        a('s_add_u32 s17, s49, %d' % (T_SSM - 128))
        a('s_cmp_lt_u32 s49, %d' % (128 + NS1))
        a('s_cselect_b32 s49, s17, s16')
        a('%s_rmp:' % name)
    a('s_cmp_ge_u32 s49, %d' % T_AT)
    a('s_cbranch_scc1 %s_t_attn' % name)
    a('s_cmp_ge_u32 s49, %d' % T_MO)
    a('s_cbranch_scc1 %s_t_mono' % name)
    a('s_cmp_ge_u32 s49, %d' % T_SSM)
    a('s_cbranch_scc1 %s_t_ssm' % name)
    a('s_cmp_ge_u32 s49, %d' % T_WOF)
    a('s_cbranch_scc1 %s_t_wof' % name)
    a('s_cmp_ge_u32 s49, %d' % T_Q)
    a('s_cbranch_scc1 %s_t_q' % name)
    a('s_lshr_b32 s16, s49, 6')
    a('s_bfe_u32 s12, s49, 0x10005')
    a('s_and_b32 s13, s49, 31')
    a('s_add_u32 s92, s16, 24')
    a('s_branch %s_t_g' % name)
    a('%s_t_q:' % name)
    a('s_sub_u32 s17, s49, %d' % T_Q)
    a('s_lshr_b32 s16, s17, 5')
    a('s_and_b32 s13, s17, 31')
    a('s_mov_b32 s12, 2')
    a('s_add_u32 s92, s16, 34')
    a('%s_t_g:' % name)
    a('s_lshl_b32 s14, s16, 2')
    a('s_sub_u32 s14, s14, 8')
    a('s_mov_b32 s33, 4')
    a('s_cmp_lt_u32 s16, 3')
    a('s_cselect_b32 s14, s16, s14')
    a('s_cselect_b32 s33, 2, s33')
    a('s_cmp_lt_u32 s16, 2')
    a('s_cselect_b32 s33, 1, s33')
    gen_gemm.gen_gemm_task(a, name + '_g', None, sc1=True)
    a('s_branch %s_sig' % name)
    a('%s_t_wof:' % name)
    a('s_sub_u32 s49, s49, %d' % T_WOF)
    a('s_mov_b32 s92, 18')
    gen_attn.gen_wof_task(a, name + '_w', 49, sc1=True)
    a('s_branch %s_sig' % name)
    a('%s_t_ssm:' % name)
    a('s_sub_u32 s49, s49, %d' % T_SSM)
    a('s_mov_b32 s92, 19')
    gen_ssm.gen_ssm_task(a, name + '_s', 49, sc1=True)
    a('s_branch %s_sig' % name)
    a('%s_t_mono:' % name)
    a('s_sub_u32 s49, s49, %d' % T_MO)
    a('s_lshr_b32 s16, s49, 2')
    gen_attn2.seg_block(a, 18, 16)
    gen_attn2.static_poll(a, name + '_md0', s_blk=18)
    gen_attn2.prog_poll(a, name + '_md1', 16)
    a('s_mov_b32 s92, 51')
    gen_attn.gen_attn_task(a, name + '_m', 49, sc1=False)
    a('s_branch %s_sig' % name)
    a('%s_t_attn:' % name)
    a('s_sub_u32 s49, s49, %d' % T_AT)
    a('s_mul_hi_u32 s12, s49, 0x%x' % ((1 << 32) // 24 + 1))
    a('s_mul_i32 s16, s12, 24')
    a('s_sub_u32 s13, s49, s16')
    a('s_add_u32 s12, s12, %d' % (64 - NTAIL))
    a('s_cmp_ge_u32 s13, 8')
    a('s_cbranch_scc1 %s_t_b' % name)
    a('s_lshl_b32 s92, s12, 7')
    a('s_add_u32 s92, s92, 0x%x' % (FLG_OFF + 4096))
    gen_attn2.gen_attnA(a, name + '_a', 12, 13, 48)
    a('s_branch %s_sig' % name)
    a('%s_t_b:' % name)
    a('s_sub_u32 s13, s13, 8')
    a('s_mov_b32 s92, 50')
    gen_attn2.gen_attnB(a, name + '_b', 12, 13, 48)
    a('%s_sig:' % name)
    a('s_waitcnt vmcnt(0)')
    a('s_barrier')
    a('s_cmp_lg_u32 s48, 0')
    a('s_cbranch_scc1 %s_next' % name)
    a('s_mov_b64 exec, 1')
    a('v_mov_b32 v3, 1')
    a('s_cmp_ge_u32 s92, 64')
    a('s_cbranch_scc1 %s_sigws' % name)
    a('s_lshl_b32 s92, s92, 2')
    a('v_mov_b32 v2, s92')
    a('buffer_atomic_add v3, v2, s[%d:%d], 0 offen' % (S_DBG, S_DBG + 3))
    a('s_branch %s_sige' % name)
    a('%s_sigws:' % name)
    a('v_mov_b32 v2, s92')
    a('buffer_atomic_add v3, v2, s[4:7], 0 offen')
    a('%s_sige:' % name)
    if stamps:
        a('s_memrealtime s[94:95]')
        a('s_waitcnt lgkmcnt(0)')
        a('v_mov_b32 v4, s90')
        a('v_mov_b32 v5, s94')
        a('v_mov_b32 v6, s88')
        a('v_mov_b32 v7, s2')
        a('v_mov_b32 v2, 0')
        a('buffer_store_dwordx4 v[4:7], v2, s[4:7], s98 offen')
    a('s_mov_b64 exec, -1')
    a('s_cmp_lt_u32 s86, 32')
    a('s_cbranch_scc1 %s_tochain' % name)
    a('s_cmp_eq_u32 s99, 1')
    a('s_cbranch_scc1 %s_loop' % name)
    fetch()
    a('s_branch %s_loop' % name)
    a('%s_next:' % name)
    a('s_cmp_ge_u32 s86, 32')
    a('s_cbranch_scc1 %s_loop' % name)
    a('%s_tochain:' % name)
    a('s_mov_b32 s100, s49')
    a('v_mbcnt_lo_u32_b32 v0, -1, 0')
    a('v_mbcnt_hi_u32_b32 v0, -1, v0')
    a('v_mov_b32 %s, v0' % vr(gen_chain.V_LANE))
    a('s_lshl_b32 s16, s48, 6')
    a('v_add_u32 v0, s16, v0')
    a('s_mov_b32 s%d, s48' % S_WV)
    a('s_mov_b32 s%d, s86' % S_H)
    a('s_mov_b32 s%d, 1' % gen_chain.S_OFFX)
    a('s_branch %s_chain' % name)
    a('%s_exit:' % name)
    a('s_endpgm')

if __name__ == '__main__':
    a = Asm()
    hdr = header() + '''; @launch kernel=main_kernel grid=(256,1,1) block=(256,1,1) lds=163840
.amdgcn_target "amdgcn-amd-amdhsa--gfx950"
.text
'''
    gen_main(a, 'main_kernel', stamps=('stamps' in sys.argv))
    txt = hdr + a.text() + '.section .rodata,"a"\n.p2align 6\n' + kernel_desc('main_kernel', 512, 102, 256)
    open(sys.argv[1], 'w').write(txt)
    print('lines', len(a.out), 'bytes', len(txt))
```

```python
from asmgen import Asm, vr, ar, sr
from layout import *

import os
L_WV = 32768
L_KX = 0
L_EX = L_KX + 16384
L_QK = L_EX + 8192
L_O = L_QK + 4096
L_MISC = L_O + 2048
LDS_BYTES = 163840
L_STG = 0

AF = 0
ACC = 32
WVS = 56
VX = 88
V_IDX = 104
V_T0 = 105
V_ONES = 106
V_HONES = 110
V_SEL = 112
V_L16 = 116
V_WVA = 117
V_QKW = 118
V_FTR = 119
V_OW = 120
V_OTR = 121
V_H1ST = 122
V_H1LD = 123
V_H2LD = 124
V_H2ST = 125
V_BIAS = 126
V_T1 = 127
V_FLA = 111
L_FLG = L_MISC + 16
V_LANE = 7
WV1 = 128
WO = 192

S_WS = 4
S_W = 8
S_H = 12
S_WV = 13
S_STEP = 14
S_T = 15
S_H1ST = 20
S_H1LD = 28
S_H2 = 32
S_KXP = 34
S_VXP = 35
S_KM = 36
S_VM = 37
S_ONELO = 38
S_ONEHI = 39
S_STMASK = 40
S_C = 42
S_CNT = 43
S_DBG = 44
S_HI32 = 48
S_PTR = 50
S_DUMP = 66
S_M0A = 67
S_M0B = 68
S_TS = 70
S_KMX = 72
S_FLG = 74
S_NB = 75
S_NBW = 69
S_TAGM = 71
S_MODE = 93
S_OFFX = 92
CHX = int(os.environ.get('CHX', '0'))

import os
PK = int(os.environ.get('PK', '1')); PGAP = int(os.environ.get('PGAP', '1')); PMASK = int(os.environ.get('PMASK', '1'))
LFLAG = int(os.environ.get('LFLAG', '0'))
LATERST = int(os.environ.get('LATERST', '3'))
ILV = int(os.environ.get('ILV', '1'))
PD1 = int(os.environ.get('PD1', '0')); PD2 = int(os.environ.get('PD2', '0'))
SCALE_LOG2E = 0.08838834764831845 * 1.4426950408889634

def f32bits(x):
    import struct
    return struct.unpack('<I', struct.pack('<f', x))[0]

def build_srd(a, d, ptr_lo, nbytes):
    a('s_mov_b32 s%d, s%d' % (d, ptr_lo))
    a('s_and_b32 s%d, s%d, 0xffff' % (d + 1, ptr_lo + 1))
    a('s_mov_b32 s%d, 0x%x' % (d + 2, nbytes))
    a('s_mov_b32 s%d, 0x00020000' % (d + 3))

def gen_role(a, name, static=False):
    a('s_load_dwordx2 s[%d:%d], s[0:1], 144' % (S_T + 1, S_T + 2))
    a('s_getreg_b32 s%d, hwreg(HW_REG_XCC_ID)' % S_T)
    a('s_and_b32 s%d, s%d, 15' % (S_T, S_T))
    a('v_lshrrev_b32 v1, 6, v0')
    a('v_readfirstlane_b32 s%d, v1' % S_WV)
    a('v_and_b32 %s, 63, v0' % vr(V_LANE))
    a('s_waitcnt lgkmcnt(0)')
    build_srd(a, S_DBG, S_T + 1, 256)
    a('s_mov_b32 s%d, 0' % S_OFFX)
    a('s_cmp_lg_u32 s%d, 0' % S_WV)
    a('s_cbranch_scc1 %s_role_wait' % name)
    a('s_mov_b64 exec, 1')
    if static:
        a('s_add_u32 s%d, s%d, %d' % (S_T + 4, S_T, 1 + CHX))
        a('v_mov_b32 v4, s%d' % (S_T + 4))
        a('v_mov_b32 v5, 0')
        a('v_mov_b32 v2, 64')
        a('buffer_atomic_cmpswap v[4:5], v2, s[%d:%d], 0 offen sc0' % (S_DBG, S_DBG + 3))
        a('s_waitcnt vmcnt(0)')
        a('v_readfirstlane_b32 s%d, v4' % (S_T + 3))
        a('s_cmp_eq_u32 s%d, 0' % (S_T + 3))
        a('s_cselect_b32 s%d, s%d, s%d' % (S_T + 3, S_T + 4, S_T + 3))
        a('s_sub_u32 s%d, s%d, 1' % (S_T + 3, S_T + 3))
        a('s_mov_b32 s%d, 99' % S_H)
        a('s_cmp_lg_u32 s%d, s%d' % (S_T + 3, S_T))
        a('s_cbranch_scc1 %s_role_pub' % name)
        a('s_mov_b32 s%d, 0' % S_T)
    a('s_lshl_b32 s%d, s%d, 2' % (S_T + 3, S_T))
    a('v_mov_b32 v2, s%d' % (S_T + 3))
    a('v_mov_b32 v3, 1')
    a('buffer_atomic_add v3, v2, s[%d:%d], 0 offen sc0' % (S_DBG, S_DBG + 3))
    a('s_waitcnt vmcnt(0)')
    a('v_readfirstlane_b32 s%d, v3' % (S_T + 3))
    a('s_mov_b32 s%d, 99' % S_H)
    a('s_cmp_gt_u32 s%d, 31' % (S_T + 3))
    a('s_cbranch_scc1 %s_role_pub' % name)
    if not static:
        a('s_cmp_lg_u32 s%d, %d' % (S_T + 3, 31 if CHX == 0 else 40))
        a('s_cbranch_scc1 %s_role_poll' % name)
        a('s_add_u32 s%d, s%d, 1' % (S_T + 4, S_T))
        a('v_mov_b32 v4, s%d' % (S_T + 4))
        a('v_mov_b32 v5, 0')
        a('v_mov_b32 v2, 64')
        a('buffer_atomic_cmpswap v[4:5], v2, s[%d:%d], 0 offen' % (S_DBG, S_DBG + 3))
        a('s_waitcnt vmcnt(0)')
        a('%s_role_poll:' % name)
        a('s_mov_b32 s%d, 24' % S_CNT)
        a('v_mov_b32 v2, 64')
        a('%s_role_poll_loop:' % name)
        a('buffer_load_dword v4, v2, s[%d:%d], 0 offen sc1' % (S_DBG, S_DBG + 3))
        a('s_waitcnt vmcnt(0)')
        a('v_readfirstlane_b32 s%d, v4' % (S_T + 4))
        a('s_cmp_lg_u32 s%d, 0' % (S_T + 4))
        a('s_cbranch_scc1 %s_role_got' % name)
        a('s_sub_u32 s%d, s%d, 1' % (S_CNT, S_CNT))
        a('s_cbranch_scc0 %s_role_poll_loop' % name)
        a('v_mov_b32 v4, 0xff')
        a('v_mov_b32 v5, 0')
        a('buffer_atomic_cmpswap v[4:5], v2, s[%d:%d], 0 offen sc0' % (S_DBG, S_DBG + 3))
        a('s_waitcnt vmcnt(0)')
        a('v_readfirstlane_b32 s%d, v4' % (S_T + 4))
        a('%s_role_got:' % name)
        a('s_sub_u32 s%d, s%d, 1' % (S_T + 4, S_T + 4))
        a('s_cmp_lg_u32 s%d, s%d' % (S_T + 4, S_T))
        a('s_cbranch_scc1 %s_role_pub' % name)
    a('s_mov_b32 s%d, s%d' % (S_H, S_T + 3))
    a('%s_role_pub:' % name)
    a('v_mov_b32 v2, %d' % L_MISC)
    a('v_mov_b32 v3, s%d' % S_H)
    a('ds_write_b32 v2, v3')
    a('s_waitcnt lgkmcnt(0)')
    a('s_mov_b64 exec, -1')
    a('%s_role_wait:' % name)
    a('s_barrier')
    a('v_mov_b32 v2, %d' % L_MISC)
    a('ds_read_b32 v3, v2')
    a('s_waitcnt lgkmcnt(0)')
    a('v_readfirstlane_b32 s%d, v3' % S_H)
    a('s_barrier')
    a('%s_role_end:' % name)

def gen_chain_body(a, name, nsteps=64, dump=False, stamps=False, fused=False):
    SC = ' sc1' if fused else ''
    lane = vr(V_LANE)
    if stamps: a('s_memrealtime s[94:95]')
    a('s_load_dwordx16 s[%d:%d], s[0:1], 0' % (S_PTR + 2, S_PTR + 17))
    a('s_load_dwordx2 s[%d:%d], s[0:1], 152' % (S_PTR, S_PTR + 1))
    a('s_waitcnt lgkmcnt(0)')
    P = lambda i: S_PTR + 2 + 2 * i
    build_srd(a, S_WS, S_PTR, WS_BYTES)
    a('v_and_b32 v1, 15, %s' % lane)
    a('v_lshrrev_b32 v2, 4, %s' % lane)
    a('v_lshlrev_b32 %s, 4, %s' % (vr(V_L16), lane))
    a('v_and_b32 v3, 2, v1')
    a('v_cmp_eq_u32 vcc, 0, v3')
    a('v_mov_b32 v3, 0xeeee')
    a('v_mov_b32 v4, 0x4444')
    a('v_cndmask_b32 %s, v3, v4, vcc' % vr(V_IDX))
    for i in range(4):
        a('v_mov_b32 %s, 0x3f803f80' % vr(V_ONES + i))
    a('v_cmp_gt_u32 vcc, 32, %s' % lane)
    a('v_mov_b32 v3, 0xff800000')
    a('v_mov_b32 v4, 0')
    a('v_cndmask_b32 %s, v3, v4, vcc' % vr(V_BIAS))
    a('s_lshl_b32 s%d, s%d, 15' % (S_T, S_WV))
    a('s_add_u32 s%d, s%d, %d' % (S_T, S_T, L_WV))
    a('v_add_u32 %s, s%d, %s' % (vr(V_WVA), S_T, vr(V_L16)))
    a('s_lshl_b32 s%d, s%d, 10' % (S_T, S_WV))
    a('s_add_u32 s%d, s%d, %d' % (S_T, S_T, L_QK))
    a('v_lshlrev_b32 v3, 5, v1')
    a('v_lshl_add_u32 v3, v2, 3, v3')
    a('v_add_u32 %s, s%d, v3' % (vr(V_QKW), S_T))
    a('v_lshrrev_b32 v5, 2, v1')
    a('v_and_b32 v6, 3, v1')
    a('v_lshl_add_u32 v3, v2, 2, v5')
    a('v_lshlrev_b32 v3, 5, v3')
    a('v_lshl_add_u32 v3, v6, 3, v3')
    a('v_add_u32 %s, %d, v3' % (vr(V_FTR), L_QK))
    a('v_lshl_add_u32 v3, v2, 3, v5')
    a('v_lshlrev_b32 v3, 5, v3')
    a('v_lshl_add_u32 v3, v6, 3, v3')
    a('v_add_u32 %s, %d, v3' % (vr(V_OTR), L_O))
    a('v_and_b32 v3, 1, v1')
    a('v_lshl_add_u32 v3, v5, 1, v3')
    a('v_lshlrev_b32 v3, 5, v3')
    a('v_bfe_u32 v4, v1, 1, 1')
    a('v_lshl_add_u32 v3, v4, 2, v3')
    a('v_lshl_add_u32 v3, v2, 3, v3')
    a('s_lshl_b32 s%d, s%d, 9' % (S_T, S_WV))
    a('s_add_u32 s%d, s%d, %d' % (S_T, S_T, L_O))
    a('v_add_u32 %s, s%d, v3' % (vr(V_OW), S_T))
    a('v_lshrrev_b32 v3, 5, %s' % lane)
    a('v_lshlrev_b32 v3, 13, v3')
    a('v_and_b32 v4, 1, v2')
    a('v_lshl_add_u32 v3, v4, 7, v3')
    a('v_lshl_add_u32 v3, v1, 3, v3')
    a('s_lshl_b32 s%d, s%d, 14' % (S_T, S_WV))
    a('s_lshl_b32 s%d, s%d, 8' % (S_T + 1, S_H))
    a('s_add_u32 s%d, s%d, s%d' % (S_T, S_T, S_T + 1))
    a('v_add_u32 %s, s%d, v3' % (vr(V_H1ST), S_T))
    a('v_lshrrev_b32 v3, 2, %s' % lane)
    a('v_lshlrev_b32 v3, 8, v3')
    a('v_lshl_add_u32 v3, v6, 4, v3')
    a('s_lshl_b32 s%d, s%d, 13' % (S_T, S_H))
    a('s_lshl_b32 s%d, s%d, 6' % (S_T + 1, S_WV))
    a('s_add_u32 s%d, s%d, s%d' % (S_T, S_T, S_T + 1))
    a('v_add_u32 %s, s%d, v3' % (vr(V_H1LD), S_T))
    a('s_lshl_b32 s%d, s%d, 11' % (S_T, S_WV))
    a('v_add_u32 %s, s%d, %s' % (vr(V_H2LD), S_T, vr(V_L16)))
    a('v_lshlrev_b32 v3, 8, v2')
    a('v_and_b32 v4, 1, %s' % lane)
    a('v_lshl_add_u32 v3, v4, 5, v3')
    a('v_bfe_u32 v4, %s, 1, 1' % lane)
    a('v_lshl_add_u32 v3, v4, 2, v3')
    a('s_lshr_b32 s%d, s%d, 1' % (S_T, S_H))
    a('s_lshl_b32 s%d, s%d, 9' % (S_T, S_T))
    a('s_and_b32 s%d, s%d, 1' % (S_T + 1, S_H))
    a('s_lshl_b32 s%d, s%d, 7' % (S_T + 1, S_T + 1))
    a('s_add_u32 s%d, s%d, s%d' % (S_T, S_T, S_T + 1))
    a('s_lshr_b32 s%d, s%d, 1' % (S_T + 1, S_WV))
    a('s_lshl_b32 s%d, s%d, 6' % (S_T + 1, S_T + 1))
    a('s_add_u32 s%d, s%d, s%d' % (S_T, S_T, S_T + 1))
    a('s_and_b32 s%d, s%d, 1' % (S_T + 1, S_WV))
    a('s_lshl_b32 s%d, s%d, 3' % (S_T + 1, S_T + 1))
    a('s_add_u32 s%d, s%d, s%d' % (S_T, S_T, S_T + 1))
    a('v_add_u32 %s, s%d, v3' % (vr(V_H2ST), S_T))
    a('v_mov_b32 %s, 0x3f803f80' % vr(V_HONES))
    a('v_mov_b32 %s, 0' % vr(V_HONES + 1))
    a('v_and_b32 v3, 1, v1')
    a('v_lshlrev_b32 v3, 2, v3')
    a('v_lshl_add_u32 v3, v5, 1, v3')
    a('v_bfe_u32 v4, v1, 1, 1')
    a('v_add_u32 v3, v3, v4')
    a('v_cmp_gt_u32 vcc, 8, v1')
    a('v_mov_b32 v4, 99')
    a('v_cndmask_b32 v3, v4, v3, vcc')
    a('v_mov_b32 v8, 0x3f80')
    a('v_mov_b32 v9, 0x3f800000')
    a('v_mov_b32 v10, 0')
    for k in range(4):
        a('v_cmp_eq_u32 vcc, %d, v3' % (2 * k))
        a('v_cndmask_b32 v4, v10, v8, vcc')
        a('v_cmp_eq_u32 vcc, %d, v3' % (2 * k + 1))
        a('v_cndmask_b32 %s, v4, v9, vcc' % vr(V_SEL + k))
    a('s_mov_b32 s%d, 0' % (S_KMX + 1))
    a('s_cmp_eq_u32 s%d, 0' % S_H)
    a('s_cselect_b32 s%d, -1, 1' % S_KMX)
    a('s_lshl_b32 s%d, s%d, 7' % (S_T, S_H))
    a('s_add_u32 s%d, s%d, 0x%x' % (S_T, S_T, FLG_OFF + 16384))
    a('s_cmp_eq_u32 s%d, 0' % S_H)
    a('s_cselect_b32 s%d, 0x%x, s%d' % (S_FLG, FLG_OFF, S_T))
    for par in range(2):
        for u in range(4):
            a('s_mov_b32 s%d, 0x%x' % (S_H1ST + par * 4 + u, H1_OFF + par * 262144 + u * 65536))
        for it in range(2):
            a('s_mov_b32 s%d, 0x%x' % (S_H1LD + par * 2 + it, H1_OFF + par * 262144 + it * 4096))
        a('s_mov_b32 s%d, 0x%x' % (S_H2 + par, H2_OFF + par * 8192))
    a('s_mov_b32 s%d, 0x00003f80' % S_ONELO)
    a('s_mov_b32 s%d, 0x3f800000' % S_ONEHI)
    a('s_mov_b32 s%d, 0x000f000f' % S_STMASK)
    a('s_mov_b32 s%d, 0' % (S_STMASK + 1))
    a('s_mov_b32 s%d, 0x%x' % (S_C, f32bits(SCALE_LOG2E)))
    a('s_mov_b32 s%d, 0' % S_HI32)
    a('s_mov_b32 s%d, -1' % (S_HI32 + 1))
    if fused:
        a('v_mov_b64 v[8:9], -1')
        a('v_mov_b64 v[10:11], -1')
        for par in range(2):
            for it in range(2):
                a('buffer_store_dwordx4 v[8:11], %s, s[%d:%d], s%d offen sc1' % (vr(V_H1LD), S_WS, S_WS + 3, S_H1LD + par * 2 + it))
        a('s_mov_b64 exec, s[%d:%d]' % (S_STMASK, S_STMASK + 1))
        for par in range(2):
            a('buffer_store_dword v8, %s, s[%d:%d], s%d offen sc1' % (vr(V_H2ST), S_WS, S_WS + 3, S_H2 + par))
            a('buffer_store_dword v8, %s, s[%d:%d], s%d offen offset:16 sc1' % (vr(V_H2ST), S_WS, S_WS + 3, S_H2 + par))
        a('s_mov_b64 exec, 7')
        a('s_lshl_b32 s%d, s%d, 7' % (S_T, S_H))
        a('s_add_u32 s%d, s%d, 0x%x' % (S_T, S_T, FLG_OFF))
        a('v_mov_b32 v9, s%d' % S_T)
        a('s_lshl_b32 s%d, s%d, 8' % (S_T, S_H))
        a('s_add_u32 s%d, s%d, 0x%x' % (S_T, S_T, FLG_OFF + 4096 - 128))
        a('v_lshlrev_b32 v10, 7, %s' % lane)
        a('v_add_u32 v10, s%d, v10' % S_T)
        a('v_cmp_eq_u32 vcc, 0, %s' % lane)
        a('v_cndmask_b32 v9, v10, v9, vcc')
        a('v_mov_b32 v8, 0')
        a('buffer_store_dword v8, v9, s[%d:%d], 0 offen sc1' % (S_WS, S_WS + 3))
        a('s_mov_b64 exec, 1')
        a('v_mov_b32 v10, 88')
        a('v_mov_b32 v11, s%d' % S_OFFX)
        a('buffer_atomic_add v11, v10, s[%d:%d], 0 offen' % (S_DBG, S_DBG + 3))
        a('s_mov_b64 exec, -1')
        a('s_nop 1')
    a('v_and_b32 v60, 15, v0')
    a('v_lshrrev_b32 v61, 4, v0')
    a('v_lshlrev_b32 v62, 4, v60')
    a('v_lshl_add_u32 v63, v61, 13, v62')
    a('s_lshl_b32 s%d, s%d, 8' % (S_T, S_H))
    a('v_add_u32 v63, s%d, v63' % S_T)
    a('v_lshl_add_u32 v64, v61, 10, v62')
    a('s_lshl_b32 s%d, s%d, 17' % (S_T, S_H))
    a('v_add_u32 v64, s%d, v64' % S_T)
    a('v_lshl_add_u32 v65, v61, 8, v62')
    a('v_add_u32 v65, %d, v65' % L_STG)
    a('v_lshl_add_u32 v3, v2, 3, v5')
    a('v_lshlrev_b32 v3, 8, v3')
    a('v_lshl_add_u32 v3, v6, 3, v3')
    a('s_lshl_b32 s%d, s%d, 6' % (S_T, S_WV))
    a('s_add_u32 s%d, s%d, %d' % (S_T, S_T, L_STG))
    a('v_add_u32 v66, s%d, v3' % S_T)
    a('s_lshl_b32 s%d, s%d, 5' % (S_T, S_WV))
    a('s_add_u32 s%d, s%d, %d' % (S_T, S_T, L_STG))
    a('v_add_u32 v67, s%d, v3' % S_T)
    for i, m in enumerate((2, 3, 4, 5)):
        build_srd(a, 76 + 4 * i, P(m), 4194304)
    build_srd(a, S_W, P(1), 8192)
    chunks = []
    for m in range(3):
        for t in range(8):
            chunks.append((m, t, 0))
    for t2 in range(2):
        for cb in range(4):
            chunks.append((3, t2, cb))
    SETS = [(8, 31), (24, 31), (40, 31), (88, 31), (128, 15), (144, 15), (160, 15), (176, 15), (192, 23), (208, 23), (224, 23), (240, 23)]
    DEPTH = int(os.environ.get('WDEPTH', '8'))
    set_of = {}; busy = {}
    issue_at = {}
    for c in range(32):
        it = max(0, c - DEPTH)
        while True:
            cand = [b for (b, lim) in SETS if lim >= c and busy.get(b, -1) < it]
            if it == 0:
                cand = [b for (b, lim) in SETS if lim >= c and b not in busy]
            if cand: break
            it += 1
            assert it <= c, c
        it = max([it] + [issue_at[k] for k in issue_at])
        set_of[c] = cand[0]; busy[cand[0]] = c; issue_at[c] = it
    def issue_loads(ci):
        m, t, cb = chunks[ci]
        base = set_of[ci]
        for i in range(4):
            if m < 3:
                off = (64 * t + 16 * i) * 8192
                a('s_mov_b32 s%d, 0x%x' % (S_T, off))
                a('buffer_load_dwordx4 %s, v63, s[%d:%d], s%d offen' % (vr(base + 4 * i, 4), 76 + 4 * m, 79 + 4 * m, S_T))
            else:
                off = (64 * t + 16 * i) * 1024 + cb * 256
                a('s_mov_b32 s%d, 0x%x' % (S_T, off))
                a('buffer_load_dwordx4 %s, v64, s[88:91], s%d offen' % (vr(base + 4 * i, 4), S_T))
    def early_sig():
        a('s_cmp_lg_u32 s%d, 0' % S_WV)
        a('s_cbranch_scc1 %s_noini' % name)
        a('s_mov_b64 exec, 1')
        a('v_mov_b32 v84, 80')
        a('v_mov_b32 v85, 1')
        a('buffer_atomic_add v85, v84, s[%d:%d], 0 offen' % (S_DBG, S_DBG + 3))
        a('s_mov_b64 exec, -1')
        a('%s_noini:' % name)
    issued = [0]
    for ci, (m, t, cb) in enumerate(chunks):
        while issued[0] < 32 and issue_at[issued[0]] <= ci:
            issue_loads(issued[0]); issued[0] += 1
        a('s_waitcnt vmcnt(%d)' % (4 * (issued[0] - ci - 1)))
        base = set_of[ci]
        sb = (ci % 2) * 16384
        for i in range(4):
            a('ds_write_b128 v65, %s offset:%d' % (vr(base + 4 * i, 4), sb + i * 4096))
        a('s_waitcnt lgkmcnt(0)')
        a('s_barrier')
        if fused and ci == 1:
            early_sig()
        for u in range(2):
            if m == 0:
                dst = lambda k: ar((u * 8 + t) * 8 + k, 2)
                colo = 32 * u; addr = 'v66'
            elif m < 3:
                if u == 0:
                    dst = lambda k: ar(64 + 64 * m + t * 8 + k, 2)
                elif m == 1:
                    dst = lambda k: vr(68 + k, 2)
                else:
                    dst = lambda k: vr(WV1 + t * 8 + k, 2)
                colo = 32 * u; addr = 'v66'
            else:
                if cb < 2:
                    dst = lambda k: vr(WO + ((2 * cb + u) * 2 + t) * 8 + k, 2)
                else:
                    dst = lambda k: vr(68 + 8 * u + k, 2)
                colo = 32 * u; addr = 'v66'
            for k, ro in enumerate((0, 4, 32, 36)):
                a('ds_read_b64_tr_b16 %s, %s offset:%d' % (dst(2 * k), addr, sb + ro * 256 + colo))
        if m == 1:
            a('s_waitcnt lgkmcnt(0)')
            for hh in range(2):
                a('ds_write_b128 %s, %s offset:%d' % (vr(V_WVA), vr(68 + 4 * hh, 4), t * 2048 + hh * 1024))
        if m == 3 and cb >= 2:
            a('s_waitcnt lgkmcnt(0)')
            for u in range(2):
                for hh in range(2):
                    a('ds_write_b128 %s, %s offset:%d' % (vr(V_WVA), vr(68 + 8 * u + 4 * hh, 4), (8 + ((2 * (cb - 2) + u) * 2 + t)) * 2048 + hh * 1024))
    a('s_waitcnt lgkmcnt(0)')
    a('s_barrier')
    if stamps:
        a('s_memrealtime s[96:97]')
        a('s_waitcnt lgkmcnt(0)')
        a('v_mov_b32 v3, s96')
        a('s_lshl_b32 s%d, s%d, 2' % (S_T, S_H))
        a('s_add_u32 s%d, s%d, s%d' % (S_T, S_T, S_WV))
        a('s_lshl_b32 s%d, s%d, 2' % (S_T, S_T))
        a('s_add_u32 s%d, s%d, 0x%x' % (S_T, S_T, STAMP_OFF + 0x100000))
        a('v_mov_b32 v4, 0')
        a('s_mov_b64 exec, 1')
        a('buffer_store_dword v3, v4, s[%d:%d], s%d offen' % (S_WS, S_WS + 3, S_T))
        a('s_mov_b64 exec, -1')
    a('v_mov_b32 v3, -1')
    for q in range(4):
        a('ds_write_b32 %s, v3 offset:%d' % (vr(V_FLA), L_FLG + 4 * q))
    a('s_waitcnt lgkmcnt(0)')
    a('s_barrier')
    a('s_lshl_b32 s%d, s%d, 13' % (S_KXP, S_H))
    a('s_add_u32 s%d, s%d, 0x%x' % (S_VXP, S_KXP, VX_OFF))
    a('s_lshl_b32 s%d, s%d, 12' % (S_KM, S_H))
    a('s_lshl_b32 s%d, s%d, 10' % (S_T, S_WV))
    a('s_add_u32 s%d, s%d, s%d' % (S_VM, S_KM, S_T))
    a('s_add_u32 s%d, s%d, 0x%x' % (S_VM, S_VM, VM_OFF))
    a('s_add_u32 s%d, s%d, 0x%x' % (S_KM, S_KM, KM_OFF))
    a('s_lshl_b32 s%d, s%d, 11' % (S_T, S_WV))
    a('s_add_u32 s%d, s%d, %d' % (S_M0A, S_T, L_KX))
    a('s_add_u32 s%d, s%d, %d' % (S_M0B, S_T, L_KX + 8192))
    a('s_mov_b32 s%d, 0x%x' % (S_DUMP, DBG_OFF))
    a('s_mov_b32 s%d, 0' % S_STEP)
    def prefetch_ops(par):
        return [
        's_mov_b32 m0, s%d' % (S_M0A if par == 0 else S_M0B),
        's_add_u32 s%d, s%d, 0x40000' % (S_T + 2, S_KXP),
        'buffer_load_dwordx4 %s, s[%d:%d], s%d offen%s lds' % (vr(V_H2LD), S_WS, S_WS + 3, S_KXP, SC),
        'buffer_load_dwordx4 %s, s[%d:%d], s%d offen offset:1024%s lds' % (vr(V_H2LD), S_WS, S_WS + 3, S_KXP, SC),
        'buffer_load_dwordx4 %s, %s, s[%d:%d], s%d offen%s' % (vr(VX + par * 8, 4), vr(V_H2LD), S_WS, S_WS + 3, S_VXP, SC),
        'buffer_load_dwordx4 %s, %s, s[%d:%d], s%d offen offset:1024%s' % (vr(VX + par * 8 + 4, 4), vr(V_H2LD), S_WS, S_WS + 3, S_VXP, SC),
        's_mov_b32 s%d, s%d' % (S_KXP, S_T + 2),
        's_add_u32 s%d, s%d, 0x40000' % (S_VXP, S_VXP)]
    def prefetch(par):
        for o in prefetch_ops(par): a(o)
    def rstamp(k):
        a('s_memrealtime s[96:97]')
        a('s_waitcnt lgkmcnt(0)')
        a('v_mov_b32 %s, s96' % vr(V_T0))
        a('s_lshl_b32 s%d, s%d, 2' % (S_T, S_H))
        a('s_add_u32 s%d, s%d, s%d' % (S_T, S_T, S_WV))
        a('s_lshl_b32 s%d, s%d, 2' % (S_T, S_T))
        a('s_add_u32 s%d, s%d, 0x%x' % (S_T, S_T, STAMP_OFF + 0x100000 + 0x1000 * k))
        a('v_mov_b32 %s, 0' % vr(V_T1))
        a('s_mov_b64 exec, 1')
        a('buffer_store_dword %s, %s, s[%d:%d], s%d offen' % (vr(V_T0), vr(V_T1), S_WS, S_WS + 3, S_T))
        a('s_mov_b64 exec, -1')
    def dbg_wait(tag, word, target):
        a('s_mov_b32 s%d, 0x200000' % S_CNT)
        a('v_mov_b32 %s, %s' % (vr(V_T1), word))
        a('%s_%s:' % (name, tag))
        a('buffer_load_dword %s, %s, s[%d:%d], 0 offen sc1' % (vr(V_BIAS), vr(V_T1), S_DBG, S_DBG + 3))
        a('s_waitcnt vmcnt(0)')
        a('v_readfirstlane_b32 s%d, %s' % (S_T + 3, vr(V_BIAS)))
        a('s_cmp_ge_u32 s%d, %d' % (S_T + 3, target))
        a('s_cbranch_scc1 %s_%s_ok' % (name, tag))
        a('s_sleep 2')
        a('s_sub_u32 s%d, s%d, 1' % (S_CNT, S_CNT))
        a('s_cbranch_scc0 %s_%s' % (name, tag))
        a('%s_%s_ok:' % (name, tag))
    def dbg_add(word):
        a('s_mov_b64 exec, 1')
        a('v_mov_b32 %s, %d' % (vr(V_T1), word * 4))
        a('v_mov_b32 %s, 1' % vr(V_T0))
        a('buffer_atomic_add %s, %s, s[%d:%d], 0 offen' % (vr(V_T0), vr(V_T1), S_DBG, S_DBG + 3))
        a('s_mov_b64 exec, -1')
    if fused:
        a('s_mov_b32 s%d, 0x200000' % S_CNT)
        a('v_lshrrev_b32 %s, 2, %s' % (vr(V_T1), vr(V_L16)))
        a('%s_w0:' % name)
        a('buffer_load_dword %s, %s, s[%d:%d], 0 offen sc1' % (vr(V_BIAS), vr(V_T1), S_DBG, S_DBG + 3))
        a('s_waitcnt vmcnt(0)')
        a('v_readlane_b32 s%d, %s, 20' % (S_T + 3, vr(V_BIAS)))
        a('v_readlane_b32 s%d, %s, 24' % (S_T + 4, vr(V_BIAS)))
        a('s_lshl_b32 s%d, s%d, 1' % (S_T + 3, S_T + 3))
        a('s_min_u32 s%d, s%d, s%d' % (S_T + 3, S_T + 3, S_T + 4))
        a('s_cmp_ge_u32 s%d, 64' % (S_T + 3))
        a('s_cbranch_scc1 %s_w0ok' % name)
        a('s_sleep 4')
        a('s_sub_u32 s%d, s%d, 1' % (S_CNT, S_CNT))
        a('s_cbranch_scc0 %s_w0' % name)
        a('%s_w0ok:' % name)
        a('v_readlane_b32 s%d, %s, 22' % (S_MODE, vr(V_BIAS)))
        a('v_mov_b32 %s, 0' % vr(V_BIAS))
        a('s_mov_b32 s%d, 2' % S_NB)
        a('s_mov_b32 s%d, 100' % S_NBW)
        if stamps: rstamp(1)
    prefetch(0)
    R2 = VX + 8
    a('v_and_b32 v3, 1, v1')
    a('v_lshl_add_u32 v3, v5, 1, v3')
    a('v_lshlrev_b32 v3, 10, v3')
    a('v_lshl_add_u32 v3, v2, 5, v3')
    a('v_bfe_u32 v4, v1, 1, 1')
    a('v_lshl_add_u32 v3, v4, 2, v3')
    a('s_lshl_b32 s%d, s%d, 8' % (S_T, S_WV))
    a('v_add_u32 v3, s%d, v3' % S_T)
    for tt in range(2):
        for ip in range(4):
            a('buffer_load_dword %s, v3, s[%d:%d], 0 offen offset:%d' % (vr(R2 + tt * 4 + ip), S_W, S_W + 3, tt * 128 + ip * 8))
    for i in range(24):
        a('v_mov_b32 %s, 0' % vr(ACC + i))
    a('s_waitcnt vmcnt(0)')

    def stamp(k):
        if not stamps: return
        a('s_memtime s[%d:%d]' % (76 + 2 * k, 77 + 2 * k))
        if k != 8: return
        a('s_waitcnt lgkmcnt(0)')
        for kk in range(9):
            a('v_writelane_b32 %s, s%d, %d' % (vr(V_T0), 76 + 2 * kk, kk))
        a('s_lshl_b32 s%d, s%d, 2' % (S_T, S_H))
        a('s_add_u32 s%d, s%d, s%d' % (S_T, S_T, S_WV))
        a('s_lshl_b32 s%d, s%d, 6' % (S_T, S_T))
        a('s_add_u32 s%d, s%d, s%d' % (S_T, S_T, S_STEP))
        a('s_lshl_b32 s%d, s%d, 6' % (S_T, S_T))
        a('s_add_u32 s%d, s%d, 0x%x' % (S_T, S_T, STAMP_OFF))
        a('v_lshrrev_b32 %s, 2, %s' % (vr(V_T1), vr(V_L16)))
        a('s_mov_b64 exec, 0x1ff')
        a('buffer_store_dword %s, %s, s[%d:%d], s%d offen' % (vr(V_T0), vr(V_T1), S_WS, S_WS + 3, S_T))
        a('s_mov_b64 exec, -1')

    Q0, Q1, K0, K1, V0, V1 = [ACC + 4 * i for i in range(6)]
    T, T1 = V_T0, V_T1
    lds_n = [0]
    cold = []
    def L(text):
        a(text); lds_n[0] += 1
        return lds_n[0] - 1
    lds_done = [-1]
    def LW(idx):
        if idx <= lds_done[0]:
            return
        n = lds_n[0] - idx - 1
        n = min(n, 14)
        idx = lds_n[0] - n - 1
        a('s_waitcnt lgkmcnt(%d)' % n)
        lds_done[0] = idx
    def poll(tag, R, loads, k=PK, extra=(), tagged=False):
        a('s_mov_b32 s%d, 0x100000' % S_CNT)
        for o in loads: a(o)
        nst = 0
        for o in extra:
            a(o)
            if o.startswith('buffer'): nst += 1
        if nst:
            a('s_waitcnt vmcnt(%d)' % nst)
            a('s_branch %s_%sc' % (name, tag))
        a('%s_%s:' % (name, tag))
        a('s_waitcnt vmcnt(0)')
        a('%s_%sc:' % (name, tag))
        if tagged:
            a('v_bitop3_b32 %s, %s, %s, s%d bitop3:0x7e' % (vr(T), vr(R), vr(R + 2), S_TAGM))
            a('v_bitop3_b32 %s, %s, %s, s%d bitop3:0x7e' % (vr(T1), vr(R + 4), vr(R + 6), S_TAGM))
            a('v_or_b32 %s, %s, %s' % (vr(T), vr(T), vr(T1)))
            a('v_and_b32 %s, 1, %s' % (vr(T), vr(T)))
            a('v_cmp_ne_u32 vcc, 0, %s' % vr(T))
        else:
            a('v_max3_u32 %s, %s, %s, %s' % (vr(T), vr(R), vr(R + 1), vr(R + 2)))
            a('v_max3_u32 %s, %s, %s, %s' % (vr(T1), vr(R + 3), vr(R + 4), vr(R + 5)))
            a('v_max3_u32 %s, %s, %s, %s' % (vr(T), vr(R + 6), vr(R + 7), vr(T)))
            a('v_max_u32 %s, %s, %s' % (vr(T), vr(T), vr(T1)))
            a('v_cmp_eq_u32 vcc, -1, %s' % vr(T))
        a('s_cbranch_vccz %s_%sdone' % (name, tag))
        if PMASK: a('s_mov_b64 exec, vcc')
        for o in loads: a(o)
        a('s_sub_u32 s%d, s%d, 1' % (S_CNT, S_CNT))
        a('s_cbranch_scc0 %s_%s' % (name, tag))
        a('%s_%sdone:' % (name, tag))
        if PMASK: a('s_mov_b64 exec, -1')
    def step(par, w, slow=False):
        U = '%d_%d%s' % (par, w, 's' if slow else '')
        HS = ' sc1' if slow else ''
        W_ = '%d%s' % (w, 's' if slow else '')
        fill = []
        def pop(n):
            for _ in range(n):
                if fill:
                    f = fill.pop(0)
                    if f is None: continue
                    if callable(f): f()
                    else: a(f)
        def smf(acc, t, breg):
            a('v_smfmac_f32_16x16x64_bf16 %s, %s, %s, %s' % (vr(acc, 4), vr(AF + 4 * t, 4), breg, vr(V_IDX)))
        frag_id = {}
        order = [0]
        def frag_ops(p):
            slot = WVS + (p % 4) * 8
            n = order[p] if p < 8 else 8 + order[p - 8]
            def r0(): L('ds_read_b128 %s, %s offset:%d' % (vr(slot, 4), vr(V_WVA), n * 2048))
            def r1(): frag_id[p] = L('ds_read_b128 %s, %s offset:%d' % (vr(slot + 4, 4), vr(V_WVA), n * 2048 + 1024))
            return [r0, r1]
        def slot_reg(p): return vr(WVS + (p % 4) * 8, 8)
        qkw_id = [None]
        def post_qk(Qr, Kr, tt):
            ops = []
            ops.append('v_add_f32 %s, %s, %s' % (vr(Kr), vr(Kr), vr(Kr + 2)))
            ops.append('v_add_f32 %s, %s, %s' % (vr(Kr + 1), vr(Kr + 1), vr(Kr + 3)))
            ops.append('v_add_f32 %s, %s, %s' % (vr(Qr), vr(Qr), vr(Qr + 2)))
            ops.append('v_add_f32 %s, %s, %s' % (vr(Qr + 1), vr(Qr + 1), vr(Qr + 3)))
            ops.append('v_cvt_pk_bf16_f32 %s, %s, %s' % (vr(Kr), vr(Kr), vr(Kr + 1)))
            ops.append('v_cvt_pk_bf16_f32 %s, %s, %s' % (vr(Kr + 1), vr(Qr), vr(Qr + 1)))
            def wr(): qkw_id[0] = L('ds_write_b64 %s, %s offset:%d' % (vr(V_QKW), vr(Kr, 2), tt * 512))
            ops.append(wr)
            return ops
        own = [2 * w, 2 * w + 1]
        oth = [t for t in range(8) if t not in own]
        if LFLAG:
            oth = [t for q in ((w + 1) % 4, (w + 2) % 4, (w + 3) % 4) for t in (2 * q, 2 * q + 1)]
        order[:] = own + oth
        RR = AF + 8 * w
        SX = VX + (par ^ 1) * 8
        for p in range(4):
            for f in frag_ops(p): f()
        if par == 0:
            a('s_cmp_eq_u32 s%d, 0' % S_STEP)
            a('s_cbranch_scc1 %s_m0_%s' % (name, W_))
        poll('p2_%s' % U, RR, [
            'buffer_load_dwordx4 %s, %s, s[%d:%d], s%d offen sc1' % (vr(RR, 4), vr(V_H2LD), S_WS, S_WS + 3, S_H2 + par),
            'buffer_load_dwordx4 %s, %s, s[%d:%d], s%d offen offset:1024 sc1' % (vr(RR + 4, 4), vr(V_H2LD), S_WS, S_WS + 3, S_H2 + par)],
            extra=(['v_mov_b64 %s, -1' % vr(SX, 2), 'v_mov_b64 %s, -1' % vr(SX + 2, 2)] +
                   ['buffer_store_dwordx4 %s, %s, s[%d:%d], s%d offen%s' % (vr(SX, 4), vr(V_H1LD), S_WS, S_WS + 3, S_H1LD + (par ^ 1) * 2 + it, HS) for it in range(2)]) if LATERST == 1 else ())
        if par == 0:
            a('%s_m0done_%s:' % (name, W_))
            def m0blk():
                a('%s_m0_%s:' % (name, W_))
                for i in range(4):
                    a('v_mov_b64 %s, %s' % (vr(RR + 2 * i, 2), vr(VX + 8 + 2 * i, 2)))
                a('s_branch %s_m0done_%s' % (name, W_))
            cold.append(m0blk)
        stamp(0)
        L('ds_write_b128 %s, %s offset:%d' % (vr(V_H2LD), vr(RR, 4), L_EX))
        wid = L('ds_write_b128 %s, %s offset:%d' % (vr(V_H2LD), vr(RR + 4, 4), L_EX + 1024))
        if dump:
            a('s_cmp_lg_u32 s%d, 0' % S_H)
            a('s_cbranch_scc1 %s_nodump_%s' % (name, U))
            a('buffer_store_dwordx4 %s, %s, s[%d:%d], s%d offen' % (vr(RR, 4), vr(V_H2LD), S_WS, S_WS + 3, S_DUMP))
            a('buffer_store_dwordx4 %s, %s, s[%d:%d], s%d offen offset:1024' % (vr(RR + 4, 4), vr(V_H2LD), S_WS, S_WS + 3, S_DUMP))
            a('s_waitcnt vmcnt(0)')
            a('%s_nodump_%s:' % (name, U))
            a('s_add_u32 s%d, s%d, 8192' % (S_DUMP, S_DUMP))
        def quad(t, p):
            smf(Q0, t, ar(t * 8, 8))
            smf(K0, t, ar(128 + t * 8, 8))
            smf(Q1, t, ar(64 + t * 8, 8))
            LW(frag_id[p])
            smf(K1, t, slot_reg(p))
            smf(V0, t, ar(192 + t * 8, 8))
            smf(V1, t, vr(WV1 + t * 8, 8))
        af_id = {}
        if LFLAG:
            a('v_mov_b32 %s, s%d' % (vr(V_T0), S_STEP))
            L('ds_write_b32 %s, %s offset:%d' % (vr(V_FLA), vr(V_T0), L_FLG + 4 * w))
            quad(own[0], 0)
            qs = [(w + 1) % 4, (w + 2) % 4, (w + 3) % 4]
            FR = [V_T0, V_T1, VX + (par ^ 1) * 8]
            def qreads(i):
                q = qs[i]
                L('ds_read_b32 %s, %s offset:%d' % (vr(FR[i]), vr(V_FLA), L_FLG + 4 * q))
                for t in (2 * q, 2 * q + 1):
                    af_id[t] = L('ds_read_b128 %s, %s offset:%d' % (vr(AF + 4 * t, 4), vr(V_L16), L_EX + 1024 * t))
            for i in range(3): qreads(i)
            quad(own[1], 1)
            oth[:] = [t for q in qs for t in (2 * q, 2 * q + 1)]
            def qcheck(i):
                q = qs[i]
                LW(af_id[2 * q + 1])
                a('v_readfirstlane_b32 s%d, %s' % (S_T + 3, vr(FR[i])))
                a('s_cmp_lg_u32 s%d, s%d' % (S_T + 3, S_STEP))
                a.br('s_cbranch_scc1 %s_qr%d_%s' % (name, i, U))
                a('%s_qk%d_%s:' % (name, i, U))
                def retry():
                    a('%s_qr%d_%s:' % (name, i, U))
                    a('s_mov_b32 s%d, 0x100000' % S_CNT)
                    a('%s_qrl%d_%s:' % (name, i, U))
                    a('ds_read_b32 %s, %s offset:%d' % (vr(FR[i]), vr(V_FLA), L_FLG + 4 * q))
                    for t in (2 * q, 2 * q + 1):
                        a('ds_read_b128 %s, %s offset:%d' % (vr(AF + 4 * t, 4), vr(V_L16), L_EX + 1024 * t))
                    a('s_waitcnt lgkmcnt(0)')
                    a('v_readfirstlane_b32 s%d, %s' % (S_T + 3, vr(FR[i])))
                    a('s_cmp_eq_u32 s%d, s%d' % (S_T + 3, S_STEP))
                    a('s_cbranch_scc1 %s_qk%d_%s' % (name, i, U))
                    a('s_sub_u32 s%d, s%d, 1' % (S_CNT, S_CNT))
                    a('s_cbranch_scc0 %s_qrl%d_%s' % (name, i, U))
                    a('s_branch %s_qk%d_%s' % (name, i, U))
                cold.append(retry)
        else:
            quad(own[0], 0)
            LW(wid)
            a('s_barrier')
            def afr(t): af_id[t] = L('ds_read_b128 %s, %s offset:%d' % (vr(AF + 4 * t, 4), vr(V_L16), L_EX + 1024 * t))
            if ILV:
                t1_ = own[1]
                afr(oth[0]); afr(oth[1])
                smf(Q0, t1_, ar(t1_ * 8, 8))
                afr(oth[2])
                smf(K0, t1_, ar(128 + t1_ * 8, 8))
                afr(oth[3])
                smf(Q1, t1_, ar(64 + t1_ * 8, 8))
                afr(oth[4])
                LW(frag_id[1])
                smf(K1, t1_, slot_reg(1))
                afr(oth[5])
                smf(V0, t1_, ar(192 + t1_ * 8, 8))
                smf(V1, t1_, vr(WV1 + t1_ * 8, 8))
            else:
                for t in oth: afr(t)
                quad(own[1], 1)
        for p in (4, 5):
            fill.extend(frag_ops(p))
        late = []
        pf = prefetch_ops(par ^ 1)
        if os.environ.get('PFSPREAD', '1') == '1' and not LFLAG:
            pf = pf[0:3] + [None, None, None] + [pf[3]] + [None, None, None] + [pf[4]] + [None, None, None] + pf[5:]
        if not os.environ.get('NOPF'): (late if LFLAG else fill).extend(pf)
        if fused and w == 0:
            fill_save = fill; fill = late
            fill.append('v_lshlrev_b32 %s, 3, %s' % (vr(V_T1), vr(V_L16)))
            fill.append('v_mov_b32 %s, s%d' % (vr(V_T0), S_STEP))
            def pub():
                a('s_mov_b64 exec, s[%d:%d]' % (S_KMX, S_KMX + 1))
                a('buffer_store_dword %s, %s, s[%d:%d], s%d offen sc1' % (vr(V_T0), vr(V_T1), S_WS, S_WS + 3, S_FLG))
                a('s_mov_b64 exec, -1')
            fill.append(pub)
            fill = fill_save
        for ii, t in enumerate(oth):
            if LFLAG and ii % 2 == 0: qcheck(ii // 2)
            LW(af_id[t])
            smf(Q0, t, ar(t * 8, 8))
            pop(2)
            smf(K0, t, ar(128 + t * 8, 8))
            pop(2)
        pop(99)
        for i, t in enumerate(oth):
            p = 2 + i
            smf(Q1, t, ar(64 + t * 8, 8))
            if i == 0:
                fill.extend(late)
            if i == 2:
                fill.extend(post_qk(Q0, K0, 0))
            pop(2)
            LW(frag_id[p])
            smf(K1, t, slot_reg(p))
            if p + 4 < 8:
                for f in frag_ops(p + 4): f()
        pop(99)
        stamp(1)
        kx_id = {}
        def kxr(j): kx_id[j] = L('ds_read_b128 %s, %s offset:%d' % (vr(AF + 4 * j, 4), vr(V_L16), L_KX + par * 8192 + 1024 * j))
        def vp(i):
            t = order[i]
            smf(V0, t, ar(192 + t * 8, 8))
            smf(V1, t, vr(WV1 + t * 8, 8))
            kxr(t)
        kxr(own[0]); kxr(own[1])
        vp(2)
        for o in post_qk(Q1, K1, 1):
            if callable(o): o()
            else: a(o)
        vp(3)
        LW(qkw_id[0])
        a('s_barrier')
        F = ACC
        f_id = []
        def ftr(es):
            L('ds_read_b64_tr_b16 %s, %s offset:%d' % (vr(F + 4 * es, 2), vr(V_FTR), es * 1024))
            f_id.append(L('ds_read_b64_tr_b16 %s, %s offset:%d' % (vr(F + 4 * es + 2, 2), vr(V_FTR), es * 1024 + 512)))
        if ILV:
            ftr(0); ftr(1)
            smf(V0, order[4], ar(192 + order[4] * 8, 8))
            ftr(2)
            smf(V1, order[4], vr(WV1 + order[4] * 8, 8))
            ftr(3)
            kxr(order[4])
            for i in range(5, 8):
                vp(i)
        else:
            for es in range(4): ftr(es)
            for i in range(4, 8):
                vp(i)
        stamp(2)
        SM, SX0, SX1 = WVS, WVS + 4, WVS + 8
        VM = V0
        started = set()
        def smm(acc, areg, es):
            c = vr(acc, 4) if acc in started else '0'
            started.add(acc)
            a('v_mfma_f32_16x16x32_bf16 %s, %s, %s, %s' % (vr(acc, 4), areg, vr(F + 4 * es, 4), c))
        LW(f_id[3])
        for i, t in enumerate(order):
            if i < 4:
                smm(SM, vr(F + 4 * i, 4), i)
            LW(kx_id[t])
            smm(SX0 if t < 4 else SX1, vr(AF + 4 * t, 4), t % 4)
            if i == 0:
                a('buffer_store_dwordx4 %s, %s, s[%d:%d], s%d offen offset:%d%s' % (vr(F + 4 * w, 4), vr(V_L16), S_WS, S_WS + 3, S_KM, w * 1024, SC))
                a('s_add_u32 s%d, s%d, 0x20000' % (S_KM, S_KM))
            if i == 2:
                for k in range(4):
                    a('v_cvt_pk_bf16_f32 %s, %s, %s' % (vr(VM + k), vr(V0 + 2 * k), vr(V0 + 2 * k + 1)))
            if i == 3:
                a('buffer_store_dwordx4 %s, %s, s[%d:%d], s%d offen%s' % (vr(VM, 4), vr(V_L16), S_WS, S_WS + 3, S_VM, SC))
                a('s_add_u32 s%d, s%d, 0x20000' % (S_VM, S_VM))
            if i == 5:
                a('s_cmp_eq_u32 s%d, %d' % (S_STEP, nsteps - 1))
                a.br('s_cbranch_scc1 %s_done' % name)
        lastX = SX0 if order[-1] < 4 else SX1
        firstX = SX1 if lastX == SX0 else SX0
        fdone = all((t < 4) == (firstX == SX0) for t in order[:0])
        stamp(3)
        for zz in (16, 18, 20, 22):
            a('v_mov_b64 %s, 0' % vr(AF + zz, 2)) if (zz // 4) != order[-1] and (zz // 4) != order[-2] else None
        a('v_max3_f32 %s, %s, %s, %s' % (vr(T), vr(firstX), vr(firstX + 1), vr(firstX + 2)))
        a('v_max3_f32 %s, %s, %s, %s' % (vr(T1), vr(firstX + 3), vr(SM), vr(SM + 1)))
        a('v_max3_f32 %s, %s, %s, %s' % (vr(T1), vr(lastX), vr(lastX + 1), vr(T1)))
        a('v_max3_f32 %s, %s, %s, %s' % (vr(T), vr(lastX + 2), vr(lastX + 3), vr(T)))
        a('v_max_f32 %s, %s, %s' % (vr(T), vr(T), vr(T1)))
        a('v_mov_b32 %s, %s' % (vr(T1), vr(T)))
        a('v_mov_b64 %s, 0' % vr(AF + 0, 2))
        a('v_mov_b64 %s, 0' % vr(AF + 2, 2))
        a('v_permlane32_swap_b32 %s, %s' % (vr(T), vr(T1)))
        a('v_max_f32 %s, %s, %s' % (vr(T), vr(T), vr(T1)))
        a('v_mov_b32 %s, %s' % (vr(T1), vr(T)))
        a('v_mov_b64 %s, 0' % vr(AF + 4, 2))
        a('v_mov_b64 %s, 0' % vr(AF + 6, 2))
        a('v_permlane16_swap_b32 %s, %s' % (vr(T), vr(T1)))
        a('v_max_f32 %s, %s, %s' % (vr(T), vr(T), vr(T1)))
        a('v_mul_f32 %s, s%d, %s' % (vr(T), S_C, vr(T)))
        PX = WVS + 28; PM = WVS + 2
        LS, O0, O1 = WVS + 16, WVS + 20, WVS + 24
        for i in range(2):
            a('v_fma_f32 %s, %s, s%d, -%s' % (vr(SM + i), vr(SM + i), S_C, vr(T)))
        for i in range(2):
            a('v_exp_f32 %s, %s' % (vr(SM + i), vr(SM + i)))
        for i in range(4, 12):
            a('v_fma_f32 %s, %s, s%d, -%s' % (vr(WVS + i), vr(WVS + i), S_C, vr(T)))
        a('v_cvt_pk_bf16_f32 %s, %s, %s' % (vr(PM), vr(SM), vr(SM + 1)))
        a('v_cvt_pk_bf16_f32 %s, %s, %s' % (vr(PM + 1), vr(SM), vr(SM + 1)))
        a('v_exp_f32 %s, %s' % (vr(WVS + 4), vr(WVS + 4)))
        a('v_exp_f32 %s, %s' % (vr(WVS + 5), vr(WVS + 5)))
        a('v_mfma_f32_16x16x16_bf16 %s, %s, %s, 0' % (vr(LS, 4), vr(PM, 2), vr(V_HONES, 2)))
        a('v_exp_f32 %s, %s' % (vr(WVS + 6), vr(WVS + 6)))
        a('v_exp_f32 %s, %s' % (vr(WVS + 7), vr(WVS + 7)))
        a('v_mfma_f32_16x16x16_bf16 %s, %s, %s, 0' % (vr(O0, 4), vr(PM, 2), vr(VM, 2)))
        a('v_exp_f32 %s, %s' % (vr(WVS + 8), vr(WVS + 8)))
        a('v_exp_f32 %s, %s' % (vr(WVS + 9), vr(WVS + 9)))
        a('v_mfma_f32_16x16x16_bf16 %s, %s, %s, 0' % (vr(O1, 4), vr(PM, 2), vr(VM + 2, 2)))
        a('v_exp_f32 %s, %s' % (vr(WVS + 10), vr(WVS + 10)))
        a('v_exp_f32 %s, %s' % (vr(WVS + 11), vr(WVS + 11)))
        a('v_cvt_pk_bf16_f32 %s, %s, %s' % (vr(PX), vr(SX0), vr(SX0 + 1)))
        a('v_cvt_pk_bf16_f32 %s, %s, %s' % (vr(PX + 1), vr(SX0 + 2), vr(SX0 + 3)))
        a('v_cvt_pk_bf16_f32 %s, %s, %s' % (vr(PX + 2), vr(SX1), vr(SX1 + 1)))
        a('v_cvt_pk_bf16_f32 %s, %s, %s' % (vr(PX + 3), vr(SX1 + 2), vr(SX1 + 3)))
        stamp(4)
        a('v_mov_b64 %s, 0' % vr(AF + 24, 2))
        a('v_mov_b64 %s, 0' % vr(AF + 26, 2))
        a('v_mfma_f32_16x16x32_bf16 %s, %s, %s, %s' % (vr(LS, 4), vr(PX, 4), vr(V_ONES, 4), vr(LS, 4)))
        a('v_mov_b64 %s, 0' % vr(AF + 28, 2))
        a('v_mov_b64 %s, 0' % vr(AF + 30, 2))
        a('v_mfma_f32_16x16x32_bf16 %s, %s, %s, %s' % (vr(O0, 4), vr(PX, 4), vr(VX + par * 8, 4), vr(O0, 4)))
        a('v_mfma_f32_16x16x32_bf16 %s, %s, %s, %s' % (vr(O1, 4), vr(PX, 4), vr(VX + par * 8 + 4, 4), vr(O1, 4)))
        wo_id = {}
        def wor(q):
            slot = WSL[wo_seq.index(q) % 6]
            L('ds_read_b128 %s, %s offset:%d' % (vr(slot, 4), vr(V_WVA), (8 + q) * 2048))
            wo_id[q] = L('ds_read_b128 %s, %s offset:%d' % (vr(slot + 4, 4), vr(V_WVA), (8 + q) * 2048 + 1024))
        WSL = [WVS, WVS + 8, WVS + 16, ACC, ACC + 8, ACC + 16]
        wo_seq = [0, 2, 1, 3, 4, 6, 5, 7]
        wor(wo_seq[0]); wor(wo_seq[1])
        for i in range(2, 4):
            a('v_rcp_f32 %s, %s' % (vr(LS + i), vr(LS + i)))
        for tt, O in enumerate((O0, O1)):
            for i in range(2, 4):
                a('v_mul_f32 %s, %s, %s' % (vr(O + i), vr(O + i), vr(LS + i)))
            a('v_cvt_pk_bf16_f32 %s, %s, %s' % (vr(O), vr(O + 2), vr(O + 3)))
            L('ds_write_b32 %s, %s offset:%d' % (vr(V_OW), vr(O), 256 * tt))
        for zz in (16, 18, 20, 22):
            if (zz // 4) == order[-1] or (zz // 4) == order[-2]:
                a('v_mov_b64 %s, 0' % vr(AF + zz, 2))
        a('s_waitcnt lgkmcnt(0)')
        a('s_barrier')
        OA = WVS + 24
        oa_id = []
        for t2 in range(2):
            L('ds_read_b64_tr_b16 %s, %s offset:%d' % (vr(OA + 4 * t2, 2), vr(V_OTR), t2 * 1024))
            oa_id.append(L('ds_read_b64_tr_b16 %s, %s offset:%d' % (vr(OA + 4 * t2 + 2, 2), vr(V_OTR), t2 * 1024 + 128)))
        for i in range(4, 8):
            a('v_mov_b64 %s, 0' % vr(AF + 2 * i, 2))
        stamp(5)
        def post_wo(u):
            A0 = AF + 8 * u; A1 = A0 + 4
            ops = []
            for A in (A0, A1):
                ops.append('v_add_f32 %s, %s, %s' % (vr(A), vr(A), vr(A + 2)))
                ops.append('v_add_f32 %s, %s, %s' % (vr(A + 1), vr(A + 1), vr(A + 3)))
            ops.append('v_cvt_pk_bf16_f32 %s, %s, %s' % (vr(A0), vr(A0), vr(A0 + 1)))
            ops.append('v_cvt_pk_bf16_f32 %s, %s, %s' % (vr(A0 + 1), vr(A1), vr(A1 + 1)))
            if LATERST == 3:
                ops.append('v_bfi_b32 %s, 1, s%d, %s' % (vr(A0), S_TAGM, vr(A0)))
            ops.append('buffer_store_dwordx2 %s, %s, s[%d:%d], s%d offen%s' % (vr(A0, 2), vr(V_H1ST), S_WS, S_WS + 3, S_H1ST + par * 4 + u, HS))
            return ops
        LW(oa_id[0])
        nq = [2]
        if LATERST == 3:
            a('s_bfe_i32 s%d, s%d, 0x10001' % (S_TAGM, S_STEP))
        for u in range(4):
            for t2 in range(2):
                if u == 0 and t2 == 1: LW(oa_id[1])
                for k in range(2):
                    tt8 = 2 * u + k
                    if u < 2:
                        breg = vr(WO + (tt8 * 2 + t2) * 8, 8)
                    else:
                        q = (tt8 - 4) * 2 + t2
                        LW(wo_id[q])
                        breg = vr(WSL[wo_seq.index(q) % 6], 8)
                    a('v_smfmac_f32_16x16x64_bf16 %s, %s, %s, %s' % (vr(AF + 4 * tt8, 4), vr(OA + 4 * t2, 4), breg, vr(V_IDX)))
                    if u < 2 and nq[0] < 6 and not (u == 0 and t2 == 0 and k == 0) and not (u == 1 and t2 == 1):
                        wor(wo_seq[nq[0]]); nq[0] += 1
                    if u >= 2 and nq[0] < 8:
                        wor(wo_seq[nq[0]]); nq[0] += 1
                    if t2 == 1 and k == 0 and u > 0:
                        fill.extend(post_wo(u - 1))
                    if t2 == 1:
                        pop(4)
            pop(99)
        for i in range(0, 4):
            a('v_mov_b64 %s, 0' % vr(ACC + 2 * i, 2))
        for o in post_wo(3): a(o)
        for i in range(4, 12):
            a('v_mov_b64 %s, 0' % vr(ACC + 2 * i, 2))
        R1 = WVS
        stamp(6)
        poll('p1_%s' % U, R1, [
            'buffer_load_dwordx4 %s, %s, s[%d:%d], s%d offen sc1' % (vr(R1 + 4 * it, 4), vr(V_H1LD), S_WS, S_WS + 3, S_H1LD + par * 2 + it) for it in range(2)], tagged=(LATERST == 3))
        stamp(7)
        RA = WVS + 8; RB = WVS + 12; SN = WVS + 16
        a('v_mfma_f32_16x16x32_bf16 %s, %s, %s, 0' % (vr(RA, 4), vr(V_SEL, 4), vr(R1, 4)))
        a('v_mfma_f32_16x16x32_bf16 %s, %s, %s, %s' % (vr(RA, 4), vr(V_SEL, 4), vr(R1 + 4, 4), vr(RA, 4)))
        a('v_mov_b64 %s, -1' % vr(SN, 2))
        a('v_mov_b64 %s, -1' % vr(SN + 2, 2))
        a('s_add_u32 s%d, s%d, 1' % (S_STEP, S_STEP))
        for i in range(4):
            a('v_add_f32_dpp %s, %s, %s row_ror:4 row_mask:0xf bank_mask:0xf' % (vr(RB + i), vr(RA + i), vr(RA + i)))
        for i in range(4):
            a('v_add_f32_dpp %s, %s, %s row_ror:8 row_mask:0xf bank_mask:0xf' % (vr(RA + i), vr(RB + i), vr(RB + i)))
        a('s_mov_b64 exec, s[%d:%d]' % (S_STMASK, S_STMASK + 1))
        a('v_cvt_pk_bf16_f32 %s, %s, %s' % (vr(RA), vr(RA), vr(RA + 1)))
        a('v_cvt_pk_bf16_f32 %s, %s, %s' % (vr(RA + 1), vr(RA + 2), vr(RA + 3)))
        a('buffer_store_dword %s, %s, s[%d:%d], s%d offen%s' % (vr(RA), vr(V_H2ST), S_WS, S_WS + 3, S_H2 + (par ^ 1), HS))
        a('buffer_store_dword %s, %s, s[%d:%d], s%d offen offset:16%s' % (vr(RA + 1), vr(V_H2ST), S_WS, S_WS + 3, S_H2 + (par ^ 1), HS))
        a('buffer_store_dword %s, %s, s[%d:%d], s%d offen%s' % (vr(SN), vr(V_H2ST), S_WS, S_WS + 3, S_H2 + par, HS))
        a('buffer_store_dword %s, %s, s[%d:%d], s%d offen offset:16%s' % (vr(SN), vr(V_H2ST), S_WS, S_WS + 3, S_H2 + par, HS))
        a('s_mov_b64 exec, -1')
        if not LATERST:
            for it in range(2):
                a('buffer_store_dwordx4 %s, %s, s[%d:%d], s%d offen%s' % (vr(SN, 4), vr(V_H1LD), S_WS, S_WS + 3, S_H1LD + par * 2 + it, HS))
        if fused:
            a('s_add_u32 s%d, s%d, %d' % (S_T, S_STEP, 2 if par == 1 else 1))
            a('s_cmp_lg_u32 s%d, s%d' % (S_T, S_NB))
            a('s_cbranch_scc1 %s_nokv%s' % (name, U))
            if par == 1:
                a('v_mov_b32 %s, s%d' % (vr(V_T1), S_NBW))
                a('buffer_load_dword %s, %s, s[%d:%d], 0 offen sc1' % (vr(V_BIAS), vr(V_T1), S_DBG, S_DBG + 3))
            else:
                a('v_readfirstlane_b32 s%d, %s' % (S_T + 3, vr(V_BIAS)))
                a('s_cmp_ge_u32 s%d, 64' % (S_T + 3))
                a('s_cbranch_scc1 %s_kvok%s' % (name, U))
                dbg_wait('wkvn%s' % W_, 's%d' % S_NBW, 64)
                a('%s_kvok%s:' % (name, U))
                a('s_min_u32 s%d, s%d, 8' % (S_T, S_NB))
                a('s_add_u32 s%d, s%d, s%d' % (S_NB, S_NB, S_T))
                a('s_add_u32 s%d, s%d, 4' % (S_NBW, S_NBW))
                a('s_cmp_ge_u32 s%d, 64' % S_NB)
                a('s_cselect_b32 s%d, 0x7fff, s%d' % (S_NB, S_NB))
            a('%s_nokv%s:' % (name, U))
        if stamps:
            a('s_sub_u32 s%d, s%d, 1' % (S_STEP, S_STEP))
            stamp(8)
            a('s_add_u32 s%d, s%d, 1' % (S_STEP, S_STEP))
    for slow in ([False, True] if (fused and not os.environ.get('NOSLOW')) else [False]):
        sfx = 's' if slow else ''
        if fused and not slow and not os.environ.get('NOSLOW'):
            a('s_cmp_lg_u32 s%d, 0' % S_MODE)
            a('s_cbranch_scc1 %s_slowmode' % name)
        if slow:
            a('%s_slowmode:' % name)
        for w in range(1, 4):
            a('s_cmp_eq_u32 s%d, %d' % (S_WV, w))
            a('s_cbranch_scc1 %s_wl%d%s' % (name, w, sfx))
        for w in range(4):
            if os.environ.get('ALIGN'): a('.p2align %s' % os.environ['ALIGN'])
            a('%s_wl%d%s:' % (name, w, sfx))
            step(0, w, slow)
            step(1, w, slow)
            a('s_branch %s_wl%d%s' % (name, w, sfx))
    for c in cold: c()
    a('%s_done:' % name)
    a('s_waitcnt vmcnt(0)')
    if stamps: rstamp(2)
    if fused:
        a('s_barrier')
        a('s_cmp_lg_u32 s%d, 0' % S_WV)
        a('s_cbranch_scc1 %s_fin' % name)
        dbg_add(21)
        a('%s_fin:' % name)

def kernel_header(a, name):
    a.out.append('.globl %s' % name)
    a.out.append('.p2align 8')
    a.out.append('.type %s,@function' % name)
    a.out.append('%s:' % name)

def kernel_desc(name, vgpr=512, sgpr=102, accum=256):
    return '''.amdhsa_kernel %s
  .amdhsa_next_free_vgpr %d
  .amdhsa_next_free_sgpr %d
  .amdhsa_accum_offset %d
  .amdhsa_group_segment_fixed_size 0
  .amdhsa_kernarg_size 160
  .amdhsa_user_sgpr_count 2
  .amdhsa_user_sgpr_kernarg_segment_ptr 1
  .amdhsa_system_sgpr_workgroup_id_x 1
  .amdhsa_float_denorm_mode_32 3
.end_amdhsa_kernel
''' % (name, vgpr, sgpr, accum)

def gen_init(a, name):
    kernel_header(a, name)
    a('s_cmp_ge_u32 s2, 33')
    a('s_cbranch_scc1 %s_end' % name)
    a('s_load_dwordx2 s[8:9], s[0:1], 152')
    a('s_waitcnt lgkmcnt(0)')
    build_srd(a, 4, 8, WS_BYTES)
    a('s_lshl_b32 s3, s2, 14')
    a('s_add_u32 s3, s3, 0x%x' % H1_OFF)
    a('v_lshlrev_b32 v1, 4, v0')
    for i in range(4):
        a('v_mov_b32 v%d, -1' % (4 + i))
    for i in range(4):
        a('s_add_u32 s10, s3, %d' % (i * 4096))
        a('buffer_store_dwordx4 v[4:7], v1, s[4:7], s10 offen')
    a('%s_end:' % name)
    a('s_endpgm')

def gen_chain_kernel(a, name, **kw):
    kernel_header(a, name)
    gen_role(a, name)
    a('s_cmp_gt_u32 s%d, 31' % S_H)
    a('s_cbranch_scc1 %s_exit' % name)
    gen_chain_body(a, name, **kw)
    a('%s_exit:' % name)
    a('s_endpgm')

if __name__ == '__main__':
    import sys
    a = Asm()
    hdr = '''; @launch kernel=init_kernel grid=(33,1,1) block=(256,1,1) lds=0
; @launch kernel=chain_kernel grid=(256,1,1) block=(256,1,1) lds=163840
.amdgcn_target "amdgcn-amd-amdhsa--gfx950"
.text
'''
    gen_init(a, 'init_kernel')
    gen_chain_kernel(a, 'chain_kernel', dump=('dump' in sys.argv), stamps=('stamps' in sys.argv))
    txt = hdr + a.text() + '.section .rodata,"a"\n.p2align 6\n' + kernel_desc('init_kernel', 16, 16, 16) + '.p2align 6\n' + kernel_desc('chain_kernel')
    open(sys.argv[1], 'w').write(txt)
    print('nops inserted', a.nops_inserted, 'lines', len(a.out))
```
